```python
import torch

def _softmax(x, axis=-1):
    return torch.softmax(x, dim=axis)
def _gelu(x):
    return torch.nn.functional.gelu(x, approximate="tanh")
def _silu(x):
    return torch.nn.functional.silu(x)
def _sigmoid(x):
    return torch.sigmoid(x)
def _layernorm(x, axis=-1, eps=1e-5):
    m = x.mean(dim=axis, keepdim=True)
    v = x.var(dim=axis, keepdim=True, unbiased=False)
    return (x - m) / torch.sqrt(v + eps)
def _scatter_add(tgt, idx, src, axis=0):
    return tgt.clone().index_add_(axis, idx, src)
def _segment_sum(src, seg, n):
    out = torch.zeros((n,) + src.shape[1:], dtype=src.dtype)
    return out.index_add_(0, seg, src)
def _pad(x, pw):
    flat = tuple(v for pair in reversed(pw) for v in pair)
    return torch.nn.functional.pad(x, flat)

kernel_name = 'standalone__glu_gated_bilinear__prompt'

def setup_inputs():

    _w = (lambda a: (lambda t: t.to(torch.bfloat16) if t.is_floating_point() else t)(torch.as_tensor(a)))
    B, S, D, F = 1, 2048, 640, 1728
    return {
        "x": _w((lambda *s: torch.randn(*s, dtype=torch.bfloat16) * 0.05)(B, S, D)),
        "w_gate": _w((lambda *s: torch.randn(*s, dtype=torch.bfloat16) * 0.05)(D, F) * (D ** -0.5)),
        "w_up": _w((lambda *s: torch.randn(*s, dtype=torch.bfloat16) * 0.05)(D, F) * (D ** -0.5)),
        "w_down": _w((lambda *s: torch.randn(*s, dtype=torch.bfloat16) * 0.05)(F, D) * (F ** -0.5)),
    }

def reference(x, w_gate, w_up, w_down):
    g = torch.einsum("bsd,df->bsf", x, w_gate)
    u = torch.einsum("bsd,df->bsf", x, w_up)
    h = g * u
    return torch.einsum("bsf,fd->bsd", h, w_down)
```

```python
KNAME = "standalone__glu_gated_bilinear__prompt_kernel"

class Asm:
    def __init__(self):
        self.lines = []
        self.lab = 0
    def __call__(self, s):
        for l in s.split("\n"):
            self.lines.append("    " + l.strip() if l.strip() and not l.strip().endswith(":") else l.strip())
    def label(self, base="L"):
        self.lab += 1
        return f"{base}_{self.lab}"
    def text(self):
        return "\n".join(self.lines) + "\n"

def header(launch_lines):
    h = "; generated\n"
    for l in launch_lines:
        h += f"; @launch {l}\n"
    h += '.amdgcn_target "amdgcn-amd-amdhsa--gfx950"\n.text\n'
    return h

def kernel_begin(name):
    return f".globl {name}\n.p2align 8\n.type {name},@function\n{name}:\n"

def kernel_desc(name, vgpr=256, sgpr=102, accum=256, extra=""):
    return f""".section .rodata,"a"
.p2align 6
.amdhsa_kernel {name}
  .amdhsa_next_free_vgpr {vgpr}
  .amdhsa_next_free_sgpr {sgpr}
  .amdhsa_accum_offset {accum}
  .amdhsa_group_segment_fixed_size 0
  .amdhsa_kernarg_size 56
  .amdhsa_user_sgpr_count 2
  .amdhsa_user_sgpr_kernarg_segment_ptr 1
  .amdhsa_system_sgpr_workgroup_id_x 1
{extra}.end_amdhsa_kernel
.text
"""
```

```python
class SB:
    def __init__(self):
        self.lines = []
        self.n = 0
        self.vm = []
        self.vm_done = 0
        self.lg = []
        self.lg_done = 0
        self.mfma_w = {}
        self.lab = 0
    def raw(self, s):
        self.lines.append(s)
    def label(self, name):
        self.lines.append(name + ":")
    def c(self, s):
        self.lines.append("    ; " + s)
    def __call__(self, s):
        for l in s.split("\n"):
            l = l.strip()
            if not l: continue
            if l.endswith(":"):
                self.lines.append(l); continue
            self.lines.append("    " + l)
            if l.startswith(";"): continue
            if l.startswith("s_nop"):
                self.n += int(l.split()[1], 0) + 1
            else:
                self.n += 1
    def vmi(self, s, tag=None):
        self(s); self.vm.append(tag)
    def _idx(self, q, tag):
        idx = [i for i, t in enumerate(q) if t == tag]
        assert idx, f"tag {tag} never issued"
        return idx[-1]
    def need(self, vm=None, lg=None):
        parts = []
        if vm is not None:
            tags = vm if isinstance(vm, list) else [vm]
            i = max(self._idx(self.vm, t) for t in tags)
            if i + 1 > self.vm_done:
                n = len(self.vm) - 1 - i
                n = min(n, 63)
                parts.append(f"vmcnt({n})")
                self.vm_done = len(self.vm) - n
        if lg is not None:
            tags = lg if isinstance(lg, list) else [lg]
            i = max(self._idx(self.lg, t) for t in tags)
            if i + 1 > self.lg_done:
                n = len(self.lg) - 1 - i
                n = min(n, 15)
                parts.append(f"lgkmcnt({n})")
                self.lg_done = len(self.lg) - n
        if parts:
            self("s_waitcnt " + " ".join(parts))
    def wait_all(self, vm=True, lg=True):
        parts = []
        if vm: parts.append("vmcnt(0)"); self.vm_done = len(self.vm)
        if lg: parts.append("lgkmcnt(0)"); self.lg_done = len(self.lg)
        self("s_waitcnt " + " ".join(parts))
    def lgi(self, s, tag=None):
        self(s); self.lg.append(tag)
    def mfma(self, s, acc):
        self(s); self.mfma_w[acc] = self.n
    def after_mfma(self, acc, states):
        d = self.n - self.mfma_w[acc]
        if d < states:
            k = states - d
            while k > 0:
                m = min(k, 16)
                self(f"s_nop {m-1}"); k -= m
    def text(self):
        return "\n".join(self.lines) + "\n"
```

```python
import sys
from sb import SB
from asmlib import header, kernel_begin, kernel_desc

XB, WB, HB, OB = 2621440, 2211840, 54*128*1024, 2621440
STAMP_OFF = 0x4000000

def R(p, a, n=4): return f"{p}[{a}:{a+n-1}]"

def stamp(a, i, on):
    if on: a(f"s_memtime s[{80+2*i}:{81+2*i}]")

def stamps_out(a, nst, on, koff):
    if not on: return
    a(f"""
    s_memrealtime s[98:99]
    s_waitcnt lgkmcnt(0)
    s_load_dwordx2 s[4:5], s[0:1], 48
    s_waitcnt lgkmcnt(0)
    s_mov_b32 s8, s4
    s_mov_b32 s9, s5
    s_mov_b32 s10, 0x10000000
    s_mov_b32 s11, 0x00020000
    s_lshl_b32 s3, s2, 2
    s_add_u32 s3, s3, s24
    s_lshl_b32 s3, s3, 6
    s_add_u32 s3, s3, {STAMP_OFF+koff}
    v_mov_b32 v1, s3
    """)
    for i in range(1, nst):
        a(f"s_sub_u32 s4, s{80+2*i}, s80")
        a(f"v_mov_b32 v2, s4")
        a(f"buffer_store_dword v2, v1, s[8:11], 0 offen offset:{4*i}")
    a(f"v_mov_b32 v2, s96")
    a(f"buffer_store_dword v2, v1, s[8:11], 0 offen offset:56")
    a(f"v_mov_b32 v2, s98")
    a(f"buffer_store_dword v2, v1, s[8:11], 0 offen offset:60")

def gen_p1(opt):
    a = SB()
    st = opt.get("stamps", False)
    rot = opt.get("rot", 0)
    hpol = opt.get("hpol", "")
    ldpol = opt.get("ldpol", "")
    if st: a("s_memrealtime s[96:97]")
    stamp(a, 0, st)
    a(f"""
    s_load_dwordx4 s[4:7], s[0:1], 0
    s_load_dwordx2 s[70:71], s[0:1], 16
    s_load_dwordx2 s[72:73], s[0:1], 48
    s_and_b32 s3, s2, 7
    s_lshr_b32 s29, s2, 3
    s_lshr_b32 s25, s3, 1
    s_cmp_eq_u32 s25, 3
    s_cselect_b32 s26, 24, 28
    s_cmp_ge_u32 s29, s26
    s_cbranch_scc1 L_p1_end
    s_mul_i32 s25, s25, 7
    s_lshr_b32 s27, s29, 2
    s_add_u32 s25, s25, s27
    s_and_b32 s26, s3, 1
    s_lshl_b32 s26, s26, 2
    s_and_b32 s28, s29, 3
    s_add_u32 s26, s26, s28
    """)
    if rot == 0:
        a("s_mov_b32 s27, 0")
    elif rot == 1:
        a("""
        s_mul_i32 s28, s28, 5
        s_lshr_b32 s28, s28, 1
        s_add_u32 s27, s27, s28
        s_cmp_ge_u32 s27, 10
        s_cselect_b32 s28, 10, 0
        s_sub_u32 s27, s27, s28
        """)
    if opt.get("browrot", 1):
        a("s_mul_i32 s28, s25, 19\ns_lshr_b32 s28, s28, 6")
    else:
        a("s_mov_b32 s28, 0")
    a("""
    v_lshrrev_b32 v1, 6, v0
    v_and_b32 v0, 63, v0
    s_nop 0
    v_readfirstlane_b32 s24, v1
    v_lshrrev_b32 v2, 3, v0
    v_and_b32 v3, 7, v0
    v_lshrrev_b32 v4, 4, v0
    """)
    for k in range(4):
        a(f"""
        v_add_u32 v5, {4*k}, v4
        v_and_b32 v5, 7, v5
        v_xor_b32 v5, v5, v3
        v_lshlrev_b32 v5, 4, v5
        v_mul_u32_u24 v6, 1280, v2
        v_add_u32 v5, v5, v6
        v_add_u32 v{8+k}, {k*(8*1280-1024)}, v5
        """)
    a("""
    s_lshr_b32 s74, s24, 1
    s_lshl_b32 s74, s74, 1
    v_and_b32 v5, 1, v4
    v_add_u32 v5, s74, v5
    v_lshlrev_b32 v5, 1, v5
    v_xor_b32 v5, v5, v3
    v_lshlrev_b32 v5, 4, v5
    v_mul_u32_u24 v6, 3456, v2
    v_add_u32 v12, v5, v6
    """)
    for k in range(1, 4):
        a(f"v_add_u32 v{12+k}, {k*(8*3456-1024)}, v12")
    a("""
    s_lshl_b32 s75, s26, 3
    s_add_u32 s76, s28, s24
    s_and_b32 s76, s76, 7
    s_add_u32 s76, s76, s75
    s_mul_i32 s76, s76, 40960
    s_and_b32 s77, s24, 1
    s_mul_i32 s77, s77, 110592
    s_lshl_b32 s78, s25, 7
    s_add_u32 s77, s77, s78
    s_lshl_b32 s68, s24, 12
    s_add_u32 s69, s68, 65536
    """)
    def tabA(kk):
        a(f"""
        s_add_u32 s78, s27, {kk}
        s_cmp_ge_u32 s78, 10
        s_cselect_b32 s79, 10, 0
        s_sub_u32 s78, s78, s79
        s_lshl_b32 s79, s78, 7
        s_add_u32 s{30+kk}, s76, s79
        s_mul_i32 s79, s78, 221184
        s_add_u32 s{40+kk}, s77, s79
        """)
    tabA(0); tabA(1)
    a(f"""
    s_waitcnt lgkmcnt(0)
    s_mov_b32 s8, s4
    s_mov_b32 s9, s5
    s_mov_b32 s10, {XB}
    s_mov_b32 s11, 0x00020000
    s_cmp_ge_u32 s24, 2
    s_cselect_b32 s12, s70, s6
    s_cselect_b32 s13, s71, s7
    s_mov_b32 s14, {WB}
    s_mov_b32 s15, 0x00020000
    s_mov_b32 s16, s72
    s_mov_b32 s17, s73
    s_mov_b32 s18, {HB}
    s_mov_b32 s19, 0x00020000
    """)
    stamp(a, 1, st)
    def dma_list(s):
        L = []
        slot = s % 4
        if s < 10:
            for k in range(4):
                pre = f"s_add_u32 m0, s69, {slot*16384}\ns_nop 0" if k == 0 else None
                L.append((pre, f"buffer_load_dwordx4 v{12+k}, s[12:15], s{40+s} offen offset:{1024*k} {ldpol} lds"))
        if s < 20:
            so = 30 + s if s < 10 else 50 + s - 10
            for k in range(4):
                pre = f"s_add_u32 m0, s68, {slot*16384}\ns_nop 0" if k == 0 else None
                L.append((pre, f"buffer_load_dwordx4 v{8+k}, s[8:11], s{so} offen offset:{1024*k} {ldpol} lds"))
        return L
    def issue(item, s):
        pre, ins = item
        if pre: a(pre)
        a.vmi(ins, ("dma", s))
    for it in dma_list(0): issue(it, 0)
    for it in dma_list(1): issue(it, 1)
    for kk in range(2, 10): tabA(kk)
    a("s_mov_b32 s78, s24\ns_mov_b32 s79, 4")
    for q in range(10):
        a(f"""
        s_add_u32 s4, s78, s27
        s_cmp_ge_u32 s4, 10
        s_cselect_b32 s5, 10, 0
        s_sub_u32 s4, s4, s5
        s_lshl_b32 s4, s4, 7
        s_add_u32 s5, s79, s28
        s_and_b32 s5, s5, 7
        s_add_u32 s5, s5, s75
        s_mul_i32 s5, s5, 40960
        s_add_u32 s{50+q}, s4, s5
        s_add_u32 s78, s78, 4
        s_cmp_ge_u32 s78, 10
        s_cselect_b32 s4, 10, 0
        s_cselect_b32 s5, 1, 0
        s_sub_u32 s78, s78, s4
        s_add_u32 s79, s79, s5
        """)
    a("""
    s_lshr_b32 s4, s24, 1
    s_lshl_b32 s5, s25, 1
    s_add_u32 s4, s4, s5
    s_lshl_b32 s4, s4, 7
    s_lshl_b32 s5, s26, 4
    s_add_u32 s4, s4, s5
    """)
    for i in range(8):
        a(f"""
        s_add_u32 s5, s28, {i}
        s_and_b32 s5, s5, 7
        s_lshl_b32 s5, s5, 1
        s_add_u32 s5, s5, s4
        s_lshl_b32 s{60+i}, s5, 10
        """)
    a("""
    v_and_b32 v2, 31, v0
    v_lshrrev_b32 v3, 5, v0
    v_lshrrev_b32 v4, 1, v2
    v_and_b32 v4, 7, v4
    v_xor_b32 v4, v4, v3
    v_lshlrev_b32 v4, 4, v4
    v_lshlrev_b32 v5, 7, v2
    v_add_u32 v16, v4, v5
    v_xor_b32 v17, 32, v16
    v_xor_b32 v18, 64, v16
    v_xor_b32 v19, 96, v16
    v_lshrrev_b32 v4, 4, v0
    v_and_b32 v4, 1, v4
    v_lshrrev_b32 v5, 2, v0
    v_and_b32 v5, 3, v5
    v_lshlrev_b32 v6, 3, v3
    v_add_u32 v6, v6, v5
    v_lshlrev_b32 v6, 7, v6
    v_lshlrev_b32 v7, 13, v4
    v_add_u32 v6, v6, v7
    v_lshlrev_b32 v7, 1, v4
    v_lshrrev_b32 v5, 1, v5
    v_add_u32 v7, v7, v5
    v_xor_b32 v7, s24, v7
    v_lshlrev_b32 v7, 5, v7
    v_add_u32 v6, v6, v7
    v_and_b32 v7, 3, v0
    v_lshlrev_b32 v7, 3, v7
    v_add_u32 v6, v6, v7
    v_add_u32 v20, 65536, v6
    s_and_b32 s4, s24, 1
    s_lshl_b32 s4, s4, 1
    v_add_u32 v6, s4, v3
    v_lshlrev_b32 v6, 8, v6
    v_lshlrev_b32 v7, 10, v4
    v_add_u32 v6, v6, v7
    v_and_b32 v7, 15, v0
    v_lshlrev_b32 v7, 4, v7
    v_add_u32 v21, v6, v7
    """)
    ACC = [64, 80, 96, 112, 128]
    XF = 160
    LA = 7
    def minfo(n):
        if n < 160:
            s = n >> 4; ks = (n >> 2) & 3; b = n & 3
            return dict(stage=s, unit=b, ks=ks, wf=4*s+ks, acc=ACC[b], first=(s == 0 and ks == 0), blk=b, last=(n >= 156))
        m = n - 160; u = m >> 2; ks = m & 3
        blk = 4 + u // 10; kk = u % 10
        return dict(stage=10 + (u >> 2), unit=u & 3, ks=ks, wf=4*kk+ks, acc=ACC[4] if blk % 2 == 0 else ACC[0],
                    first=(kk == 0 and ks == 0), blk=blk, last=(kk == 9 and ks == 3))
    epi = []
    def add_epi(blk, acc, n):
        ops = []
        for j in range(8):
            ops.append(("v", f"v_mul_f32 v{acc+j}, v{acc+j}, v{acc+8+j}", acc))
        for d in range(4):
            ops.append(("v", f"v_cvt_pk_bf16_f32 v{acc+8+d}, v{acc+2*d}, v{acc+2*d+1}", acc))
        ops.append(("s", f"buffer_store_dwordx4 {R('v',acc+8)}, v21, s[16:19], s{60+blk} offen {hpol}", blk))
        for o in ops: epi.append((n + 4, o))
    def run_epi(n, cnt):
        while cnt > 0 and epi and epi[0][0] <= n:
            _, (kind, ins, x) = epi.pop(0)
            if kind == "v":
                a.after_mfma(x, 13); a(ins)
            else:
                a.vmi(ins, ("hst", x))
            cnt -= 1
    pend = []
    for n in range(-LA, 320):
        if n >= 0:
            mi = minfo(n)
            needs = [("x", n)]
            if n < 160 and mi["unit"] == 0: needs.append(("w", mi["wf"]))
            a.need(lg=needs)
            acc = mi["acc"]; xf = XF + (n & 7) * 4
            c = "0" if mi["first"] else R("v", acc, 16)
            a.mfma(f"v_mfma_f32_32x32x16_bf16 {R('v',acc,16)}, {R('a',mi['wf']*4)}, {R('v',xf)}, {c}", acc)
            if mi["last"]: add_epi(mi["blk"], acc, n)
            if n == 0: stamp(a, 3, st)
            if n == 159: stamp(a, 4, st)
        nn = n + LA
        if nn < 320:
            mi = minfo(nn)
            if nn % 16 == 0:
                s = nn >> 4
                assert not pend
                a.need(vm=("dma", s))
                a("s_barrier")
                if s == 0: stamp(a, 2, st)
                pend = [(it, s + 2) for it in dma_list(s + 2)]
            slot = mi["stage"] % 4
            if nn < 160 and mi["unit"] == 0:
                for rd in range(2):
                    a.lgi(f"ds_read_b64_tr_b16 {R('a', mi['wf']*4+2*rd, 2)}, v20 offset:{slot*16384 + mi['ks']*2048 + rd*512}", ("w", mi["wf"]))
            a.lgi(f"ds_read_b128 {R('v', XF + (nn & 7)*4)}, v{16+mi['ks']} offset:{slot*16384 + mi['unit']*4096}", ("x", nn))
        if pend and (nn % 2 == 1):
            it, s2_ = pend.pop(0); issue(it, s2_)
        run_epi(n, 2)
    stamp(a, 5, st)
    run_epi(10**9, 10**9)
    a.wait_all()
    stamp(a, 6, st)
    stamps_out(a, 7, st, 0)
    a("L_p1_end:\ns_endpgm")
    return a.text()

def gen_p2_body(a, nb_rows, opt, tagp):
    hpol = opt.get("hldpol", "")
    ACC = 64
    HF = 160
    NS = 14
    def hf(i, rb): return HF + (i % 3) * 24 + rb * 4
    def wf(i, nb): return (i % 2) * 16 + nb * 4
    def loads(i):
        L = []
        for k in range(4):
            pre = f"s_add_u32 m0, s68, {(i%8)*4096}\ns_nop 0" if k == 0 else None
            L.append((pre, f"buffer_load_dwordx4 v{8+k}, s[20:23], s30 offen offset:{1024*k} lds", ("wd", i), None))
        for rb in range(nb_rows):
            v = 12 if rb < 4 else 13
            post = f"s_add_u32 s30, s30, {4*32*1280}\ns_add_u32 s31, s31, {4*128*1024}" if rb == nb_rows - 1 else None
            L.append((None, f"buffer_load_dwordx4 {R('v',hf(i,rb))}, v{v}, s[16:19], s31 offen offset:{1024*(rb%4)} {hpol}", ("h", i, rb), post))
        return L
    def issue(it):
        pre, ins, tag, post = it
        if pre: a(pre)
        a.vmi(ins, tag)
        if post: a(post)
    def trs(i):
        return [(f"ds_read_b64_tr_b16 {R('a', wf(i,nb)+2*rd, 2)}, v{16+nb} offset:{(i%8)*4096 + rd*1024}", ("wf", i, nb)) for nb in range(4) for rd in range(2)]
    for it in loads(0): issue(it)
    for it in loads(1): issue(it)
    a.need(vm=("wd", 0))
    for ins, tag in trs(0): a.lgi(ins, tag)
    for i in range(NS):
        pend = loads(i + 2) if i + 2 < NS else []
        tr = trs(i + 1) if i + 1 < NS else []
        m = 0
        nm = nb_rows * 4
        for rb in range(nb_rows):
            for nb in range(4):
                a.need(vm=("h", i, rb), lg=("wf", i, nb))
                acc = ACC + (rb * 4 + nb) * 4
                c = "0" if i == 0 else R("v", acc)
                a.mfma(f"v_mfma_f32_16x16x32_bf16 {R('v',acc)}, {R('a',wf(i,nb))}, {R('v',hf(i,rb))}, {c}", acc)
                if pend and m % 2 == 0:
                    issue(pend.pop(0))
                if tr and m >= nm - 10:
                    a.need(vm=("wd", i + 1))
                    ins, tag = tr.pop(0); a.lgi(ins, tag)
                m += 1
        while pend: issue(pend.pop(0))
        assert not tr
    stamp(a, 2, opt.get("stamps"))
    for nb in range(1, 4):
        for rb in range(nb_rows):
            acc = ACC + (rb * 4 + nb) * 4
            a.after_mfma(acc, 9)
            a.lgi(f"ds_write_b128 v20, {R('v',acc)} offset:{(nb*6+rb)*1024}", "red")
    a.wait_all(vm=False)
    a("s_barrier")
    for rb in range(nb_rows):
        for nb in range(1, 4):
            acc = ACC + (rb * 4 + nb) * 4
            a.lgi(f"ds_read_b128 {R('v',acc)}, v{20+nb} offset:{(nb*6+rb)*1024}", ("rr", rb, nb))
    for rb in range(nb_rows):
        acc = ACC + rb * 16
        a.after_mfma(acc, 9)
        a.need(lg=("rr", rb, 3))
        for r in range(4):
            a(f"v_add_f32 v{acc+r}, v{acc+r}, v{acc+4+r}")
            a(f"v_add_f32 v{acc+8+r}, v{acc+8+r}, v{acc+12+r}")
        for r in range(4):
            a(f"v_add_f32 v{acc+r}, v{acc+r}, v{acc+8+r}")
        a(f"v_cvt_pk_bf16_f32 v{acc+4}, v{acc}, v{acc+1}")
        a(f"v_cvt_pk_bf16_f32 v{acc+5}, v{acc+2}, v{acc+3}")
        a.vmi(f"buffer_store_dwordx2 {R('v',acc+4,2)}, v24, s[8:11], s32 offen", "ost")
        a("s_add_u32 s32, s32, 20480")

def gen_p2(opt):
    a = SB()
    st = opt.get("stamps", False)
    if st: a("s_memrealtime s[96:97]")
    stamp(a, 0, st)
    a(f"""
    s_load_dwordx4 s[4:7], s[0:1], 24
    s_load_dwordx2 s[72:73], s[0:1], 48
    s_cmp_ge_u32 s2, 256
    s_cbranch_scc1 L_p2_end
    s_and_b32 s3, s2, 7
    s_lshr_b32 s29, s2, 3
    s_lshl_b32 s3, s3, 5
    s_add_u32 s3, s3, s29
    s_cmp_ge_u32 s3, 250
    s_cbranch_scc1 L_p2_end
    s_mul_i32 s25, s3, 205
    s_lshr_b32 s25, s25, 11
    s_mul_i32 s26, s25, 10
    s_sub_u32 s26, s3, s26
    s_mul_i32 s27, s25, 5
    s_cmp_gt_u32 s25, 22
    s_cselect_b32 s28, s25, 22
    s_sub_u32 s28, s28, 22
    s_add_u32 s27, s27, s28
    """)
    a("""
    v_lshrrev_b32 v1, 6, v0
    v_and_b32 v0, 63, v0
    s_nop 0
    v_readfirstlane_b32 s24, v1
    v_lshrrev_b32 v2, 3, v0
    v_and_b32 v3, 7, v0
    v_lshrrev_b32 v4, 4, v0
    v_lshlrev_b32 v5, 1, v4
    v_xor_b32 v5, v5, v3
    v_lshlrev_b32 v5, 4, v5
    v_mul_u32_u24 v6, 1280, v2
    v_add_u32 v8, v5, v6
    """)
    for k in range(1, 4):
        a(f"v_add_u32 v{8+k}, {k*(8*1280-1024)}, v8")
    a("""
    v_lshlrev_b32 v12, 4, v0
    v_add_u32 v13, 4096, v12
    s_lshl_b32 s68, s24, 15
    s_mul_i32 s30, s24, 40960
    s_lshl_b32 s33, s26, 7
    s_add_u32 s30, s30, s33
    s_lshl_b32 s31, s24, 7
    s_add_u32 s31, s31, s27
    s_lshl_b32 s31, s31, 10
    s_mul_i32 s32, s27, 20480
    s_add_u32 s32, s32, s33
    s_lshl_b32 s33, s24, 5
    s_add_u32 s32, s32, s33
    """)
    a("""
    v_lshrrev_b32 v5, 1, v4
    v_lshlrev_b32 v5, 4, v5
    v_and_b32 v6, 1, v4
    v_lshlrev_b32 v7, 2, v6
    v_add_u32 v5, v5, v7
    v_lshrrev_b32 v7, 2, v0
    v_and_b32 v7, 3, v7
    v_add_u32 v5, v5, v7
    v_lshlrev_b32 v5, 7, v5
    v_lshlrev_b32 v6, 1, v6
    v_lshrrev_b32 v7, 1, v7
    v_add_u32 v6, v6, v7
    v_xor_b32 v6, s24, v6
    v_lshlrev_b32 v6, 5, v6
    v_add_u32 v5, v5, v6
    v_and_b32 v6, 3, v0
    v_lshlrev_b32 v6, 3, v6
    v_add_u32 v5, v5, v6
    v_add_u32 v16, s68, v5
    v_xor_b32 v17, 32, v16
    v_xor_b32 v18, 64, v16
    v_xor_b32 v19, 96, v16
    v_add_u32 v20, s68, v12
    v_xor_b32 v21, 0x8000, v20
    v_xor_b32 v22, 0x10000, v20
    v_xor_b32 v23, 0x18000, v20
    v_and_b32 v5, 15, v0
    v_mul_u32_u24 v5, 1280, v5
    v_lshlrev_b32 v6, 3, v4
    v_add_u32 v24, v5, v6
    """)
    a(f"""
    s_waitcnt lgkmcnt(0)
    s_mov_b32 s20, s4
    s_mov_b32 s21, s5
    s_mov_b32 s22, {WB}
    s_mov_b32 s23, 0x00020000
    s_mov_b32 s8, s6
    s_mov_b32 s9, s7
    s_mov_b32 s10, {OB}
    s_mov_b32 s11, 0x00020000
    s_mov_b32 s16, s72
    s_mov_b32 s17, s73
    s_mov_b32 s18, {HB}
    s_mov_b32 s19, 0x00020000
    """)
    stamp(a, 1, st)
    a("s_cmp_ge_u32 s25, 22\ns_cbranch_scc1 L_p2_six")
    b5 = SB(); gen_p2_body(b5, 5, opt, "a"); b5.wait_all(); b5("s_branch L_p2_fin")
    b6 = SB(); gen_p2_body(b6, 6, opt, "b"); b6.wait_all()
    a.lines += b5.lines; a.label("L_p2_six"); a.lines += b6.lines
    a.label("L_p2_fin")
    stamp(a, 3, st)
    stamps_out(a, 4, st, 0x100000)
    a("L_p2_end:\ns_endpgm")
    return a.text()

def gen(opt):
    t = header(["kernel=p1_kernel grid=(256,1,1) block=(256,1,1) lds=131072",
                "kernel=p2_kernel grid=(256,1,1) block=(256,1,1) lds=131072"])
    t += kernel_begin("p1_kernel") + gen_p1(opt)
    t += kernel_begin("p2_kernel") + gen_p2(opt)
    t += kernel_desc("p1_kernel", vgpr=512, accum=256) + kernel_desc("p2_kernel", vgpr=512, accum=256)
    return t

if __name__ == "__main__":
    import json
    opt = json.loads(sys.argv[2]) if len(sys.argv) > 2 else {}
    open(sys.argv[1], "w").write(gen(opt))
```

```python
import sys
from sb import SB
from asmlib import header, kernel_begin, kernel_desc

XB, WB, HB, OB = 2621440, 2211840, 54*128*1024, 2621440
STAMP_OFF = 0x4000000

def R(p, a, n=4): return f"{p}[{a}:{a+n-1}]"

def stamp(a, i, on):
    if on == 2: a(f"s_memrealtime s[{80+2*i}:{81+2*i}]")
    elif on: a(f"s_memtime s[{80+2*i}:{81+2*i}]")

def gen_probe(opt):
    offA, offB, mult = opt["probe"]
    a = SB()
    a("""
    s_cmp_ge_u32 s2, 1
    s_cbranch_scc1 L_pr_end
    s_memrealtime s[10:11]
    s_load_dwordx2 s[4:5], s[0:1], 48
    s_waitcnt lgkmcnt(0)
    """)
    a(f"s_add_u32 s4, s4, {STAMP_OFF}\ns_addc_u32 s5, s5, 0")
    if offA is None: a("s_mov_b32 s6, 0")
    else: a(f"s_load_dword s6, s[4:5], {offA}")
    if offB is None: a("s_mov_b32 s7, s10")
    else: a(f"s_load_dword s7, s[4:5], {offB}")
    a(f"""
    s_waitcnt lgkmcnt(0)
    s_sub_u32 s8, s7, s6
    s_min_u32 s8, s8, 5000
    s_mul_i32 s8, s8, {mult}
    L_pr_loop:
    s_memrealtime s[12:13]
    s_waitcnt lgkmcnt(0)
    s_sub_u32 s9, s12, s10
    s_cmp_lt_u32 s9, s8
    s_cbranch_scc1 L_pr_loop
    L_pr_end:
    s_endpgm
    """)
    return a.text()

def stamps_out(a, nst, on, koff):
    if not on: return
    a(f"""
    s_memrealtime s[98:99]
    s_waitcnt lgkmcnt(0)
    s_load_dwordx2 s[4:5], s[0:1], 48
    s_waitcnt lgkmcnt(0)
    s_mov_b32 s8, s4
    s_mov_b32 s9, s5
    s_mov_b32 s10, 0x10000000
    s_mov_b32 s11, 0x00020000
    s_lshl_b32 s3, s2, 2
    s_add_u32 s3, s3, s24
    s_lshl_b32 s3, s3, 6
    s_add_u32 s3, s3, {STAMP_OFF+koff}
    v_mov_b32 v1, s3
    """)
    for i in range(1, nst):
        a(f"s_sub_u32 s4, s{80+2*i}, s80")
        a(f"v_mov_b32 v2, s4")
        a(f"buffer_store_dword v2, v1, s[8:11], 0 offen offset:{4*i}")
    a(f"v_mov_b32 v2, s96")
    a(f"buffer_store_dword v2, v1, s[8:11], 0 offen offset:56")
    a(f"v_mov_b32 v2, s98")
    a(f"buffer_store_dword v2, v1, s[8:11], 0 offen offset:60")

def gen_p1(opt):
    a = SB()
    st = opt.get("stamps", False)
    rot = opt.get("rot", 0)
    hpol = opt.get("hpol", "")
    ldpol = opt.get("ldpol", "")
    if st: a("s_memrealtime s[96:97]")
    stamp(a, 0, st)
    a(f"""
    s_load_dwordx4 s[4:7], s[0:1], 0
    s_load_dwordx2 s[70:71], s[0:1], 16
    s_load_dwordx2 s[72:73], s[0:1], 48
    s_and_b32 s3, s2, 7
    s_lshr_b32 s29, s2, 3
    s_lshr_b32 s25, s3, 1
    s_cmp_eq_u32 s25, 3
    s_cselect_b32 s26, 24, 28
    s_cmp_ge_u32 s29, s26
    s_cbranch_scc1 L_p1_end
    s_mul_i32 s25, s25, 7
    s_lshr_b32 s27, s29, 2
    s_add_u32 s25, s25, s27
    s_and_b32 s26, s3, 1
    s_lshl_b32 s26, s26, 2
    s_and_b32 s28, s29, 3
    s_add_u32 s26, s26, s28
    """)
    if rot == 0:
        a("s_mov_b32 s27, 0")
    elif rot == 1:
        a("""
        s_mul_i32 s28, s28, 5
        s_lshr_b32 s28, s28, 1
        s_add_u32 s27, s27, s28
        s_cmp_ge_u32 s27, 10
        s_cselect_b32 s28, 10, 0
        s_sub_u32 s27, s27, s28
        """)
    if opt.get("browrot", 1):
        a("s_mul_i32 s28, s25, 19\ns_lshr_b32 s28, s28, 6")
    else:
        a("s_mov_b32 s28, 0")
    a("""
    v_lshrrev_b32 v1, 6, v0
    v_and_b32 v0, 63, v0
    s_nop 0
    v_readfirstlane_b32 s24, v1
    v_lshrrev_b32 v2, 3, v0
    v_and_b32 v3, 7, v0
    v_lshrrev_b32 v4, 4, v0
    """)
    for k in range(4):
        a(f"""
        v_add_u32 v5, {4*k}, v4
        v_and_b32 v5, 7, v5
        v_xor_b32 v5, v5, v3
        v_lshlrev_b32 v5, 4, v5
        v_mul_u32_u24 v6, 1280, v2
        v_add_u32 v5, v5, v6
        v_add_u32 v{8+k}, {k*(8*1280-1024)}, v5
        """)
    a("""
    s_lshr_b32 s74, s24, 1
    s_lshl_b32 s74, s74, 1
    v_and_b32 v5, 1, v4
    v_add_u32 v5, s74, v5
    v_lshlrev_b32 v5, 1, v5
    v_xor_b32 v5, v5, v3
    v_lshlrev_b32 v5, 4, v5
    v_mul_u32_u24 v6, 3456, v2
    v_add_u32 v12, v5, v6
    """)
    for k in range(1, 4):
        a(f"v_add_u32 v{12+k}, {k*(8*3456-1024)}, v12")
    a("""
    s_lshl_b32 s75, s26, 3
    s_add_u32 s76, s28, s24
    s_and_b32 s76, s76, 7
    s_add_u32 s76, s76, s75
    s_mul_i32 s76, s76, 40960
    s_and_b32 s77, s24, 1
    s_mul_i32 s77, s77, 110592
    s_lshl_b32 s78, s25, 7
    s_add_u32 s77, s77, s78
    s_lshl_b32 s68, s24, 12
    s_add_u32 s69, s68, 65536
    """)
    def tabA(kk):
        a(f"""
        s_add_u32 s78, s27, {kk}
        s_cmp_ge_u32 s78, 10
        s_cselect_b32 s79, 10, 0
        s_sub_u32 s78, s78, s79
        s_lshl_b32 s79, s78, 7
        s_add_u32 s{30+kk}, s76, s79
        s_mul_i32 s79, s78, 221184
        s_add_u32 s{40+kk}, s77, s79
        """)
    tabA(0); tabA(1)
    a(f"""
    s_waitcnt lgkmcnt(0)
    s_mov_b32 s8, s4
    s_mov_b32 s9, s5
    s_mov_b32 s10, {XB}
    s_mov_b32 s11, 0x00020000
    s_cmp_ge_u32 s24, 2
    s_cselect_b32 s12, s70, s6
    s_cselect_b32 s13, s71, s7
    s_mov_b32 s14, {WB}
    s_mov_b32 s15, 0x00020000
    s_mov_b32 s16, s72
    s_mov_b32 s17, s73
    s_mov_b32 s18, {HB}
    s_mov_b32 s19, 0x00020000
    """)
    stamp(a, 1, st)
    def dma_list(s):
        L = []
        slot = s % 4
        if s < 10:
            for k in range(4):
                pre = f"s_add_u32 m0, s69, {slot*16384}\ns_nop 0" if k == 0 else None
                L.append((pre, f"buffer_load_dwordx4 v{12+k}, s[12:15], s{40+s} offen offset:{1024*k} {ldpol} lds"))
        if s < 20:
            so = 30 + s if s < 10 else 50 + s - 10
            for k in range(4):
                pre = f"s_add_u32 m0, s68, {slot*16384}\ns_nop 0" if k == 0 else None
                L.append((pre, f"buffer_load_dwordx4 v{8+k}, s[8:11], s{so} offen offset:{1024*k} {ldpol} lds"))
        return L
    def issue(item, s):
        pre, ins = item
        if pre: a(pre)
        a.vmi(ins, ("dma", s))
    for it in dma_list(0): issue(it, 0)
    for it in dma_list(1): issue(it, 1)
    for kk in range(2, 10): tabA(kk)
    a("s_mov_b32 s78, s24\ns_mov_b32 s79, 4")
    for q in range(10):
        a(f"""
        s_add_u32 s4, s78, s27
        s_cmp_ge_u32 s4, 10
        s_cselect_b32 s5, 10, 0
        s_sub_u32 s4, s4, s5
        s_lshl_b32 s4, s4, 7
        s_add_u32 s5, s79, s28
        s_and_b32 s5, s5, 7
        s_add_u32 s5, s5, s75
        s_mul_i32 s5, s5, 40960
        s_add_u32 s{50+q}, s4, s5
        s_add_u32 s78, s78, 4
        s_cmp_ge_u32 s78, 10
        s_cselect_b32 s4, 10, 0
        s_cselect_b32 s5, 1, 0
        s_sub_u32 s78, s78, s4
        s_add_u32 s79, s79, s5
        """)
    a("""
    s_lshr_b32 s4, s24, 1
    s_lshl_b32 s5, s25, 1
    s_add_u32 s4, s4, s5
    s_lshl_b32 s4, s4, 7
    s_lshl_b32 s5, s26, 4
    s_add_u32 s4, s4, s5
    """)
    for i in range(8):
        a(f"""
        s_add_u32 s5, s28, {i}
        s_and_b32 s5, s5, 7
        s_lshl_b32 s5, s5, 1
        s_add_u32 s5, s5, s4
        s_lshl_b32 s{60+i}, s5, 10
        """)
    a("""
    v_and_b32 v2, 31, v0
    v_lshrrev_b32 v3, 5, v0
    v_lshrrev_b32 v4, 1, v2
    v_and_b32 v4, 7, v4
    v_xor_b32 v4, v4, v3
    v_lshlrev_b32 v4, 4, v4
    v_lshlrev_b32 v5, 7, v2
    v_add_u32 v16, v4, v5
    v_xor_b32 v17, 32, v16
    v_xor_b32 v18, 64, v16
    v_xor_b32 v19, 96, v16
    v_lshrrev_b32 v4, 4, v0
    v_and_b32 v4, 1, v4
    v_lshrrev_b32 v5, 2, v0
    v_and_b32 v5, 3, v5
    v_lshlrev_b32 v6, 3, v3
    v_add_u32 v6, v6, v5
    v_lshlrev_b32 v6, 7, v6
    v_lshlrev_b32 v7, 13, v4
    v_add_u32 v6, v6, v7
    v_lshlrev_b32 v7, 1, v4
    v_lshrrev_b32 v5, 1, v5
    v_add_u32 v7, v7, v5
    v_xor_b32 v7, s24, v7
    v_lshlrev_b32 v7, 5, v7
    v_add_u32 v6, v6, v7
    v_and_b32 v7, 3, v0
    v_lshlrev_b32 v7, 3, v7
    v_add_u32 v6, v6, v7
    v_add_u32 v20, 65536, v6
    s_and_b32 s4, s24, 1
    s_lshl_b32 s4, s4, 1
    v_add_u32 v6, s4, v3
    v_lshlrev_b32 v6, 8, v6
    v_lshlrev_b32 v7, 10, v4
    v_add_u32 v6, v6, v7
    v_and_b32 v7, 15, v0
    v_lshlrev_b32 v7, 4, v7
    v_add_u32 v21, v6, v7
    """)
    ACC = [64, 80, 96, 112, 128]
    XF = 160
    LA = 7
    def minfo(n):
        if n < 160:
            s = n >> 4; ks = (n >> 2) & 3; b = n & 3
            return dict(stage=s, unit=b, ks=ks, wf=4*s+ks, acc=ACC[b], first=(s == 0 and ks == 0), blk=b, last=(n >= 156))
        m = n - 160; u = m >> 2; ks = m & 3
        blk = 4 + u // 10; kk = u % 10
        return dict(stage=10 + (u >> 2), unit=u & 3, ks=ks, wf=4*kk+ks, acc=ACC[4] if blk % 2 == 0 else ACC[0],
                    first=(kk == 0 and ks == 0), blk=blk, last=(kk == 9 and ks == 3))
    epi = []
    def add_epi(blk, acc, n):
        ops = []
        for j in range(8):
            ops.append(("v", f"v_mul_f32 v{acc+j}, v{acc+j}, v{acc+8+j}", acc))
        for d in range(4):
            ops.append(("v", f"v_cvt_pk_bf16_f32 v{acc+8+d}, v{acc+2*d}, v{acc+2*d+1}", acc))
        ops.append(("s", f"buffer_store_dwordx4 {R('v',acc+8)}, v21, s[16:19], s{60+blk} offen {hpol}", blk))
        for o in ops: epi.append((n + 4, o))
    def run_epi(n, cnt):
        while cnt > 0 and epi and epi[0][0] <= n:
            _, (kind, ins, x) = epi.pop(0)
            if kind == "v":
                a.after_mfma(x, 13); a(ins)
            else:
                a.vmi(ins, ("hst", x))
            cnt -= 1
    pend = []
    for n in range(-LA, 320):
        if n >= 0:
            mi = minfo(n)
            needs = [("x", n)]
            if n < 160 and mi["unit"] == 0: needs.append(("w", mi["wf"]))
            a.need(lg=needs)
            acc = mi["acc"]; xf = XF + (n & 7) * 4
            c = "0" if mi["first"] else R("v", acc, 16)
            a.mfma(f"v_mfma_f32_32x32x16_bf16 {R('v',acc,16)}, {R('a',mi['wf']*4)}, {R('v',xf)}, {c}", acc)
            if mi["last"]: add_epi(mi["blk"], acc, n)
            if n == 0: stamp(a, 3, st)
            if n == 159: stamp(a, 4, st)
        nn = n + LA
        if nn < 320:
            mi = minfo(nn)
            if nn % 16 == 0:
                s = nn >> 4
                assert not pend
                a.need(vm=("dma", s))
                a("s_barrier")
                if s == 0: stamp(a, 2, st)
                pend = [(it, s + 2) for it in dma_list(s + 2)]
            slot = mi["stage"] % 4
            if nn < 160 and mi["unit"] == 0:
                for rd in range(2):
                    a.lgi(f"ds_read_b64_tr_b16 {R('a', mi['wf']*4+2*rd, 2)}, v20 offset:{slot*16384 + mi['ks']*2048 + rd*512}", ("w", mi["wf"]))
            a.lgi(f"ds_read_b128 {R('v', XF + (nn & 7)*4)}, v{16+mi['ks']} offset:{slot*16384 + mi['unit']*4096}", ("x", nn))
        if pend and (nn % 2 == 1):
            it, s2_ = pend.pop(0); issue(it, s2_)
        run_epi(n, 2)
    stamp(a, 5, st)
    run_epi(10**9, 10**9)
    a.wait_all()
    stamp(a, 6, st)
    stamps_out(a, 7, st, 0)
    a("L_p1_end:\ns_endpgm")
    return a.text()

def gen_p2_body(a, nb_rows, opt, tagp):
    hpol = opt.get("hldpol", "")
    ACC = 64
    HF = 160
    NS = 14
    def hf(i, rb): return HF + (i % 3) * 24 + rb * 4
    def wf(i, nb): return (i % 2) * 16 + nb * 4
    def loads(i):
        L = []
        for k in range(4):
            pre = f"s_add_u32 m0, s68, {(i%8)*4096}\ns_nop 0" if k == 0 else None
            L.append((pre, f"buffer_load_dwordx4 v{8+k}, s[20:23], s30 offen offset:{1024*k} lds", ("wd", i), None))
        for rb in range(nb_rows):
            v = 12 if rb < 4 else 13
            post = f"s_add_u32 s30, s30, {4*32*1280}\ns_add_u32 s31, s31, {4*128*1024}" if rb == nb_rows - 1 else None
            L.append((None, f"buffer_load_dwordx4 {R('v',hf(i,rb))}, v{v}, s[16:19], s31 offen offset:{1024*(rb%4)} {hpol}", ("h", i, rb), post))
        return L
    def issue(it):
        pre, ins, tag, post = it
        if pre: a(pre)
        a.vmi(ins, tag)
        if post: a(post)
    def trs(i):
        return [(f"ds_read_b64_tr_b16 {R('a', wf(i,nb)+2*rd, 2)}, v{16+nb} offset:{(i%8)*4096 + rd*1024}", ("wf", i, nb)) for nb in range(4) for rd in range(2)]
    for it in loads(0): issue(it)
    for it in loads(1): issue(it)
    a.need(vm=("wd", 0))
    for ins, tag in trs(0): a.lgi(ins, tag)
    for i in range(NS):
        pend = loads(i + 2) if i + 2 < NS else []
        tr = trs(i + 1) if i + 1 < NS else []
        m = 0
        nm = nb_rows * 4
        for rb in range(nb_rows):
            for nb in range(4):
                a.need(vm=("h", i, rb), lg=("wf", i, nb))
                acc = ACC + (rb * 4 + nb) * 4
                c = "0" if i == 0 else R("v", acc)
                a.mfma(f"v_mfma_f32_16x16x32_bf16 {R('v',acc)}, {R('a',wf(i,nb))}, {R('v',hf(i,rb))}, {c}", acc)
                if pend and m % 2 == 0:
                    issue(pend.pop(0))
                if tr and m >= nm - 10:
                    a.need(vm=("wd", i + 1))
                    ins, tag = tr.pop(0); a.lgi(ins, tag)
                m += 1
        while pend: issue(pend.pop(0))
        assert not tr
    stamp(a, 2, opt.get("stamps"))
    for nb in range(1, 4):
        for rb in range(nb_rows):
            acc = ACC + (rb * 4 + nb) * 4
            a.after_mfma(acc, 9)
            a.lgi(f"ds_write_b128 v20, {R('v',acc)} offset:{(nb*6+rb)*1024}", "red")
    a.wait_all(vm=False)
    a("s_barrier")
    for rb in range(nb_rows):
        for nb in range(1, 4):
            acc = ACC + (rb * 4 + nb) * 4
            a.lgi(f"ds_read_b128 {R('v',acc)}, v{20+nb} offset:{(nb*6+rb)*1024}", ("rr", rb, nb))
    for rb in range(nb_rows):
        acc = ACC + rb * 16
        a.after_mfma(acc, 9)
        a.need(lg=("rr", rb, 3))
        for r in range(4):
            a(f"v_add_f32 v{acc+r}, v{acc+r}, v{acc+4+r}")
            a(f"v_add_f32 v{acc+8+r}, v{acc+8+r}, v{acc+12+r}")
        for r in range(4):
            a(f"v_add_f32 v{acc+r}, v{acc+r}, v{acc+8+r}")
        a(f"v_cvt_pk_bf16_f32 v{acc+4}, v{acc}, v{acc+1}")
        a(f"v_cvt_pk_bf16_f32 v{acc+5}, v{acc+2}, v{acc+3}")
        a.vmi(f"buffer_store_dwordx2 {R('v',acc+4,2)}, v24, s[8:11], s32 offen", "ost")
        a("s_add_u32 s32, s32, 20480")

def gen_p2(opt):
    a = SB()
    st = opt.get("stamps", False)
    if st: a("s_memrealtime s[96:97]")
    stamp(a, 0, st)
    a(f"""
    s_load_dwordx4 s[4:7], s[0:1], 24
    s_load_dwordx2 s[72:73], s[0:1], 48
    s_cmp_ge_u32 s2, 256
    s_cbranch_scc1 L_p2_end
    s_and_b32 s3, s2, 7
    s_lshr_b32 s29, s2, 3
    s_lshl_b32 s3, s3, 5
    s_add_u32 s3, s3, s29
    s_cmp_ge_u32 s3, 250
    s_cbranch_scc1 L_p2_end
    s_mul_i32 s25, s3, 205
    s_lshr_b32 s25, s25, 11
    s_mul_i32 s26, s25, 10
    s_sub_u32 s26, s3, s26
    s_mul_i32 s27, s25, 5
    s_cmp_gt_u32 s25, 22
    s_cselect_b32 s28, s25, 22
    s_sub_u32 s28, s28, 22
    s_add_u32 s27, s27, s28
    """)
    a("""
    v_lshrrev_b32 v1, 6, v0
    v_and_b32 v0, 63, v0
    s_nop 0
    v_readfirstlane_b32 s24, v1
    v_lshrrev_b32 v2, 3, v0
    v_and_b32 v3, 7, v0
    v_lshrrev_b32 v4, 4, v0
    v_lshlrev_b32 v5, 1, v4
    v_xor_b32 v5, v5, v3
    v_lshlrev_b32 v5, 4, v5
    v_mul_u32_u24 v6, 1280, v2
    v_add_u32 v8, v5, v6
    """)
    for k in range(1, 4):
        a(f"v_add_u32 v{8+k}, {k*(8*1280-1024)}, v8")
    a("""
    v_lshlrev_b32 v12, 4, v0
    v_add_u32 v13, 4096, v12
    s_lshl_b32 s68, s24, 15
    s_mul_i32 s30, s24, 40960
    s_lshl_b32 s33, s26, 7
    s_add_u32 s30, s30, s33
    s_lshl_b32 s31, s24, 7
    s_add_u32 s31, s31, s27
    s_lshl_b32 s31, s31, 10
    s_mul_i32 s32, s27, 20480
    s_add_u32 s32, s32, s33
    s_lshl_b32 s33, s24, 5
    s_add_u32 s32, s32, s33
    """)
    a("""
    v_lshrrev_b32 v5, 1, v4
    v_lshlrev_b32 v5, 4, v5
    v_and_b32 v6, 1, v4
    v_lshlrev_b32 v7, 2, v6
    v_add_u32 v5, v5, v7
    v_lshrrev_b32 v7, 2, v0
    v_and_b32 v7, 3, v7
    v_add_u32 v5, v5, v7
    v_lshlrev_b32 v5, 7, v5
    v_lshlrev_b32 v6, 1, v6
    v_lshrrev_b32 v7, 1, v7
    v_add_u32 v6, v6, v7
    v_xor_b32 v6, s24, v6
    v_lshlrev_b32 v6, 5, v6
    v_add_u32 v5, v5, v6
    v_and_b32 v6, 3, v0
    v_lshlrev_b32 v6, 3, v6
    v_add_u32 v5, v5, v6
    v_add_u32 v16, s68, v5
    v_xor_b32 v17, 32, v16
    v_xor_b32 v18, 64, v16
    v_xor_b32 v19, 96, v16
    v_add_u32 v20, s68, v12
    v_xor_b32 v21, 0x8000, v20
    v_xor_b32 v22, 0x10000, v20
    v_xor_b32 v23, 0x18000, v20
    v_and_b32 v5, 15, v0
    v_mul_u32_u24 v5, 1280, v5
    v_lshlrev_b32 v6, 3, v4
    v_add_u32 v24, v5, v6
    """)
    a(f"""
    s_waitcnt lgkmcnt(0)
    s_mov_b32 s20, s4
    s_mov_b32 s21, s5
    s_mov_b32 s22, {WB}
    s_mov_b32 s23, 0x00020000
    s_mov_b32 s8, s6
    s_mov_b32 s9, s7
    s_mov_b32 s10, {OB}
    s_mov_b32 s11, 0x00020000
    s_mov_b32 s16, s72
    s_mov_b32 s17, s73
    s_mov_b32 s18, {HB}
    s_mov_b32 s19, 0x00020000
    """)
    stamp(a, 1, st)
    a("s_cmp_ge_u32 s25, 22\ns_cbranch_scc1 L_p2_six")
    b5 = SB(); gen_p2_body(b5, 5, opt, "a"); b5.wait_all(); b5("s_branch L_p2_fin")
    b6 = SB(); gen_p2_body(b6, 6, opt, "b"); b6.wait_all()
    a.lines += b5.lines; a.label("L_p2_six"); a.lines += b6.lines
    a.label("L_p2_fin")
    stamp(a, 3, st)
    stamps_out(a, 4, st, 0x10000)
    a("L_p2_end:\ns_endpgm")
    return a.text()

def gen(opt):
    LL = ["kernel=p1_kernel grid=(256,1,1) block=(256,1,1) lds=131072",
                "kernel=p2_kernel grid=(256,1,1) block=(256,1,1) lds=131072"]
    if "probe" in opt: LL.append("kernel=pr_kernel grid=(1,1,1) block=(64,1,1) lds=0")
    t = header(LL)
    t += kernel_begin("p1_kernel") + gen_p1(opt)
    t += kernel_begin("p2_kernel") + gen_p2(opt)
    if "probe" in opt:
        t += kernel_begin("pr_kernel") + gen_probe(opt) + kernel_desc("pr_kernel", vgpr=8, accum=8)
    t += kernel_desc("p1_kernel", vgpr=512, accum=256) + kernel_desc("p2_kernel", vgpr=512, accum=256)
    return t

if __name__ == "__main__":
    import json
    opt = json.loads(sys.argv[2]) if len(sys.argv) > 2 else {}
    open(sys.argv[1], "w").write(gen(opt))
```

```python
class SB:
    def __init__(self):
        self.lines = []
        self.n = 0
        self.vm = []
        self.vm_done = 0
        self.lg = []
        self.lg_done = 0
        self.mfma_w = {}
        self.lab = 0
    def raw(self, s):
        self.lines.append(s)
    def label(self, name):
        self.lines.append(name + ":")
    def c(self, s):
        self.lines.append("    ; " + s)
    def __call__(self, s):
        for l in s.split("\n"):
            l = l.strip()
            if not l: continue
            if l.endswith(":"):
                self.lines.append(l); continue
            self.lines.append("    " + l)
            if l.startswith(";"): continue
            if l.startswith("s_nop"):
                self.n += int(l.split()[1], 0) + 1
            else:
                self.n += 1
    def vmi(self, s, tag=None):
        self(s); self.vm.append(tag)
    def alias(self, tag):
        if not hasattr(self, "al"): self.al = {}
        self.al[tag] = len(self.vm) - 1
    def vm_covered(self, tag):
        return self._idx(self.vm, tag) < self.vm_done
    def _idx(self, q, tag):
        if q is self.vm and tag in getattr(self, "al", {}): return self.al[tag]
        idx = [i for i, t in enumerate(q) if t == tag]
        assert idx, f"tag {tag} never issued"
        return idx[-1]
    def need(self, vm=None, lg=None):
        parts = []
        if vm is not None:
            tags = vm if isinstance(vm, list) else [vm]
            i = max(self._idx(self.vm, t) for t in tags)
            if i + 1 > self.vm_done:
                n = len(self.vm) - 1 - i
                n = min(n, 63)
                parts.append(f"vmcnt({n})")
                self.vm_done = len(self.vm) - n
        if lg is not None:
            tags = lg if isinstance(lg, list) else [lg]
            i = max(self._idx(self.lg, t) for t in tags)
            if i + 1 > self.lg_done:
                n = len(self.lg) - 1 - i
                n = min(n, 15)
                parts.append(f"lgkmcnt({n})")
                self.lg_done = len(self.lg) - n
        if parts:
            self("s_waitcnt " + " ".join(parts))
    def wait_all(self, vm=True, lg=True):
        parts = []
        if vm: parts.append("vmcnt(0)"); self.vm_done = len(self.vm)
        if lg: parts.append("lgkmcnt(0)"); self.lg_done = len(self.lg)
        self("s_waitcnt " + " ".join(parts))
    def lgi(self, s, tag=None):
        self(s); self.lg.append(tag)
    def mfma(self, s, acc):
        self(s); self.mfma_w[acc] = self.n
    def after_mfma(self, acc, states):
        d = self.n - self.mfma_w[acc]
        if d < states:
            k = states - d
            while k > 0:
                m = min(k, 16)
                self(f"s_nop {m-1}"); k -= m
    def text(self):
        return "\n".join(self.lines) + "\n"
```

```python
import sys
from sb import SB
from asmlib import header, kernel_begin, kernel_desc, KNAME

XB, WB, HB, OB = 2621440, 2211840, 54*128*1024, 2621440
FLAG_OFF, FLAG_B = 0x800000, 8*27*640
STAMP_OFF = 0x4000000
OOBV = 0x7ff00000

def R(p, a, n=4): return f"{p}[{a}:{a+n-1}]"
def RR(r, n=4): return R(r[0], r[1], n)
def off(r, k): return (r[0], r[1] + k)

sX, sW, sH, sD, sO, sF, sG = "s[8:11]", "s[12:15]", "s[16:19]", "s[20:23]", "s[24:27]", "s[28:31]", "s[32:35]"
S_W, S_C, S_RG, S_SC, S_K0 = 36, 37, 38, 39, 40
S_RB0, S_N, S_T0 = 41, 42, 43
S_MX, S_MW = 44, 45
S_XSO, S_WSO, S_HSO, S_HLD = 46, 47, 48, 49
S_NON = 50
S_TO = 52
S_OSO = 53
S_J, S_XCD = 54, 55
S_OLAST = 56
S_HL = 57
S_HS8 = 82
S_FB = 64
T0, T1, T2, T3 = 60, 61, 62, 63
V_XD, V_WD, V_XR, V_WR, V_HS = 8, 12, 16, 20, 21
V_TX, V_TW, V_TH = 22, 23, 24
V_FO, V_F, V_FS, V_NON = 25, 26, 28, 29
V_HL0, V_HL1 = 30, 31
V_DR = 4

class G:
    def __init__(self, opt):
        self.opt = opt
        self.st = opt.get("stamps", 0)
        self.slow = []
        self.trn = []
        self.sm = {0: 0, 2: 1, 4: 2, 5: 3, 7: 4, 8: 5}
        self.VTR = 255
    def stamp(self, a, i):
        if self.st == 2: a(f"s_memrealtime s[{70+2*self.sm[i]}:{71+2*self.sm[i]}]") if i in self.sm else None
        elif self.st: a(f"s_memtime s[{70+2*self.sm[i]}:{71+2*self.sm[i]}]") if i in self.sm else None

    def tr(self, a, name):
        if not self.opt.get("trace"): return
        i = len(self.trn)
        p = 90 + 2 * (i % 3)
        if i >= 2:
            a(f"v_writelane_b32 v{self.VTR}, s{90 + 2 * ((i - 2) % 3)}, {i-2}")
        a(f"{'s_memrealtime' if self.opt.get('trace') == 2 else 's_memtime'} s[{p}:{p+1}]")
        self.trn.append(name)
    def tr_out(self, a):
        if not self.opt.get("trace"): return
        n = len(self.trn)
        a("s_waitcnt lgkmcnt(0)")
        for i in (n - 2, n - 1):
            a(f"v_writelane_b32 v{self.VTR}, s{90 + 2 * (i % 3)}, {i}")
        a(f"""
        s_mov_b32 s16, s68
        s_mov_b32 s17, s69
        s_mov_b32 s18, 0x10000000
        s_mov_b32 s19, 0x00020000
        s_lshl_b32 s3, s2, 2
        s_add_u32 s3, s3, s{S_W}
        s_lshl_b32 s3, s3, 8
        s_add_u32 s3, s3, {STAMP_OFF + 0x100000}
        v_lshlrev_b32 v1, 2, v0
        buffer_store_dword v{self.VTR}, v1, s[16:19], s3 offen
        """)
    def stamps_out(self, a, nst):
        if not self.st: return
        a(f"""
        s_memrealtime s[98:99]
        s_waitcnt lgkmcnt(0)
        s_load_dwordx2 s[4:5], s[0:1], 48
        s_waitcnt lgkmcnt(0)
        s_mov_b32 s8, s4
        s_mov_b32 s9, s5
        s_mov_b32 s10, 0x10000000
        s_mov_b32 s11, 0x00020000
        s_lshl_b32 s3, s2, 2
        s_add_u32 s3, s3, s{S_W}
        s_lshl_b32 s3, s3, 6
        s_add_u32 s3, s3, {STAMP_OFF}
        v_mov_b32 v1, s3
        """)
        for i in range(1, nst):
            a(f"s_sub_u32 s4, s{70+2*i}, s70")
            a(f"v_mov_b32 v2, s4")
            a(f"buffer_store_dword v2, v1, s[8:11], 0 offen offset:{4*i}")
        a(f"v_mov_b32 v2, s{S_TO}")
        a(f"buffer_store_dword v2, v1, s[8:11], 0 offen offset:52")
        a(f"v_mov_b32 v2, s96")
        a(f"buffer_store_dword v2, v1, s[8:11], 0 offen offset:56")
        a(f"v_mov_b32 v2, s98")
        a(f"buffer_store_dword v2, v1, s[8:11], 0 offen offset:60")

    def p2_setup(self, a, nblk, ldsbase_shift):
        a(f"""
        s_lshr_b32 s{T0}, s{S_RB0}, 1
        s_add_u32 s{T1}, s{S_RB0}, {nblk-1}
        s_lshr_b32 s{T1}, s{T1}, 1
        s_and_b32 s{T2}, s{T0}, 7
        s_mul_i32 s{T2}, s{T2}, 27
        s_add_u32 s{T2}, s{T2}, {27+7-8}
        s_lshr_b32 s{T2}, s{T2}, 3
        s_lshr_b32 s{T3}, s{S_W}, 1
        s_sub_u32 s{T2}, s{T2}, s{T3}
        """)
        if not self.opt.get("browrot", 1):
            a(f"s_sub_u32 s{T2}, 26, s{T3}")
        a(f"""
        v_lshrrev_b32 v1, 1, v0
        v_lshlrev_b32 v1, 1, v1
        s_add_u32 s{T3}, s{T2}, 27
        v_sub_u32 v1, s{T3}, v1
        v_subrev_u32 v2, 27, v1
        v_min_u32 v1, v1, v2
        """)
        if self.opt.get("browrot", 1):
            a("v_mul_u32_u24 v2, 19, v1\nv_lshrrev_b32 v2, 6, v2")
        else:
            a("v_mov_b32 v2, 0")
        a(f"""
        s_lshr_b32 s4, s{T0}, 3
        s_lshr_b32 s5, s{T1}, 3
        s_and_b32 s6, s{T0}, 7
        s_and_b32 s7, s{T1}, 7
        s_cmp_eq_u32 s4, s5
        s_cselect_b32 s{T0}, s7, 7
        s_cselect_b32 s{T1}, s6, 0
        v_and_b32 v3, 1, v0
        v_cmp_eq_u32 vcc, 1, v3
        v_mov_b32 v3, s6
        v_mov_b32 v{V_F}, s{T1}
        v_cndmask_b32 v3, v3, v{V_F}, vcc
        v_sub_u32 v3, v3, v2
        v_and_b32 v3, 7, v3
        v_mov_b32 v{V_FO}, s{T0}
        v_mov_b32 v{V_F}, s7
        v_cndmask_b32 v{V_FO}, v{V_FO}, v{V_F}, vcc
        v_sub_u32 v{V_FO}, v{V_FO}, v2
        v_and_b32 v{V_FO}, 7, v{V_FO}
        v_mov_b32 v2, s4
        v_mov_b32 v{V_F}, s5
        v_cndmask_b32 v2, v2, v{V_F}, vcc
        v_cmp_ge_u32 vcc, v{V_FO}, v3
        v_mul_u32_u24 v2, 27, v2
        v_add_u32 v2, v2, v1
        v_cndmask_b32 v3, 7, v{V_FO}, vcc
        v_max_u32 v3, 3, v3
        v_subrev_u32 v3, 3, v3
        v_mul_u32_u24 v2, 640, v2
        s_and_b32 s4, s{S_W}, 1
        v_lshl_add_u32 v{V_FO}, v3, 7, v2
        v_mov_b32 v{V_F}, 0
        """)
        a(f"""
        s_lshl_b32 s{T2}, s{T2}, 1
        s_add_u32 s{T2}, s{T2}, s4
        s_add_u32 s{T2}, s{T2}, {54+40}
        v_lshlrev_b32 v1, 2, v0
        v_sub_u32 v1, s{T2}, v1
        v_subrev_u32 v2, 54, v1
        v_min_u32 v1, v1, v2
        s_cmp_ge_u32 s{S_W}, 2
        s_cselect_b32 s4, 23, 99
        v_cmp_eq_u32 vcc, s4, v0
        s_mov_b32 s5, 40960
        s_lshl_b32 s6, s{S_N}, 7
        s_lshl_b32 s7, s{S_RB0}, 10
        v_mul_lo_u32 v2, v1, s5
        v_add_u32 v2, s6, v2
        v_lshlrev_b32 v3, 17, v1
        v_add_u32 v3, s7, v3
        v_mov_b32 v1, {WB}
        v_cndmask_b32 v2, v2, v1, vcc
        v_mov_b32 v1, {HB}
        v_cndmask_b32 v3, v3, v1, vcc
        v_cmp_le_u32 vcc, 10, v0
        s_nop 1
        v_cndmask_b32 v{V_TW}, v{V_TW}, v2, vcc
        v_cndmask_b32 v{V_TH}, v{V_TH}, v3, vcc
        """)
        a(f"""
        v_lshlrev_b32 v{V_HL0}, 4, v0
        v_add_u32 v{V_HL1}, 4096, v{V_HL0}
        s_mul_i32 s{S_OSO}, s{S_RB0}, 20480
        s_add_u32 s{S_OSO}, s{S_OSO}, s6
        """)

    def wd_addr_ops(self, base_expr_sgpr):
        L = f"""
        v_lshrrev_b32 v1, 5, v0
        v_lshlrev_b32 v1, 4, v1
        v_bfe_u32 v2, v0, 2, 3
        v_add_u32 v1, v1, v2
        v_lshlrev_b32 v1, 7, v1
        v_lshrrev_b32 v2, 1, v2
        v_lshlrev_b32 v2, 5, v2
        v_and_b32 v3, 3, v0
        v_lshlrev_b32 v3, 3, v3
        v_add3_u32 v1, v1, v2, v3
        v_add_u32 v{V_DR}, s{base_expr_sgpr}, v1
        v_xor_b32 v{V_DR+1}, 32, v{V_DR}
        v_xor_b32 v{V_DR+2}, 64, v{V_DR}
        v_xor_b32 v{V_DR+3}, 96, v{V_DR}
        """
        M = f"""
        v_lshrrev_b32 v1, 4, v0
        v_lshlrev_b32 v1, 1, v1
        v_and_b32 v2, 7, v0
        v_xor_b32 v1, v1, v2
        v_lshlrev_b32 v1, 4, v1
        v_lshrrev_b32 v2, 3, v0
        v_mul_u32_u24 v2, 1280, v2
        v_add_u32 v{V_WD}, v1, v2
        v_add_u32 v{V_WD+1}, {8*1280-1024}, v{V_WD}
        v_add_u32 v{V_WD+2}, {2*(8*1280-1024)}, v{V_WD}
        v_add_u32 v{V_WD+3}, {3*(8*1280-1024)}, v{V_WD}
        """
        f = lambda s: [x.strip() for x in s.split("\n") if x.strip()]
        return f(L), f(M)

    def poll(self, a, slots):
        m = 0
        for i in slots: m |= 3 << (2 * i)
        a(f"s_mov_b64 exec, {m:#x}")
        a.vmi(f"buffer_load_dword v{V_F}, v{V_FO}, {sF}, 0 offen sc1", None)
        for x in slots: a.alias(("poll", x))
        a("s_mov_b64 exec, -1")
    def check(self, a, i, tag, uid):
        m = 3 << (2 * i)
        a.need(vm=tag)
        a(f"L_chk_{uid}_{i}:")
        a(f"v_cmp_eq_u32 vcc, s{S_NON}, v{V_F}")
        a(f"s_andn2_b32 s{T0}, {m:#x}, vcc_lo")
        if not self.opt.get("nochk"): a(f"s_cbranch_scc1 L_slow_{uid}_{i}")
        a(f"L_ok_{uid}_{i}:")
        self.slow.append(f"""
        L_slow_{uid}_{i}:
        s_cmp_eq_u32 s{S_TO}, 0
        s_cbranch_scc1 L_ok_{uid}_{i}
        s_sub_u32 s{S_TO}, s{S_TO}, 1
        s_sleep {self.opt.get("sleepf", 8) if uid == "f" and i < 6 else self.opt.get("sleepn", 1)}
        s_mov_b64 exec, {(0x3f << (2*i)) & 0xfffffff:#x}
        buffer_load_dword v{V_F}, v{V_FO}, {sF}, 0 offen sc1
        s_mov_b64 exec, -1
        s_waitcnt vmcnt(0)
        s_branch L_chk_{uid}_{i}
        """)
    def nonce_get(self, a, uid):
        a.need(vm="nonce")
        a(f"L_nchk_{uid}:")
        a(f"v_readfirstlane_b32 s{S_NON}, v{V_NON}")
        a(f"s_cmp_eq_u32 s{S_NON}, 0")
        a(f"s_cbranch_scc1 L_nslow_{uid}")
        a(f"L_nok_{uid}:")
        self.slow.append(f"""
        L_nslow_{uid}:
        s_cmp_eq_u32 s{S_TO}, 0
        s_cbranch_scc1 L_nok_{uid}
        s_sub_u32 s{S_TO}, s{S_TO}, 1
        buffer_load_dword v{V_NON}, off, {sG}, 0 sc1
        s_waitcnt vmcnt(0)
        s_branch L_nchk_{uid}
        """)

    def p2_plan(self, nblk):
        G = self.opt.get("tailg", 3)
        order = [(i, rb) for i in range(14 - G) for rb in range(nblk)]
        order += [(i, rb) for rb in range(nblk) for i in range(14 - G, 14)]
        return order
    def h_issue(self, a, q, order, hbuf, uid, seen):
        i, rb = order[q]
        hp = self.opt.get("hldpol", "sc1")
        v = V_HL0 if rb < 4 else V_HL1
        d = a.n - a.last_rl
        if d < 5: a(f"s_nop {4-d}")
        a.vmi(f"buffer_load_dwordx4 {RR(hbuf(q))}, v{v}, {sH}, s{S_HL + i % 3} offen offset:{1024*(rb%4)} {hp}", ("h", q))
    def h_pre(self, a, q, order, uid, seen):
        i, rb = order[q]
        if i not in seen:
            seen.add(i)
            a(f"v_readlane_b32 s{S_HL + i % 3}, v{V_TH}, {10+i}")
            self.check(a, i, ("poll", i), uid)
    def p2_main(self, a, nblk, uid, acc, hbuf, wdf, extra, REG, sreg, seen):
        order = self.p2_plan(nblk)
        LAH = self.LAH(nblk); PD = self.opt.get("pd", LAH)
        NF = len(order)
        first = {}
        for q, (i, rb) in enumerate(order): first.setdefault(i, q)
        pollpos = {}
        for i in range(self.P0, 14):
            pollpos.setdefault(max(0, first[i] - LAH - PD), []).append(i)
        lastq = {}
        for q, (i, rb) in enumerate(order): lastq[rb] = q
        wq = []
        VW, VR = 16, 8
        started = set()
        for q, (i, rb) in enumerate(order):
            if uid == "n" and q % nblk == 0: self.tr(a, f"S{q//nblk}")
            for nb in range(4):
                a.need(vm=("h", q), lg=("wd", i, nb))
                ac = acc(rb, nb)
                c = RR(ac) if (rb, nb) in started else "0"
                started.add((rb, nb))
                a.mfma(f"v_mfma_f32_16x16x32_bf16 {RR(ac)}, {RR(off(wdf(i), nb*4))}, {RR(hbuf(q))}, {c}", ac)
                if nb == 0:
                    if q in pollpos:
                        self.poll(a, pollpos[q])
                if nb == 1 and q + LAH < NF: self.h_pre(a, q + LAH, order, uid, seen)
                if nb == 3 and q + LAH < NF: self.h_issue(a, q + LAH, order, hbuf, uid, seen)
                if wq and wq[0][0] <= q * 4 + nb:
                    _, r2, n2 = wq.pop(0)
                    a.after_mfma(acc(r2, n2), 9)
                    a.lgi(f"ds_write_b128 v{VW + (n2 & 1)}, {RR(acc(r2, n2))} offset:{r2*4096 + (n2 >> 1)*128}", "red")
                extra(q, nb)
                if q == NF - 8 * nblk // 2 and nb == 2:
                    a(f"""
                    v_and_b32 v1, 15, v0
                    v_lshrrev_b32 v2, 4, v0
                    v_and_b32 v3, 7, v0
                    v_xor_b32 v2, v2, v3
                    v_lshlrev_b32 v2, 4, v2
                    v_lshl_add_u32 v1, v1, 8, v2
                    v_add_u32 v{VW}, s{sreg}, v1
                    v_xor_b32 v{VW+1}, 64, v{VW}
                    """)
                if q == NF - 8 * nblk // 2 + 1 and nb == 2:
                    a(f"""
                    v_lshrrev_b32 v1, 3, v0
                    v_lshlrev_b32 v2, 1, v3
                    v_xor_b32 v2, v2, v1
                    v_lshlrev_b32 v2, 4, v2
                    s_lshl_b32 s{T1}, s{S_W}, 3
                    v_add_u32 v1, s{T1}, v1
                    v_lshl_add_u32 v{VR}, v1, 8, v2
                    v_xor_b32 v{VR+1}, 16, v{VR}
                    """)
                if q == NF - 8 * nblk // 2 + 2 and nb == 2:
                    a(f"""
                    v_add_u32 v{VR+2}, {2*REG}, v{VR}
                    v_add_u32 v{VR+3}, {2*REG}, v{VR+1}
                    v_mul_u32_u24 v1, 1280, v1
                    v_lshl_add_u32 v18, v3, 4, v1
                    v_add_u32 v19, s{S_OLAST}, v18
                    """)
            if q == lastq[rb]:
                for n2 in range(4): wq.append((q * 4 + 6 + 3 * n2, rb, n2))
        self.stamp(a, 7)
        if uid == "n": self.tr(a, "p2end")
        while wq:
            _, r2, n2 = wq.pop(0)
            a.after_mfma(acc(r2, n2), 9)
            a.lgi(f"ds_write_b128 v{VW + (n2 & 1)}, {RR(acc(r2, n2))} offset:{r2*4096 + (n2 >> 1)*128}", "red")
        a.wait_all(vm=False)
        if uid == "n": self.tr(a, "redw")
        a("s_barrier")
        if uid == "n": self.tr(a, "redb")
        TMP = 32
        opol = self.opt.get("opol", "")
        def rd(qi):
            for pw in range(4):
                for hf in range(2):
                    t = TMP + qi * 32 + pw * 8 + hf * 4
                    a.lgi(f"ds_read_b128 {R('v', t)}, v{VR + hf + 2*(pw >> 1)} offset:{(pw & 1)*REG + qi*8192}", ("rr", qi, pw))
        rd(0); rd(1)
        for qi in range(3):
            t = TMP + qi * 32
            a.need(lg=("rr", qi, 1))
            for r in range(0, 8, 2): a(f"v_pk_add_f32 {R('v',t+r,2)}, {R('v',t+r,2)}, {R('v',t+8+r,2)}")
            a.need(lg=("rr", qi, 3))
            if qi == 0: rd(2)
            for r in range(0, 8, 2): a(f"v_pk_add_f32 {R('v',t+16+r,2)}, {R('v',t+16+r,2)}, {R('v',t+24+r,2)}")
            for r in range(0, 8, 2): a(f"v_pk_add_f32 {R('v',t+r,2)}, {R('v',t+r,2)}, {R('v',t+16+r,2)}")
            for d in range(4): a(f"v_cvt_pk_bf16_f32 v{t+8+d}, v{t+2*d}, v{t+2*d+1}")
            a.vmi(f"buffer_store_dwordx4 {R('v',t+8)}, v{19 if qi == 2 else 18}, {sO}, s{S_OSO} offen {opol}", "ost")
            if qi < 2: a(f"s_add_u32 s{S_OSO}, s{S_OSO}, {32*1280}")
    def LAH(self, nblk): return self.opt.get("lah", 10)
    P0 = 4

    def srds(self, a):
        a(f"""
        s_mov_b32 s10, {XB}
        s_mov_b32 s11, 0x00020000
        s_mov_b32 s14, {WB}
        s_mov_b32 s15, 0x00020000
        s_cmp_ge_u32 s{S_W}, 2
        s_waitcnt lgkmcnt(0)
        s_mov_b32 s8, s4
        s_mov_b32 s9, s5
        s_cselect_b32 s12, s64, s6
        s_cselect_b32 s13, s65, s7
        """)
    def srds2(self, a):
        a(f"""
        s_mov_b32 s16, s68
        s_mov_b32 s17, s69
        s_mov_b32 s18, {HB}
        s_mov_b32 s19, 0x00020000
        s_mov_b32 s20, s66
        s_mov_b32 s21, s67
        s_mov_b32 s22, {WB}
        s_mov_b32 s23, 0x00020000
        s_mov_b32 s32, s26
        s_mov_b32 s33, s27
        s_mov_b32 s34, 256
        s_mov_b32 s35, 0x00020000
        s_mov_b32 s26, {OB}
        s_mov_b32 s27, 0x00020000
        s_add_u32 s28, s68, {FLAG_OFF}
        s_addc_u32 s29, s69, 0
        s_mov_b32 s30, {FLAG_B}
        s_mov_b32 s31, 0x00020000
        s_mov_b32 s{S_TO}, 100000
        """)

    def normal(self, a):
        opt = self.opt
        rot = opt.get("rot", 1)
        hpol = opt.get("hpol", "sc1")
        ldpol = opt.get("ldpol", "")
        exact = opt.get("exact", 0)
        a(f"""
        s_lshr_b32 s{T0}, s{S_XCD}, 1
        s_mul_i32 s{S_C}, s{T0}, 7
        s_lshr_b32 s{S_K0}, s{S_J}, 2
        s_add_u32 s{S_C}, s{S_C}, s{S_K0}
        s_and_b32 s{S_RG}, s{S_XCD}, 1
        s_lshl_b32 s{S_RG}, s{S_RG}, 2
        s_and_b32 s{T0}, s{S_J}, 3
        s_add_u32 s{S_RG}, s{S_RG}, s{T0}
        """)
        GR = 10 if rot == 1 else max(rot, 1)
        if rot == 0:
            a(f"s_mov_b32 s{S_K0}, 0")
        elif rot >= 2:
            mg = (256 + rot - 1) // rot
            a(f"""
            s_add_u32 s{S_K0}, s{S_K0}, s{T0}
            s_mul_i32 s{T0}, s{S_K0}, {mg}
            s_lshr_b32 s{T0}, s{T0}, 8
            s_mul_i32 s{T0}, s{T0}, {rot}
            s_sub_u32 s{S_K0}, s{S_K0}, s{T0}
            """)
        elif rot == 1:
            a(f"""
            s_mul_i32 s{T0}, s{T0}, 5
            s_lshr_b32 s{T0}, s{T0}, 1
            s_add_u32 s{S_K0}, s{S_K0}, s{T0}
            s_cmp_ge_u32 s{S_K0}, 10
            s_cselect_b32 s{T0}, 10, 0
            s_sub_u32 s{S_K0}, s{S_K0}, s{T0}
            """)
        if opt.get("browrot", 1):
            a(f"s_mul_i32 s{S_SC}, s{S_C}, 19\ns_lshr_b32 s{S_SC}, s{S_SC}, 6")
        else:
            a(f"s_mov_b32 s{S_SC}, 0")
        a(f"""
        v_lshrrev_b32 v2, 3, v0
        v_and_b32 v3, 7, v0
        v_lshrrev_b32 v4, 4, v0
        v_xor_b32 v5, v4, v3
        v_lshlrev_b32 v5, 4, v5
        v_mul_u32_u24 v6, 1280, v2
        v_add_u32 v{V_XD}, v5, v6
        v_xor_b32 v5, 64, v5
        v_add_u32 v5, v5, v6
        v_add_u32 v{V_XD+1}, {8*1280-1024}, v5
        v_add_u32 v{V_XD+2}, {2*(8*1280-1024)}, v{V_XD}
        v_add_u32 v{V_XD+3}, {3*(8*1280-1024)}, v5
        s_and_b32 s{T0}, s{S_W}, 2
        v_and_b32 v5, 1, v4
        v_add_u32 v5, s{T0}, v5
        v_lshlrev_b32 v5, 1, v5
        v_xor_b32 v5, v5, v3
        v_lshlrev_b32 v5, 4, v5
        v_mul_u32_u24 v6, 3456, v2
        v_add_u32 v{V_WD}, v5, v6
        v_add_u32 v{V_WD+1}, {8*3456-1024}, v{V_WD}
        v_add_u32 v{V_WD+2}, {2*(8*3456-1024)}, v{V_WD}
        v_add_u32 v{V_WD+3}, {3*(8*3456-1024)}, v{V_WD}
        """)
        a(f"""
        s_lshl_b32 s{T1}, s{S_RG}, 3
        s_add_u32 s{T0}, s{S_SC}, s{S_W}
        s_and_b32 s{T0}, s{T0}, 7
        s_add_u32 s{T0}, s{T0}, s{T1}
        s_mul_i32 s{T0}, s{T0}, 40960
        s_lshl_b32 s{T2}, s{S_K0}, 7
        s_add_u32 s{S_XSO}, s{T0}, s{T2}
        s_and_b32 s{T0}, s{S_W}, 1
        s_mul_i32 s{T0}, s{T0}, 110592
        s_lshl_b32 s{T2}, s{S_C}, 7
        s_add_u32 s{T3}, s{T0}, s{T2}
        s_mul_i32 s{T2}, s{S_K0}, 221184
        s_add_u32 s{S_WSO}, s{T3}, s{T2}
        s_lshl_b32 s{S_MX}, s{S_W}, 12
        s_add_u32 s{S_MW}, s{S_MX}, 65536
        """)
        self.srds(a)
        self.stamp(a, 1)
        xpol = opt.get("xpol", ldpol); wpol = opt.get("wpol", ldpol); dpol = opt.get("dpol", "")
        SO = [S_WSO, S_XSO]
        def four(kind, half, lane, ldsoff, tag):
            srd, vb, m0, tabv, pol = {"x": (sX, V_XD, S_MX, V_TX, xpol), "w": (sW, V_WD, S_MW, V_TW, wpol), "d": (sD, V_WD, S_MW, V_TW, dpol)}[kind]
            so = SO[half]
            return dict(rl=f"v_readlane_b32 s{so}, v{tabv}, {lane}", m0=f"s_add_u32 m0, s{m0}, {ldsoff}",
                        ins=[(f"buffer_load_dwordx4 v{vb+k}, {srd}, s{so} offen offset:{1024*k} {pol} lds", tag) for k in range(4)])
        def dma_group(g):
            o = (g % 4) * 16384
            if g < 10: return [four("w", 0, g, o, ("dma", g)), four("x", 1, g, o, ("dma", g))]
            if g < 20: return [four("x", 0, g, o, ("dma", g)), four("d", 1, g, o, ("wdd", g - 10))]
            if g == 20: return [four("d", 0, 20, 0, ("wdd", 10)), four("d", 1, 21, 16384, ("wdd", 11))]
            return [None, None]
        def issue_now(h, rl=True):
            if rl: a(h["rl"]); a("s_nop 3")
            a(h["m0"]); a("s_nop 0")
            for ins, tag in h["ins"]: a.vmi(ins, tag)
        self.tr(a, "srd")
        for h in dma_group(0): issue_now(h, False)
        self.tr(a, "dma0")
        self.srds2(a)
        a(f"""
        s_memrealtime s[4:5]
        s_or_b32 s6, s2, s{S_W}
        v_or_b32 v1, s6, v0
        v_cmp_eq_u32 vcc, 0, v1
        v_mov_b32 v2, {OOBV}
        s_waitcnt lgkmcnt(0)
        s_or_b32 s4, s4, 1
        v_cndmask_b32 v1, v2, v1, vcc
        v_mov_b32 v3, s4
        """)
        a.vmi(f"buffer_store_dword v3, v1, {sG}, 0 offen sc1", "nst")
        a(f"""
        s_mul_i32 s4, s{S_RG}, 27
        s_add_u32 s4, s4, s{S_C}
        s_mul_i32 s4, s4, 640
        s_add_u32 s{S_FB}, s28, s4
        s_addc_u32 s{S_FB+1}, s29, 0
        """)
        a(f"""
        v_subrev_u32 v1, 10, v0
        v_lshlrev_b32 v1, 2, v1
        v_add_u32 v1, s{S_W}, v1
        v_and_b32 v1, 0xff, v1
        v_mul_u32_u24 v2, 26, v1
        v_lshrrev_b32 v2, 8, v2
        v_mul_u32_u24 v3, 10, v2
        v_sub_u32 v1, v1, v3
        v_add_u32 v2, 4, v2
        v_cmp_gt_u32 vcc, 10, v0
        v_mov_b32 v3, s{S_W}
        s_mov_b32 s4, 40960
        v_cndmask_b32 v1, v1, v0, vcc
        v_cndmask_b32 v2, v2, v3, vcc
        v_cmp_gt_u32 vcc, {GR}, v1
        v_add_u32 v4, s{S_K0}, v1
        v_subrev_u32 v3, {GR}, v4
        v_min_u32 v4, v4, v3
        v_cndmask_b32 v1, v1, v4, vcc
        v_add_u32 v2, s{S_SC}, v2
        v_and_b32 v2, 7, v2
        v_add_u32 v2, s{T1}, v2
        v_mul_lo_u32 v2, v2, s4
        v_lshlrev_b32 v3, 7, v1
        v_add_u32 v{V_TX}, v2, v3
        s_mov_b32 s4, 221184
        v_mul_lo_u32 v2, v1, s4
        v_add_u32 v{V_TW}, s{T3}, v2
        s_lshr_b32 s4, s{S_W}, 1
        s_lshl_b32 s5, s{S_C}, 1
        s_add_u32 s4, s4, s5
        s_lshl_b32 s4, s4, 7
        s_lshl_b32 s5, s{S_RG}, 4
        s_add_u32 s4, s4, s5
        v_add_u32 v1, s{S_SC}, v0
        v_and_b32 v1, 7, v1
        v_lshlrev_b32 v1, 1, v1
        v_add_u32 v1, s4, v1
        v_lshlrev_b32 v{V_TH}, 10, v1
        """)
        a(f"""
        v_and_b32 v2, 31, v0
        v_lshrrev_b32 v3, 5, v0
        v_bfe_u32 v4, v0, 1, 3
        v_xor_b32 v4, v4, v3
        v_lshlrev_b32 v4, 4, v4
        v_lshl_add_u32 v{V_XR}, v2, 7, v4
        v_xor_b32 v{V_XR+1}, 32, v{V_XR}
        v_xor_b32 v{V_XR+2}, 64, v{V_XR}
        v_xor_b32 v{V_XR+3}, 96, v{V_XR}
        v_bfe_u32 v4, v0, 4, 1
        v_bfe_u32 v5, v0, 2, 2
        v_lshl_add_u32 v6, v3, 3, v5
        v_lshlrev_b32 v6, 7, v6
        v_lshl_add_u32 v6, v4, 13, v6
        v_bfe_u32 v7, v0, 3, 2
        v_xor_b32 v7, s{S_W}, v7
        v_lshl_add_u32 v6, v7, 5, v6
        v_and_b32 v7, 3, v0
        v_lshl_add_u32 v6, v7, 3, v6
        v_add_u32 v{V_WR}, 65536, v6
        s_and_b32 s4, s{S_W}, 1
        s_lshl_b32 s4, s4, 1
        v_add_u32 v6, s4, v3
        v_lshlrev_b32 v6, 8, v6
        v_lshl_add_u32 v6, v4, 10, v6
        v_and_b32 v7, 15, v0
        v_lshl_add_u32 v{V_HS}, v7, 4, v6
        """)
        a(f"""
        s_mul_i32 s4, s{S_XCD}, 28
        s_cmp_eq_u32 s{S_XCD}, 7
        s_cselect_b32 s4, 192, s4
        s_add_u32 s4, s4, s{S_J}
        s_mul_i32 s5, s4, 205
        s_lshr_b32 s5, s5, 11
        s_mul_i32 s6, s5, 10
        s_sub_u32 s{S_N}, s4, s6
        s_mul_i32 s{S_RB0}, s5, 5
        s_cmp_ge_u32 s{S_W}, 2
        s_cselect_b32 s{S_OLAST}, {OOBV}, 0
        s_mul_i32 s{S_T0}, s{S_W}, 20480
        """)
        self.p2_setup(a, 5, None)
        trL, wdM = self.wd_addr_ops(S_MW)
        for x in trL: a(x)
        self.tr(a, "setup")
        for h in dma_group(1): issue_now(h)
        self.tr(a, "dma1")

        A0, A4 = 32, 48
        ACC = [A0, 64, 80, 96, A4]
        XF = 112
        LA = 7
        def wdf(i):
            if i < 6: return ('a', 160 + 16 * i)
            if i < 11: return ('v', 144 + 16 * (i - 6))
            return ('v', 64 + 16 * (i - 11))
        HB_ = [('v', 224 + 4 * k) for k in range(6)] + [('a', 4 * k) for k in range(9)]
        def hbuf(q): return HB_[q % 15]
        def acc2(rb, nb): return ('a', 40 + (rb * 4 + nb) * 4)
        def minfo(n):
            if n < 160:
                s = n >> 4; ks = (n >> 2) & 3; b = n & 3
                return dict(stage=s, unit=b, ks=ks, wf=4*s+ks, acc=ACC[b], first=(s == 0 and ks == 0), blk=b, last=(n >= 156))
            m = n - 160; u = m >> 2; ks = m & 3
            blk = 4 + u // 10; kk = u % 10
            return dict(stage=10 + (u >> 2), unit=u & 3, ks=ks, wf=4*kk+ks, acc=ACC[4] if blk % 2 == 0 else ACC[0],
                        first=(kk == 0 and ks == 0), blk=blk, last=(kk == 9 and ks == 3))
        epi = []
        pubs = []
        stN = opt.get("stN", {0: 206, 1: 206, 2: 206, 3: 206, 4: 206, 5: 247, 6: 288, 7: 327})
        stN = {int(k): v for k, v in stN.items()}
        EP = opt.get("epr", 2)
        sts = []
        def add_epi(blk, acc, n):
            dst = acc + 8
            if blk == 0: dst = 248
            ops = []
            if exact:
                for j in range(16):
                    ops.append(("v", f"v_cvt_pk_bf16_f32 v{acc+j}, 0, v{acc+j}", acc))
            for j in range(8):
                ops.append(("v", f"v_mul_f32 v{acc+j}, v{acc+j}, v{acc+8+j}", acc))
            for d in range(4):
                ops.append(("v", f"v_cvt_pk_bf16_f32 v{dst+d}, v{acc+2*d}, v{acc+2*d+1}", acc))
            ops.insert(0, ("r", f"v_readlane_b32 s{S_HS8+blk}, v{V_TH}, {blk}", acc))
            ops.append(("s", f"buffer_store_dwordx4 {R('v',dst)}, v{V_HS}, {sH}, s{S_HS8+blk} offen {hpol}", blk))
            for o in ops: epi.append((n + 3, o))
        def run_epi(n):
            cnt = EP if n < 200 else EP + 1
            while epi and epi[0][0] <= n and (cnt > 0 or epi[0][1][0] == "s"):
                _, (kind, ins, x) = epi.pop(0)
                if kind == "v":
                    a.after_mfma(x, 13); a(ins); cnt -= 1
                elif kind == "r":
                    a(ins); cnt -= 1
                else:
                    sts.append((stN[x], ins, x))
            while sts and sts[0][0] <= n:
                _, ins, x = sts.pop(0)
                if opt.get("nohst"): continue
                a.vmi(ins, ("hst", x))
                if x >= 3: pubs.append((max(0, x - 3), ("hst", x)))
        def pub_ready():
            return bool(pubs) and a.vm_covered(pubs[0][1])
        def run_pub():
            ks = []
            while pub_ready(): ks.append(pubs.pop(0)[0])
            if ks:
                a(f"s_cmp_lg_u32 s{S_W}, 0")
                a(f"s_cbranch_scc1 L_pub_{ks[0]}")
                for k in ks: a(f"s_atomic_swap s{S_NON}, s[{S_FB}:{S_FB+1}], {128*k}")
                a(f"L_pub_{ks[0]}:")
        def wd_trs(i, ldsoff):
            return [(f"ds_read_b64_tr_b16 {RR(off(wdf(i), nb*4+2*rd), 2)}, v{V_DR+nb} offset:{ldsoff + rd*1024}", ("wd", i, nb)) for nb in range(4) for rd in range(2)]
        trq = []; misc = []
        WG = opt.get("waitgran", 2)
        order = self.p2_plan(5); LAH = self.LAH(5); seen = set()
        hq = 0
        a(dma_group(2)[0]["rl"])
        for n in range(-LA, 320):
            if n >= 0:
                mi = minfo(n)
                if n % WG == 0:
                    needs = [("x", min(319, n + WG - 1))]
                    if n < 160 and mi["unit"] == 0: needs.append(("w", mi["wf"]))
                    a.need(lg=needs)
                acc = mi["acc"]; xf = XF + (n & 7) * 4
                c = "0" if mi["first"] else R("v", acc, 16)
                a.mfma(f"v_mfma_f32_32x32x16_bf16 {R('v',acc,16)}, {R('a',mi['wf']*4)}, {R('v',xf)}, {c}", acc)
                if mi["last"]: add_epi(mi["blk"], acc, n)
                if n == 0: self.stamp(a, 3)
                if n == 159: self.stamp(a, 4)
            nn = n + LA
            s = nn >> 4; gp = nn & 15
            grp = dma_group(s + 2)
            if gp == 0:
                assert not trq
                if s < 20:
                    tags = [("dma", s)]
                    if s >= 10: tags.append(("wdd", s - 10))
                    a.need(vm=tags)
                    a("s_barrier")
                    if s == 0: self.stamp(a, 2)
                    run_pub()
                    self.tr(a, f"B{s}")
                    if s >= 10: trq = wd_trs(s - 10, (s % 4) * 16384)
                else:
                    a.need(vm=("wdd", 10))
                    trq = wd_trs(10, 0)
                if s == 8: misc += wdM
                if s == 2: misc.append(("nonce_ld",))
                if s == 6: misc.append(("nonce_get",))
                if s == 18: misc.append(("poll", [0, 1]))
                if s == 19: misc.append(("poll", [2, 3]))
            h = grp[gp >> 3]
            if h and gp % 8 == 0: a(h["m0"])
            if gp == 4 and grp[1]: a(grp[1]["rl"])
            if gp == 12 and dma_group(s + 3)[0]: a(dma_group(s + 3)[0]["rl"])
            if nn < 320:
                mi = minfo(nn)
                slot = mi["stage"] % 4
                a.lgi(f"ds_read_b128 {R('v', XF + (nn & 7)*4)}, v{V_XR+mi['ks']} offset:{slot*16384 + mi['unit']*4096}", ("x", nn))
                if nn < 160 and mi["unit"] in (0, 2):
                    rd = mi["unit"] >> 1
                    a.lgi(f"ds_read_b64_tr_b16 {R('a', mi['wf']*4+2*rd, 2)}, v{V_WR} offset:{slot*16384 + mi['ks']*2048 + rd*512}", ("w", mi["wf"]))
            if trq and (nn % 2 == 0 or nn >= 320):
                ins, tag = trq.pop(0); a.lgi(ins, tag)
            k = 2
            while misc and k > 0:
                x = misc.pop(0); k -= 1
                if x == ("nonce_ld",): a.vmi(f"buffer_load_dword v{V_NON}, off, {sG}, 0 sc1", "nonce")
                elif x == ("nonce_get",): self.nonce_get(a, "n")
                elif x[0] == "poll": self.poll(a, x[1])
                else: a(x)
            if h and gp % 2 == 1:
                d = a.n - a.last_rl
                if gp % 8 == 1 and d < 5: a(f"s_nop {4-d}")
                ins, tag = h["ins"][(gp & 7) >> 1]; a.vmi(ins, tag)
            if s >= 19 and hq < LAH:
                if gp % 2 == 0: self.h_pre(a, hq, order, "n", seen)
                else: self.h_issue(a, hq, order, hbuf, "n", seen); hq += 1
            run_epi(n)
        self.stamp(a, 5)
        while trq:
            ins, tag = trq.pop(0); a.lgi(ins, tag)
        while hq < LAH:
            self.h_pre(a, hq, order, "n", seen); self.h_issue(a, hq, order, hbuf, "n", seen); hq += 1
        st = dict(q=[], tr=[])
        def extra(q, nb):
            n = 320 + (q * 4 + nb) // 2
            run_epi(n)
            if nb == 0 and pub_ready():
                if pubs[0][0] == 4: a.need(lg=("wd", 11, 3))
                a("s_barrier"); run_pub()
            if q == 5 and nb == 0:
                a.need(vm=("wdd", 11)); st["tr"] = wd_trs(11, 16384)
            if opt.get("nohst") and q == 14 and nb == 0:
                a.need(lg=("wd", 11, 3)); a("s_barrier")
            for (q0, i, lo) in ((6, 12, 2), (22, 13, 3)):
                hh = four("d", 0, 10 + i, lo * 16384, ("wdd", i))
                if q == q0 and nb == 0: a(hh["rl"]); a(hh["m0"])
                if q0 < q <= q0 + 13 and (q - q0) % 4 == 1 and nb == 1:
                    ins, tag = hh["ins"][(q - q0) // 4]; a.vmi(ins, tag)
                if q == q0 + 25 and nb == 0:
                    a.need(vm=("wdd", i)); st["tr"] = wd_trs(i, lo * 16384)
            if st["tr"] and nb in (0, 2):
                ins, tag = st["tr"].pop(0); a.lgi(ins, tag)
        self.p2_main(a, 5, "n", acc2, hbuf, wdf, extra, 20480, S_T0, seen)
        assert not epi and not pubs and not sts

    def prefetch(self, a):
        pf = self.opt.get("pf")
        if pf is None: return
        wpol = self.opt.get("pfwpol", "")
        a(f"""
        s_cmp_ge_u32 s{S_XCD}, 6
        s_cselect_b32 s{T1}, 24, 28
        s_cselect_b32 s{S_SC}, 2, 1
        s_sub_u32 s{T1}, s{S_J}, s{T1}
        s_lshl_b32 s{T1}, s{T1}, 2
        s_add_u32 s{T1}, s{T1}, s{S_W}
        s_lshr_b32 s{T2}, s{T1}, 4
        s_and_b32 s{T1}, s{T1}, 15
        s_bitcmp1_b32 s{S_XCD}, 0
        s_cselect_b32 s12, s64, s6
        s_cselect_b32 s13, s65, s7
        s_lshr_b32 s{T3}, s{S_XCD}, 1
        v_lshrrev_b32 v1, 3, v0
        v_and_b32 v2, 7, v0
        v_mul_u32_u24 v1, 3456, v1
        v_lshl_add_u32 v1, v2, 7, v1
        v_cmp_eq_u32 vcc, 7, v2
        v_mov_b32 v3, {OOBV}
        s_mul_i32 s4, s{T1}, {8*3456}
        v_cndmask_b32 v1, v1, v3, vcc
        s_mul_i32 s5, s{T3}, 896
        s_add_u32 s4, s4, s5
        s_mul_i32 s5, s{T2}, {128*3456}
        s_add_u32 s4, s4, s5
        s_add_u32 s{S_WSO}, s4, {pf*64*3456}
        v_and_b32 v2, 15, v0
        v_mul_u32_u24 v2, 1280, v2
        v_bfe_u32 v4, v0, 4, 1
        v_lshl_add_u32 v2, v4, 7, v2
        v_cmp_le_u32 vcc, 32, v0
        s_and_b32 s4, s{S_XCD}, 1
        s_lshl_b32 s4, s4, 2
        v_cndmask_b32 v2, v2, v3, vcc
        s_add_u32 s4, s4, s{T3}
        s_lshl_b32 s4, s4, 4
        s_add_u32 s4, s4, s{T1}
        s_mul_i32 s4, s4, 20480
        s_lshl_b32 s5, s{T2}, 8
        s_add_u32 s4, s4, s5
        s_add_u32 s{S_XSO}, s4, {pf*128}
        s_mul_i32 s4, s{S_SC}, {128*3456}
        s_lshl_b32 s5, s{S_SC}, 8
        s_lshl_b32 s6, s{T2}, 1
        s_add_u32 s6, s6, {pf}
        s_lshl_b32 s7, s{S_SC}, 1
        L_pf:
        buffer_load_dword v5, v1, {sW}, s{S_WSO} offen {wpol}
        buffer_load_dword v5, v2, {sX}, s{S_XSO} offen
        s_add_u32 s{S_WSO}, s{S_WSO}, s4
        s_add_u32 s{S_XSO}, s{S_XSO}, s5
        s_add_u32 s6, s6, s7
        s_cmp_lt_u32 s6, 10
        s_cbranch_scc1 L_pf
        """)
    def prefetch_wd(self, a):
        if not self.opt.get("pfd"): return
        a(f"""
        s_lshl_b32 s4, s{S_K0}, 2
        s_add_u32 s4, s4, s{S_W}
        s_mul_i32 s4, s4, {108*128}
        v_lshlrev_b32 v1, 7, v0
        v_cmp_le_u32 vcc, 54, v0
        v_mov_b32 v3, {OOBV}
        s_add_u32 s5, s4, {54*128}
        v_cndmask_b32 v1, v1, v3, vcc
        buffer_load_dword v5, v1, {sD}, s4 offen
        buffer_load_dword v5, v1, {sD}, s5 offen
        s_waitcnt vmcnt(0)
        """)

    def free(self, a):
        a(f"""
        s_lshl_b32 s{T0}, s{S_XCD}, 2
        s_add_u32 s{T0}, s{T0}, s{S_J}
        s_sub_u32 s{T0}, s{T0}, 28
        s_cmp_eq_u32 s{S_XCD}, 6
        s_cselect_b32 s{T0}, s{S_J}, s{T0}
        s_add_u32 s{T1}, s{S_J}, 8
        s_cmp_eq_u32 s{S_XCD}, 7
        s_cselect_b32 s{T0}, s{T1}, s{T0}
        s_mov_b32 s{S_K0}, s{T0}
        s_mul_i32 s{T1}, s{T0}, 26
        s_lshr_b32 s{T1}, s{T1}, 8
        s_mul_i32 s{T2}, s{T1}, 10
        s_sub_u32 s{S_N}, s{T0}, s{T2}
        s_mul_i32 s{S_RB0}, s{T1}, 6
        s_add_u32 s{S_RB0}, s{S_RB0}, 110
        s_add_u32 s{T2}, s{S_N}, 6
        s_cmp_ge_u32 s{T0}, 30
        s_cselect_b32 s{S_N}, s{T2}, s{S_N}
        s_cselect_b32 s{S_RB0}, 105, s{S_RB0}
        s_cselect_b32 s{S_OLAST}, {OOBV}, 0
        s_cmp_ge_u32 s{S_W}, 2
        s_cselect_b32 s{S_OLAST}, s{S_OLAST}, 0
        s_lshl_b32 s{S_MW}, s{S_W}, 15
        v_mov_b32 v{V_TW}, 0
        v_mov_b32 v{V_TH}, 0
        """)
        self.srds(a)
        self.prefetch(a)
        self.srds2(a)
        self.prefetch_wd(a)
        a(f"s_cmp_ge_u32 s{S_K0}, {0 if self.opt.get('nofree') else 34}\ns_cbranch_scc1 L_end")
        self.p2_setup(a, 6, None)
        trL, wdM = self.wd_addr_ops(S_MW)
        for x in trL + wdM: a(x)
        def wdf(i): return ('a', 16 * i)
        def hbuf(q): return ('v', 128 + 4 * (q % 18))
        def acc2(rb, nb): return ('v', 32 + (rb * 4 + nb) * 4)
        def wdg(i):
            a(f"v_readlane_b32 s{S_WSO}, v{V_TW}, {10+i}")
            a(f"s_add_u32 m0, s{S_MW}, {(i%8)*4096}")
            a("s_nop 3")
            for k in range(4):
                a.vmi(f"buffer_load_dwordx4 v{V_WD+k}, {sD}, s{S_WSO} offen offset:{1024*k} lds", ("wdd", i))
        for i in range(4): wdg(i)
        for i in range(14):
            a.need(vm=("wdd", i))
            for nb in range(4):
                for rd in range(2):
                    a.lgi(f"ds_read_b64_tr_b16 {RR(off(wdf(i), nb*4+2*rd), 2)}, v{V_DR+nb} offset:{(i%8)*4096 + rd*1024}", ("wd", i, nb))
            if i >= 3: a.need(lg=("wd", i - 3, 3))
            if i + 4 < 14: wdg(i + 4)
        a.vmi(f"buffer_load_dword v{V_NON}, off, {sG}, 0 sc1", "nonce")
        self.nonce_get(a, "f")
        self.stamp(a, 4)
        self.poll(a, [0, 1, 2, 3])
        order = self.p2_plan(6); seen = set()
        for q in range(self.LAH(6)):
            self.h_pre(a, q, order, "f", seen); self.h_issue(a, q, order, hbuf, "f", seen)
        self.stamp(a, 5)
        self.p2_main(a, 6, "f", acc2, hbuf, wdf, lambda q, nb: None, 32768, S_MW, seen)

    def gen(self):
        a = SBX()
        if self.st: a("s_memrealtime s[96:97]")
        self.stamp(a, 0)
        a(f"""
        s_load_dwordx4 s[4:7], s[0:1], 0
        s_load_dwordx4 s[64:67], s[0:1], 16
        s_load_dwordx4 s[24:27], s[0:1], 32
        s_load_dwordx2 s[68:69], s[0:1], 48
        s_cmp_ge_u32 s2, 256
        s_cbranch_scc1 L_end
        v_lshrrev_b32 v1, 6, v0
        v_and_b32 v0, 63, v0
        s_and_b32 s{S_XCD}, s2, 7
        v_readfirstlane_b32 s{S_W}, v1
        s_lshr_b32 s{S_J}, s2, 3
        s_cmp_ge_u32 s{S_XCD}, 6
        s_cselect_b32 s{T0}, 24, 28
        s_cmp_ge_u32 s{S_J}, s{T0}
        s_cbranch_scc1 L_free
        """)
        n = SBX(); self.tr(n, "start"); self.normal(n); self.tr(n, "ost"); n.wait_all(); self.tr(n, "end"); self.tr_out(n); n("s_branch L_fin")
        f = SBX(); self.free(f); f.wait_all()
        a.lines += n.lines; a.label("L_free"); a.lines += f.lines
        a.label("L_fin")
        self.stamp(a, 8)
        self.stamps_out(a, 6)
        a("L_end:\ns_endpgm")
        for s in self.slow: a(s)
        return a.text()

class SBX(SB):
    last_rl = -100
    def __call__(self, s):
        for l in s.split("\n"):
            super().__call__(l)
            if l.strip().startswith("v_readlane"): self.last_rl = self.n

def gen(opt):
    g = G(opt)
    body = g.gen()
    body = "; TRACE " + " ".join(g.trn) + "\n" + body
    if "probe" in opt:
        import gen1
        LL = [f"kernel=main_kernel grid=(256,1,1) block=(256,1,1) lds=131072", "kernel=pr_kernel grid=(1,1,1) block=(64,1,1) lds=0"]
        t = header(LL) + kernel_begin("main_kernel") + body
        t += kernel_begin("pr_kernel") + gen1.gen_probe(opt) + kernel_desc("pr_kernel", vgpr=8, accum=8)
        t += kernel_desc("main_kernel", vgpr=512, accum=256)
        return t
    return header(["grid=(256,1,1) block=(256,1,1) lds=131072"]) + kernel_begin(KNAME) + body + kernel_desc(KNAME, vgpr=512, accum=256)

if __name__ == "__main__":
    import json
    opt = json.loads(sys.argv[2]) if len(sys.argv) > 2 else {}
    open(sys.argv[1], "w").write(gen(opt))
```

```python
import sys
from sb import SB
from asmlib import header, kernel_begin, kernel_desc, KNAME

XB, WB, HB, OB = 2621440, 2211840, 54*128*1024, 2621440
FLAG_OFF, FLAG_B = 0x800000, 8*27*640
STAMP_OFF = 0x4000000
OOBV = 0x7ff00000

def R(p, a, n=4): return f"{p}[{a}:{a+n-1}]"
def RR(r, n=4): return R(r[0], r[1], n)
def off(r, k): return (r[0], r[1] + k)

sX, sW, sH, sD, sO, sF, sG = "s[8:11]", "s[12:15]", "s[16:19]", "s[20:23]", "s[24:27]", "s[28:31]", "s[32:35]"
S_W, S_C, S_RG, S_SC, S_K0 = 36, 37, 38, 39, 40
S_RB0, S_N, S_T0 = 41, 42, 43
S_MX, S_MW = 44, 45
S_XSO, S_WSO, S_HSO, S_HLD = 46, 47, 48, 49
S_NON = 50
S_TO = 52
S_OSO = 53
S_J, S_XCD = 54, 55
S_OLAST = 56
S_HL = 57
S_HS8 = 82
S_FB = 64
T0, T1, T2, T3 = 60, 61, 62, 63
V_XD, V_WD, V_XR, V_WR, V_HS = 8, 12, 16, 20, 21
V_TX, V_TW, V_TH = 22, 23, 24
V_FO, V_F, V_FS, V_NON = 25, 26, 28, 29
V_HL0, V_HL1 = 30, 31
V_DR = 4

class G:
    def __init__(self, opt):
        self.opt = opt
        self.st = opt.get("stamps", 0)
        self.slow = []
        self.trn = []
        self.sm = {0: 0, 2: 1, 4: 2, 5: 3, 7: 4, 8: 5}
        self.VTR = 255
    def stamp(self, a, i):
        if self.st == 2: a(f"s_memrealtime s[{70+2*self.sm[i]}:{71+2*self.sm[i]}]") if i in self.sm else None
        elif self.st: a(f"s_memtime s[{70+2*self.sm[i]}:{71+2*self.sm[i]}]") if i in self.sm else None

    def tr(self, a, name):
        if not self.opt.get("trace"): return
        i = len(self.trn)
        p = 90 + 2 * (i % 3)
        if i >= 2:
            a(f"v_writelane_b32 v{self.VTR}, s{90 + 2 * ((i - 2) % 3)}, {i-2}")
        a(f"{'s_memrealtime' if self.opt.get('trace') == 2 else 's_memtime'} s[{p}:{p+1}]")
        self.trn.append(name)
    def tr_out(self, a):
        if not self.opt.get("trace"): return
        n = len(self.trn)
        a("s_waitcnt lgkmcnt(0)")
        for i in (n - 2, n - 1):
            a(f"v_writelane_b32 v{self.VTR}, s{90 + 2 * (i % 3)}, {i}")
        a(f"""
        s_mov_b32 s16, s68
        s_mov_b32 s17, s69
        s_mov_b32 s18, 0x10000000
        s_mov_b32 s19, 0x00020000
        s_lshl_b32 s3, s2, 2
        s_add_u32 s3, s3, s{S_W}
        s_lshl_b32 s3, s3, 8
        s_add_u32 s3, s3, {STAMP_OFF + 0x100000}
        v_lshlrev_b32 v1, 2, v0
        buffer_store_dword v{self.VTR}, v1, s[16:19], s3 offen
        """)
    def stamps_out(self, a, nst):
        if not self.st: return
        a(f"""
        s_memrealtime s[98:99]
        s_waitcnt lgkmcnt(0)
        s_load_dwordx2 s[4:5], s[0:1], 48
        s_waitcnt lgkmcnt(0)
        s_mov_b32 s8, s4
        s_mov_b32 s9, s5
        s_mov_b32 s10, 0x10000000
        s_mov_b32 s11, 0x00020000
        s_lshl_b32 s3, s2, 2
        s_add_u32 s3, s3, s{S_W}
        s_lshl_b32 s3, s3, 6
        s_add_u32 s3, s3, {STAMP_OFF}
        v_mov_b32 v1, s3
        """)
        for i in range(1, nst):
            a(f"s_sub_u32 s4, s{70+2*i}, s70")
            a(f"v_mov_b32 v2, s4")
            a(f"buffer_store_dword v2, v1, s[8:11], 0 offen offset:{4*i}")
        a(f"v_mov_b32 v2, s{S_TO}")
        a(f"buffer_store_dword v2, v1, s[8:11], 0 offen offset:52")
        a(f"v_mov_b32 v2, s96")
        a(f"buffer_store_dword v2, v1, s[8:11], 0 offen offset:56")
        a(f"v_mov_b32 v2, s98")
        a(f"buffer_store_dword v2, v1, s[8:11], 0 offen offset:60")

    def p2_setup(self, a, nblk, ldsbase_shift):
        a(f"""
        s_lshr_b32 s{T0}, s{S_RB0}, 1
        s_add_u32 s{T1}, s{S_RB0}, {nblk-1}
        s_lshr_b32 s{T1}, s{T1}, 1
        s_and_b32 s{T2}, s{T0}, 7
        s_mul_i32 s{T2}, s{T2}, 27
        s_add_u32 s{T2}, s{T2}, {27+7-8}
        s_lshr_b32 s{T2}, s{T2}, 3
        s_lshr_b32 s{T3}, s{S_W}, 1
        s_sub_u32 s{T2}, s{T2}, s{T3}
        """)
        if not self.opt.get("browrot", 1):
            a(f"s_sub_u32 s{T2}, 26, s{T3}")
        a(f"""
        v_lshrrev_b32 v1, 1, v0
        v_lshlrev_b32 v1, 1, v1
        s_add_u32 s{T3}, s{T2}, 27
        v_sub_u32 v1, s{T3}, v1
        v_subrev_u32 v2, 27, v1
        v_min_u32 v1, v1, v2
        """)
        if self.opt.get("browrot", 1):
            a("v_mul_u32_u24 v2, 19, v1\nv_lshrrev_b32 v2, 6, v2")
        else:
            a("v_mov_b32 v2, 0")
        a(f"""
        s_lshr_b32 s4, s{T0}, 3
        s_lshr_b32 s5, s{T1}, 3
        s_and_b32 s6, s{T0}, 7
        s_and_b32 s7, s{T1}, 7
        s_cmp_eq_u32 s4, s5
        s_cselect_b32 s{T0}, s7, 7
        s_cselect_b32 s{T1}, s6, 0
        v_and_b32 v3, 1, v0
        v_cmp_eq_u32 vcc, 1, v3
        v_mov_b32 v3, s6
        v_mov_b32 v{V_F}, s{T1}
        v_cndmask_b32 v3, v3, v{V_F}, vcc
        v_sub_u32 v3, v3, v2
        v_and_b32 v3, 7, v3
        v_mov_b32 v{V_FO}, s{T0}
        v_mov_b32 v{V_F}, s7
        v_cndmask_b32 v{V_FO}, v{V_FO}, v{V_F}, vcc
        v_sub_u32 v{V_FO}, v{V_FO}, v2
        v_and_b32 v{V_FO}, 7, v{V_FO}
        v_mov_b32 v2, s4
        v_mov_b32 v{V_F}, s5
        v_cndmask_b32 v2, v2, v{V_F}, vcc
        v_cmp_ge_u32 vcc, v{V_FO}, v3
        v_mul_u32_u24 v2, 27, v2
        v_add_u32 v2, v2, v1
        v_cndmask_b32 v3, 7, v{V_FO}, vcc
        v_max_u32 v3, 3, v3
        v_subrev_u32 v3, 3, v3
        v_mul_u32_u24 v2, 640, v2
        s_and_b32 s4, s{S_W}, 1
        v_lshl_add_u32 v{V_FO}, v3, 7, v2
        v_mov_b32 v{V_F}, 0
        """)
        a(f"""
        s_lshl_b32 s{T2}, s{T2}, 1
        s_add_u32 s{T2}, s{T2}, s4
        s_add_u32 s{T2}, s{T2}, {54+40}
        v_lshlrev_b32 v1, 2, v0
        v_sub_u32 v1, s{T2}, v1
        v_subrev_u32 v2, 54, v1
        v_min_u32 v1, v1, v2
        s_cmp_ge_u32 s{S_W}, 2
        s_cselect_b32 s4, 23, 99
        v_cmp_eq_u32 vcc, s4, v0
        s_mov_b32 s5, 40960
        s_lshl_b32 s6, s{S_N}, 7
        s_lshl_b32 s7, s{S_RB0}, 10
        v_mul_lo_u32 v2, v1, s5
        v_add_u32 v2, s6, v2
        v_lshlrev_b32 v3, 17, v1
        v_add_u32 v3, s7, v3
        v_mov_b32 v1, {WB}
        v_cndmask_b32 v2, v2, v1, vcc
        v_mov_b32 v1, {HB}
        v_cndmask_b32 v3, v3, v1, vcc
        v_cmp_le_u32 vcc, 10, v0
        s_nop 1
        v_cndmask_b32 v{V_TW}, v{V_TW}, v2, vcc
        v_cndmask_b32 v{V_TH}, v{V_TH}, v3, vcc
        """)
        a(f"""
        v_lshlrev_b32 v{V_HL0}, 4, v0
        v_add_u32 v{V_HL1}, 4096, v{V_HL0}
        s_mul_i32 s{S_OSO}, s{S_RB0}, 20480
        s_add_u32 s{S_OSO}, s{S_OSO}, s6
        """)

    def wd_addr_ops(self, base_expr_sgpr):
        L = f"""
        v_lshrrev_b32 v1, 5, v0
        v_lshlrev_b32 v1, 4, v1
        v_bfe_u32 v2, v0, 2, 3
        v_add_u32 v1, v1, v2
        v_lshlrev_b32 v1, 7, v1
        v_lshrrev_b32 v2, 1, v2
        v_lshlrev_b32 v2, 5, v2
        v_and_b32 v3, 3, v0
        v_lshlrev_b32 v3, 3, v3
        v_add3_u32 v1, v1, v2, v3
        v_add_u32 v{V_DR}, s{base_expr_sgpr}, v1
        v_xor_b32 v{V_DR+1}, 32, v{V_DR}
        v_xor_b32 v{V_DR+2}, 64, v{V_DR}
        v_xor_b32 v{V_DR+3}, 96, v{V_DR}
        """
        M = f"""
        v_lshrrev_b32 v1, 4, v0
        v_lshlrev_b32 v1, 1, v1
        v_and_b32 v2, 7, v0
        v_xor_b32 v1, v1, v2
        v_lshlrev_b32 v1, 4, v1
        v_lshrrev_b32 v2, 3, v0
        v_mul_u32_u24 v2, 1280, v2
        v_add_u32 v{V_WD}, v1, v2
        v_add_u32 v{V_WD+1}, {8*1280-1024}, v{V_WD}
        v_add_u32 v{V_WD+2}, {2*(8*1280-1024)}, v{V_WD}
        v_add_u32 v{V_WD+3}, {3*(8*1280-1024)}, v{V_WD}
        """
        f = lambda s: [x.strip() for x in s.split("\n") if x.strip()]
        return f(L), f(M)

    def poll(self, a, slots):
        m = 0
        for i in slots: m |= 3 << (2 * i)
        a(f"s_mov_b64 exec, {m:#x}")
        a.vmi(f"buffer_load_dword v{V_F}, v{V_FO}, {sF}, 0 offen sc1", None)
        for x in slots: a.alias(("poll", x))
        a("s_mov_b64 exec, -1")
    def check(self, a, i, tag, uid):
        m = 3 << (2 * i)
        a.need(vm=tag)
        a(f"L_chk_{uid}_{i}:")
        a(f"v_cmp_eq_u32 vcc, s{S_NON}, v{V_F}")
        a(f"s_andn2_b32 s{T0}, {m:#x}, vcc_lo")
        if not self.opt.get("nochk"): a(f"s_cbranch_scc1 L_slow_{uid}_{i}")
        a(f"L_ok_{uid}_{i}:")
        self.slow.append(f"""
        L_slow_{uid}_{i}:
        s_cmp_eq_u32 s{S_TO}, 0
        s_cbranch_scc1 L_ok_{uid}_{i}
        s_sub_u32 s{S_TO}, s{S_TO}, 1
        s_sleep {self.opt.get("sleepf", 8) if uid == "f" and i < 6 else self.opt.get("sleepn", 1)}
        s_mov_b64 exec, {(0x3f << (2*i)) & 0xfffffff:#x}
        buffer_load_dword v{V_F}, v{V_FO}, {sF}, 0 offen sc1
        s_mov_b64 exec, -1
        s_waitcnt vmcnt(0)
        s_branch L_chk_{uid}_{i}
        """)
    def nonce_get(self, a, uid):
        a.need(vm="nonce")
        a(f"L_nchk_{uid}:")
        a(f"v_readfirstlane_b32 s{S_NON}, v{V_NON}")
        a(f"s_cmp_eq_u32 s{S_NON}, 0")
        a(f"s_cbranch_scc1 L_nslow_{uid}")
        a(f"L_nok_{uid}:")
        self.slow.append(f"""
        L_nslow_{uid}:
        s_cmp_eq_u32 s{S_TO}, 0
        s_cbranch_scc1 L_nok_{uid}
        s_sub_u32 s{S_TO}, s{S_TO}, 1
        buffer_load_dword v{V_NON}, off, {sG}, 0 sc1
        s_waitcnt vmcnt(0)
        s_branch L_nchk_{uid}
        """)

    def p2_plan(self, nblk):
        G = self.opt.get("tailg", 3)
        order = [(i, rb) for i in range(14 - G) for rb in range(nblk)]
        order += [(i, rb) for rb in range(nblk) for i in range(14 - G, 14)]
        return order
    def h_issue(self, a, q, order, hbuf, uid, seen):
        i, rb = order[q]
        hp = self.opt.get("hldpol", "sc1")
        v = V_HL0 if rb < 4 else V_HL1
        d = a.n - a.last_rl
        if d < 5: a(f"s_nop {4-d}")
        a.vmi(f"buffer_load_dwordx4 {RR(hbuf(q))}, v{v}, {sH}, s{S_HL + i % 3} offen offset:{1024*(rb%4)} {hp}", ("h", q))
    def h_pre(self, a, q, order, uid, seen):
        i, rb = order[q]
        if i not in seen:
            seen.add(i)
            a(f"v_readlane_b32 s{S_HL + i % 3}, v{V_TH}, {10+i}")
            self.check(a, i, ("poll", i), uid)
    def p2_main(self, a, nblk, uid, acc, hbuf, wdf, extra, REG, sreg, seen):
        order = self.p2_plan(nblk)
        LAH = self.LAH(nblk); PD = self.opt.get("pd", LAH)
        NF = len(order)
        first = {}
        for q, (i, rb) in enumerate(order): first.setdefault(i, q)
        pollpos = {}
        for i in range(self.P0, 14):
            pollpos.setdefault(max(0, first[i] - LAH - PD), []).append(i)
        lastq = {}
        for q, (i, rb) in enumerate(order): lastq[rb] = q
        wq = []
        VW, VR = 16, 8
        started = set()
        for q, (i, rb) in enumerate(order):
            if uid == "n" and q % nblk == 0: self.tr(a, f"S{q//nblk}")
            for nb in range(4):
                a.need(vm=("h", q), lg=("wd", i, nb))
                ac = acc(rb, nb)
                c = RR(ac) if (rb, nb) in started else "0"
                started.add((rb, nb))
                a.mfma(f"v_mfma_f32_16x16x32_bf16 {RR(ac)}, {RR(off(wdf(i), nb*4))}, {RR(hbuf(q))}, {c}", ac)
                if nb == 0:
                    if q in pollpos:
                        self.poll(a, pollpos[q])
                if nb == 1 and q + LAH < NF: self.h_pre(a, q + LAH, order, uid, seen)
                if nb == 3 and q + LAH < NF: self.h_issue(a, q + LAH, order, hbuf, uid, seen)
                if wq and wq[0][0] <= q * 4 + nb:
                    _, r2, n2 = wq.pop(0)
                    a.after_mfma(acc(r2, n2), 9)
                    a.lgi(f"ds_write_b128 v{VW + (n2 & 1)}, {RR(acc(r2, n2))} offset:{r2*4096 + (n2 >> 1)*128}", "red")
                extra(q, nb)
                if q == NF - 8 * nblk // 2 and nb == 2:
                    a(f"""
                    v_and_b32 v1, 15, v0
                    v_lshrrev_b32 v2, 4, v0
                    v_and_b32 v3, 7, v0
                    v_xor_b32 v2, v2, v3
                    v_lshlrev_b32 v2, 4, v2
                    v_lshl_add_u32 v1, v1, 8, v2
                    v_add_u32 v{VW}, s{sreg}, v1
                    v_xor_b32 v{VW+1}, 64, v{VW}
                    """)
                if q == NF - 8 * nblk // 2 + 1 and nb == 2:
                    a(f"""
                    v_lshrrev_b32 v1, 3, v0
                    v_lshlrev_b32 v2, 1, v3
                    v_xor_b32 v2, v2, v1
                    v_lshlrev_b32 v2, 4, v2
                    s_lshl_b32 s{T1}, s{S_W}, 3
                    v_add_u32 v1, s{T1}, v1
                    v_lshl_add_u32 v{VR}, v1, 8, v2
                    v_xor_b32 v{VR+1}, 16, v{VR}
                    """)
                if q == NF - 8 * nblk // 2 + 2 and nb == 2:
                    a(f"""
                    v_add_u32 v{VR+2}, {2*REG}, v{VR}
                    v_add_u32 v{VR+3}, {2*REG}, v{VR+1}
                    v_mul_u32_u24 v1, 1280, v1
                    v_lshl_add_u32 v18, v3, 4, v1
                    v_add_u32 v19, s{S_OLAST}, v18
                    """)
            if q == lastq[rb]:
                for n2 in range(4): wq.append((q * 4 + 6 + 3 * n2, rb, n2))
        self.stamp(a, 7)
        if uid == "n": self.tr(a, "p2end")
        while wq:
            _, r2, n2 = wq.pop(0)
            a.after_mfma(acc(r2, n2), 9)
            a.lgi(f"ds_write_b128 v{VW + (n2 & 1)}, {RR(acc(r2, n2))} offset:{r2*4096 + (n2 >> 1)*128}", "red")
        a.wait_all(vm=False)
        if uid == "n": self.tr(a, "redw")
        a("s_barrier")
        if uid == "n": self.tr(a, "redb")
        TMP = 32
        opol = self.opt.get("opol", "")
        def rd(qi):
            for pw in range(4):
                for hf in range(2):
                    t = TMP + qi * 32 + pw * 8 + hf * 4
                    a.lgi(f"ds_read_b128 {R('v', t)}, v{VR + hf + 2*(pw >> 1)} offset:{(pw & 1)*REG + qi*8192}", ("rr", qi, pw))
        rd(0); rd(1)
        for qi in range(3):
            t = TMP + qi * 32
            a.need(lg=("rr", qi, 1))
            for r in range(0, 8, 2): a(f"v_pk_add_f32 {R('v',t+r,2)}, {R('v',t+r,2)}, {R('v',t+8+r,2)}")
            a.need(lg=("rr", qi, 3))
            if qi == 0: rd(2)
            for r in range(0, 8, 2): a(f"v_pk_add_f32 {R('v',t+16+r,2)}, {R('v',t+16+r,2)}, {R('v',t+24+r,2)}")
            for r in range(0, 8, 2): a(f"v_pk_add_f32 {R('v',t+r,2)}, {R('v',t+r,2)}, {R('v',t+16+r,2)}")
            for d in range(4): a(f"v_cvt_pk_bf16_f32 v{t+8+d}, v{t+2*d}, v{t+2*d+1}")
            a.vmi(f"buffer_store_dwordx4 {R('v',t+8)}, v{19 if qi == 2 else 18}, {sO}, s{S_OSO} offen {opol}", "ost")
            if qi < 2: a(f"s_add_u32 s{S_OSO}, s{S_OSO}, {32*1280}")
    def LAH(self, nblk): return self.opt.get("lah", 10)
    P0 = 4

    def srds(self, a):
        a(f"""
        s_mov_b32 s10, {XB}
        s_mov_b32 s11, 0x00020000
        s_mov_b32 s14, {WB}
        s_mov_b32 s15, 0x00020000
        s_cmp_ge_u32 s{S_W}, 2
        s_waitcnt lgkmcnt(0)
        s_mov_b32 s8, s4
        s_mov_b32 s9, s5
        s_cselect_b32 s12, s64, s6
        s_cselect_b32 s13, s65, s7
        """)
    def srds2(self, a):
        a(f"""
        s_mov_b32 s16, s68
        s_mov_b32 s17, s69
        s_mov_b32 s18, {HB}
        s_mov_b32 s19, 0x00020000
        s_mov_b32 s20, s66
        s_mov_b32 s21, s67
        s_mov_b32 s22, {WB}
        s_mov_b32 s23, 0x00020000
        s_mov_b32 s32, s26
        s_mov_b32 s33, s27
        s_mov_b32 s34, 256
        s_mov_b32 s35, 0x00020000
        s_mov_b32 s26, {OB}
        s_mov_b32 s27, 0x00020000
        s_add_u32 s28, s68, {FLAG_OFF}
        s_addc_u32 s29, s69, 0
        s_mov_b32 s30, {FLAG_B}
        s_mov_b32 s31, 0x00020000
        s_mov_b32 s{S_TO}, 100000
        """)

    def normal(self, a):
        opt = self.opt
        rot = opt.get("rot", 1)
        hpol = opt.get("hpol", "sc1")
        ldpol = opt.get("ldpol", "")
        exact = opt.get("exact", 0)
        a(f"""
        s_lshr_b32 s{T0}, s{S_XCD}, 1
        s_mul_i32 s{S_C}, s{T0}, 7
        s_lshr_b32 s{S_K0}, s{S_J}, 2
        s_add_u32 s{S_C}, s{S_C}, s{S_K0}
        s_and_b32 s{S_RG}, s{S_XCD}, 1
        s_lshl_b32 s{S_RG}, s{S_RG}, 2
        s_and_b32 s{T0}, s{S_J}, 3
        s_add_u32 s{S_RG}, s{S_RG}, s{T0}
        """)
        GR = 10 if rot in (1, 20) else max(rot, 1)
        XORROT = 0
        if rot < 0:
            XORROT = -rot
            a(f"""
            s_add_u32 s{S_K0}, s{S_K0}, s{T0}
            s_and_b32 s{S_K0}, s{S_K0}, 1
            """)
        elif rot == 20:
            dl = opt.get("delta", 0)
            a(f"""
            s_add_u32 s{S_K0}, s{S_K0}, s{T0}
            s_and_b32 s{T0}, s{S_XCD}, 1
            s_mul_i32 s{T0}, s{T0}, {dl}
            s_add_u32 s{S_K0}, s{S_K0}, s{T0}
            s_mul_i32 s{T0}, s{S_K0}, 52
            s_lshr_b32 s{T0}, s{T0}, 8
            s_mul_i32 s{T0}, s{T0}, 5
            s_sub_u32 s{S_K0}, s{S_K0}, s{T0}
            s_lshl_b32 s{S_K0}, s{S_K0}, 1
            """)
        elif rot == 0:
            a(f"s_mov_b32 s{S_K0}, 0")
        elif rot >= 2:
            mg = (256 + rot - 1) // rot
            a(f"""
            s_add_u32 s{S_K0}, s{S_K0}, s{T0}
            s_mul_i32 s{T0}, s{S_K0}, {mg}
            s_lshr_b32 s{T0}, s{T0}, 8
            s_mul_i32 s{T0}, s{T0}, {rot}
            s_sub_u32 s{S_K0}, s{S_K0}, s{T0}
            """)
        elif rot == 1:
            a(f"""
            s_mul_i32 s{T0}, s{T0}, 5
            s_lshr_b32 s{T0}, s{T0}, 1
            s_add_u32 s{S_K0}, s{S_K0}, s{T0}
            s_cmp_ge_u32 s{S_K0}, 10
            s_cselect_b32 s{T0}, 10, 0
            s_sub_u32 s{S_K0}, s{S_K0}, s{T0}
            """)
        if opt.get("browrot", 1):
            a(f"s_mul_i32 s{S_SC}, s{S_C}, 19\ns_lshr_b32 s{S_SC}, s{S_SC}, 6")
        else:
            a(f"s_mov_b32 s{S_SC}, 0")
        a(f"""
        v_lshrrev_b32 v2, 3, v0
        v_and_b32 v3, 7, v0
        v_lshrrev_b32 v4, 4, v0
        v_xor_b32 v5, v4, v3
        v_lshlrev_b32 v5, 4, v5
        v_mul_u32_u24 v6, 1280, v2
        v_add_u32 v{V_XD}, v5, v6
        v_xor_b32 v5, 64, v5
        v_add_u32 v5, v5, v6
        v_add_u32 v{V_XD+1}, {8*1280-1024}, v5
        v_add_u32 v{V_XD+2}, {2*(8*1280-1024)}, v{V_XD}
        v_add_u32 v{V_XD+3}, {3*(8*1280-1024)}, v5
        s_and_b32 s{T0}, s{S_W}, 2
        v_and_b32 v5, 1, v4
        v_add_u32 v5, s{T0}, v5
        v_lshlrev_b32 v5, 1, v5
        v_xor_b32 v5, v5, v3
        v_lshlrev_b32 v5, 4, v5
        v_mul_u32_u24 v6, 3456, v2
        v_add_u32 v{V_WD}, v5, v6
        v_add_u32 v{V_WD+1}, {8*3456-1024}, v{V_WD}
        v_add_u32 v{V_WD+2}, {2*(8*3456-1024)}, v{V_WD}
        v_add_u32 v{V_WD+3}, {3*(8*3456-1024)}, v{V_WD}
        """)
        a(f"""
        s_lshl_b32 s{T1}, s{S_RG}, 3
        s_add_u32 s{T0}, s{S_SC}, s{S_W}
        s_and_b32 s{T0}, s{T0}, 7
        s_add_u32 s{T0}, s{T0}, s{T1}
        s_mul_i32 s{T0}, s{T0}, 40960
        s_lshl_b32 s{T2}, s{S_K0}, 7
        s_add_u32 s{S_XSO}, s{T0}, s{T2}
        s_and_b32 s{T0}, s{S_W}, 1
        s_mul_i32 s{T0}, s{T0}, 110592
        s_lshl_b32 s{T2}, s{S_C}, 7
        s_add_u32 s{T3}, s{T0}, s{T2}
        s_mul_i32 s{T2}, s{S_K0}, 221184
        s_add_u32 s{S_WSO}, s{T3}, s{T2}
        s_lshl_b32 s{S_MX}, s{S_W}, 12
        s_add_u32 s{S_MW}, s{S_MX}, 65536
        """)
        self.srds(a)
        self.stamp(a, 1)
        xpol = opt.get("xpol", ldpol); wpol = opt.get("wpol", ldpol); dpol = opt.get("dpol", "")
        SO = [S_WSO, S_XSO]
        def four(kind, half, lane, ldsoff, tag):
            srd, vb, m0, tabv, pol = {"x": (sX, V_XD, S_MX, V_TX, xpol), "w": (sW, V_WD, S_MW, V_TW, wpol), "d": (sD, V_WD, S_MW, V_TW, dpol)}[kind]
            so = SO[half]
            return dict(rl=f"v_readlane_b32 s{so}, v{tabv}, {lane}", m0=f"s_add_u32 m0, s{m0}, {ldsoff}",
                        ins=[(f"buffer_load_dwordx4 v{vb+k}, {srd}, s{so} offen offset:{1024*k} {pol} lds", tag) for k in range(4)])
        def dma_group(g):
            o = (g % 4) * 16384
            if g < 10: return [four("w", 0, g, o, ("dma", g)), four("x", 1, g, o, ("dma", g))]
            if g < 20: return [four("x", 0, g, o, ("dma", g)), four("d", 1, g, o, ("wdd", g - 10))]
            if g == 20: return [four("d", 0, 20, 0, ("wdd", 10)), four("d", 1, 21, 16384, ("wdd", 11))]
            return [None, None]
        def issue_now(h, rl=True):
            if rl: a(h["rl"]); a("s_nop 3")
            a(h["m0"]); a("s_nop 0")
            for ins, tag in h["ins"]: a.vmi(ins, tag)
        self.tr(a, "srd")
        for h in dma_group(0): issue_now(h, False)
        self.tr(a, "dma0")
        self.srds2(a)
        a(f"""
        s_memrealtime s[4:5]
        s_or_b32 s6, s2, s{S_W}
        v_or_b32 v1, s6, v0
        v_cmp_eq_u32 vcc, 0, v1
        v_mov_b32 v2, {OOBV}
        s_waitcnt lgkmcnt(0)
        s_or_b32 s4, s4, 1
        v_cndmask_b32 v1, v2, v1, vcc
        v_mov_b32 v3, s4
        """)
        a.vmi(f"buffer_store_dword v3, v1, {sG}, 0 offen sc1", "nst")
        a(f"""
        s_mul_i32 s4, s{S_RG}, 27
        s_add_u32 s4, s4, s{S_C}
        s_mul_i32 s4, s4, 640
        s_add_u32 s{S_FB}, s28, s4
        s_addc_u32 s{S_FB+1}, s29, 0
        """)
        a(f"""
        v_subrev_u32 v1, 10, v0
        v_lshlrev_b32 v1, 2, v1
        v_add_u32 v1, s{S_W}, v1
        v_and_b32 v1, 0xff, v1
        v_mul_u32_u24 v2, 26, v1
        v_lshrrev_b32 v2, 8, v2
        v_mul_u32_u24 v3, 10, v2
        v_sub_u32 v1, v1, v3
        v_add_u32 v2, 4, v2
        v_cmp_gt_u32 vcc, 10, v0
        v_mov_b32 v3, s{S_W}
        s_mov_b32 s4, 40960
        v_cndmask_b32 v1, v1, v0, vcc
        v_cndmask_b32 v2, v2, v3, vcc
        v_cmp_gt_u32 vcc, {XORROT if XORROT else GR}, v1
        v_add_u32 v4, s{S_K0}, v1
        v_subrev_u32 v3, {GR}, v4
        {f"v_xor_b32 v4, s{S_K0}, v1" if XORROT else "v_min_u32 v4, v4, v3"}
        v_cndmask_b32 v1, v1, v4, vcc
        v_add_u32 v2, s{S_SC}, v2
        v_and_b32 v2, 7, v2
        v_add_u32 v2, s{T1}, v2
        v_mul_lo_u32 v2, v2, s4
        v_lshlrev_b32 v3, 7, v1
        v_add_u32 v{V_TX}, v2, v3
        s_mov_b32 s4, 221184
        v_mul_lo_u32 v2, v1, s4
        v_add_u32 v{V_TW}, s{T3}, v2
        s_lshr_b32 s4, s{S_W}, 1
        s_lshl_b32 s5, s{S_C}, 1
        s_add_u32 s4, s4, s5
        s_lshl_b32 s4, s4, 7
        s_lshl_b32 s5, s{S_RG}, 4
        s_add_u32 s4, s4, s5
        v_add_u32 v1, s{S_SC}, v0
        v_and_b32 v1, 7, v1
        v_lshlrev_b32 v1, 1, v1
        v_add_u32 v1, s4, v1
        v_lshlrev_b32 v{V_TH}, 10, v1
        """)
        a(f"""
        v_and_b32 v2, 31, v0
        v_lshrrev_b32 v3, 5, v0
        v_bfe_u32 v4, v0, 1, 3
        v_xor_b32 v4, v4, v3
        v_lshlrev_b32 v4, 4, v4
        v_lshl_add_u32 v{V_XR}, v2, 7, v4
        v_xor_b32 v{V_XR+1}, 32, v{V_XR}
        v_xor_b32 v{V_XR+2}, 64, v{V_XR}
        v_xor_b32 v{V_XR+3}, 96, v{V_XR}
        v_bfe_u32 v4, v0, 4, 1
        v_bfe_u32 v5, v0, 2, 2
        v_lshl_add_u32 v6, v3, 3, v5
        v_lshlrev_b32 v6, 7, v6
        v_lshl_add_u32 v6, v4, 13, v6
        v_bfe_u32 v7, v0, 3, 2
        v_xor_b32 v7, s{S_W}, v7
        v_lshl_add_u32 v6, v7, 5, v6
        v_and_b32 v7, 3, v0
        v_lshl_add_u32 v6, v7, 3, v6
        v_add_u32 v{V_WR}, 65536, v6
        s_and_b32 s4, s{S_W}, 1
        s_lshl_b32 s4, s4, 1
        v_add_u32 v6, s4, v3
        v_lshlrev_b32 v6, 8, v6
        v_lshl_add_u32 v6, v4, 10, v6
        v_and_b32 v7, 15, v0
        v_lshl_add_u32 v{V_HS}, v7, 4, v6
        """)
        a(f"""
        s_mul_i32 s4, s{S_XCD}, 28
        s_cmp_eq_u32 s{S_XCD}, 7
        s_cselect_b32 s4, 192, s4
        s_add_u32 s4, s4, s{S_J}
        s_mul_i32 s5, s4, 205
        s_lshr_b32 s5, s5, 11
        s_mul_i32 s6, s5, 10
        s_sub_u32 s{S_N}, s4, s6
        s_mul_i32 s{S_RB0}, s5, 5
        s_cmp_ge_u32 s{S_W}, 2
        s_cselect_b32 s{S_OLAST}, {OOBV}, 0
        s_mul_i32 s{S_T0}, s{S_W}, 20480
        """)
        self.p2_setup(a, 5, None)
        trL, wdM = self.wd_addr_ops(S_MW)
        for x in trL: a(x)
        self.tr(a, "setup")
        for h in dma_group(1): issue_now(h)
        self.tr(a, "dma1")

        A0, A4 = 32, 48
        ACC = [A0, 64, 80, 96, A4]
        XF = 112
        LA = 7
        def wdf(i):
            if i < 6: return ('a', 160 + 16 * i)
            if i < 11: return ('v', 144 + 16 * (i - 6))
            return ('v', 64 + 16 * (i - 11))
        HB_ = [('v', 224 + 4 * k) for k in range(6)] + [('a', 4 * k) for k in range(9)]
        def hbuf(q): return HB_[q % 15]
        def acc2(rb, nb): return ('a', 40 + (rb * 4 + nb) * 4)
        def minfo(n):
            if n < 160:
                s = n >> 4; ks = (n >> 2) & 3; b = n & 3
                return dict(stage=s, unit=b, ks=ks, wf=4*s+ks, acc=ACC[b], first=(s == 0 and ks == 0), blk=b, last=(n >= 156))
            m = n - 160; u = m >> 2; ks = m & 3
            blk = 4 + u // 10; kk = u % 10
            return dict(stage=10 + (u >> 2), unit=u & 3, ks=ks, wf=4*kk+ks, acc=ACC[4] if blk % 2 == 0 else ACC[0],
                        first=(kk == 0 and ks == 0), blk=blk, last=(kk == 9 and ks == 3))
        epi = []
        pubs = []
        stN = opt.get("stN", {0: 206, 1: 206, 2: 206, 3: 206, 4: 206, 5: 247, 6: 288, 7: 327})
        stN = {int(k): v for k, v in stN.items()}
        EP = opt.get("epr", 2)
        sts = []
        def add_epi(blk, acc, n):
            dst = acc + 8
            if blk == 0: dst = 248
            ops = []
            if exact:
                for j in range(16):
                    ops.append(("v", f"v_cvt_pk_bf16_f32 v{acc+j}, 0, v{acc+j}", acc))
            for j in range(8):
                ops.append(("v", f"v_mul_f32 v{acc+j}, v{acc+j}, v{acc+8+j}", acc))
            for d in range(4):
                ops.append(("v", f"v_cvt_pk_bf16_f32 v{dst+d}, v{acc+2*d}, v{acc+2*d+1}", acc))
            ops.insert(0, ("r", f"v_readlane_b32 s{S_HS8+blk}, v{V_TH}, {blk}", acc))
            ops.append(("s", f"buffer_store_dwordx4 {R('v',dst)}, v{V_HS}, {sH}, s{S_HS8+blk} offen {hpol}", blk))
            for o in ops: epi.append((n + 3, o))
        def run_epi(n):
            cnt = EP if n < 200 else EP + 1
            while epi and epi[0][0] <= n and (cnt > 0 or epi[0][1][0] == "s"):
                _, (kind, ins, x) = epi.pop(0)
                if kind == "v":
                    a.after_mfma(x, 13); a(ins); cnt -= 1
                elif kind == "r":
                    a(ins); cnt -= 1
                else:
                    sts.append((stN[x], ins, x))
            while sts and sts[0][0] <= n:
                _, ins, x = sts.pop(0)
                if opt.get("nohst"): continue
                a.vmi(ins, ("hst", x))
                if x >= 3: pubs.append((max(0, x - 3), ("hst", x)))
        def pub_ready():
            return bool(pubs) and a.vm_covered(pubs[0][1])
        def run_pub():
            ks = []
            while pub_ready(): ks.append(pubs.pop(0)[0])
            if ks:
                a(f"s_cmp_lg_u32 s{S_W}, 0")
                a(f"s_cbranch_scc1 L_pub_{ks[0]}")
                for k in ks: a(f"s_atomic_swap s{S_NON}, s[{S_FB}:{S_FB+1}], {128*k}")
                a(f"L_pub_{ks[0]}:")
        def wd_trs(i, ldsoff):
            return [(f"ds_read_b64_tr_b16 {RR(off(wdf(i), nb*4+2*rd), 2)}, v{V_DR+nb} offset:{ldsoff + rd*1024}", ("wd", i, nb)) for nb in range(4) for rd in range(2)]
        trq = []; misc = []
        WG = opt.get("waitgran", 2)
        order = self.p2_plan(5); LAH = self.LAH(5); seen = set()
        hq = 0
        a(dma_group(2)[0]["rl"])
        for n in range(-LA, 320):
            if n >= 0:
                mi = minfo(n)
                if n % WG == 0:
                    needs = [("x", min(319, n + WG - 1))]
                    if n < 160 and mi["unit"] == 0: needs.append(("w", mi["wf"]))
                    a.need(lg=needs)
                acc = mi["acc"]; xf = XF + (n & 7) * 4
                c = "0" if mi["first"] else R("v", acc, 16)
                a.mfma(f"v_mfma_f32_32x32x16_bf16 {R('v',acc,16)}, {R('a',mi['wf']*4)}, {R('v',xf)}, {c}", acc)
                if mi["last"]: add_epi(mi["blk"], acc, n)
                if n == 0: self.stamp(a, 3)
                if n == 159: self.stamp(a, 4)
            nn = n + LA
            s = nn >> 4; gp = nn & 15
            grp = dma_group(s + 2)
            if gp == 0:
                assert not trq
                if s < 20:
                    tags = [("dma", s)]
                    if s >= 10: tags.append(("wdd", s - 10))
                    a.need(vm=tags)
                    a("s_barrier")
                    if s == 0: self.stamp(a, 2)
                    run_pub()
                    self.tr(a, f"B{s}")
                    if s >= 10: trq = wd_trs(s - 10, (s % 4) * 16384)
                else:
                    a.need(vm=("wdd", 10))
                    trq = wd_trs(10, 0)
                if s == 8: misc += wdM
                if s == 2: misc.append(("nonce_ld",))
                if s == 6: misc.append(("nonce_get",))
                if s == 18: misc.append(("poll", [0, 1]))
                if s == 19: misc.append(("poll", [2, 3]))
            h = grp[gp >> 3]
            if h and gp % 8 == 0: a(h["m0"])
            if gp == 4 and grp[1]: a(grp[1]["rl"])
            if gp == 12 and dma_group(s + 3)[0]: a(dma_group(s + 3)[0]["rl"])
            if nn < 320:
                mi = minfo(nn)
                slot = mi["stage"] % 4
                a.lgi(f"ds_read_b128 {R('v', XF + (nn & 7)*4)}, v{V_XR+mi['ks']} offset:{slot*16384 + mi['unit']*4096}", ("x", nn))
                if nn < 160 and mi["unit"] in (0, 2):
                    rd = mi["unit"] >> 1
                    a.lgi(f"ds_read_b64_tr_b16 {R('a', mi['wf']*4+2*rd, 2)}, v{V_WR} offset:{slot*16384 + mi['ks']*2048 + rd*512}", ("w", mi["wf"]))
            if trq and (nn % 2 == 0 or nn >= 320):
                ins, tag = trq.pop(0); a.lgi(ins, tag)
            k = 2
            while misc and k > 0:
                x = misc.pop(0); k -= 1
                if x == ("nonce_ld",): a.vmi(f"buffer_load_dword v{V_NON}, off, {sG}, 0 sc1", "nonce")
                elif x == ("nonce_get",): self.nonce_get(a, "n")
                elif x[0] == "poll": self.poll(a, x[1])
                else: a(x)
            if h and gp % 2 == 1:
                d = a.n - a.last_rl
                if gp % 8 == 1 and d < 5: a(f"s_nop {4-d}")
                ins, tag = h["ins"][(gp & 7) >> 1]; a.vmi(ins, tag)
            if s >= 19 and hq < LAH:
                if gp % 2 == 0: self.h_pre(a, hq, order, "n", seen)
                else: self.h_issue(a, hq, order, hbuf, "n", seen); hq += 1
            run_epi(n)
        self.stamp(a, 5)
        while trq:
            ins, tag = trq.pop(0); a.lgi(ins, tag)
        while hq < LAH:
            self.h_pre(a, hq, order, "n", seen); self.h_issue(a, hq, order, hbuf, "n", seen); hq += 1
        st = dict(q=[], tr=[])
        def extra(q, nb):
            n = 320 + (q * 4 + nb) // 2
            run_epi(n)
            if nb == 0 and pub_ready():
                if pubs[0][0] == 4: a.need(lg=("wd", 11, 3))
                a("s_barrier"); run_pub()
            if q == 5 and nb == 0:
                a.need(vm=("wdd", 11)); st["tr"] = wd_trs(11, 16384)
            if opt.get("nohst") and q == 14 and nb == 0:
                a.need(lg=("wd", 11, 3)); a("s_barrier")
            for (q0, i, lo) in ((6, 12, 2), (22, 13, 3)):
                hh = four("d", 0, 10 + i, lo * 16384, ("wdd", i))
                if q == q0 and nb == 0: a(hh["rl"]); a(hh["m0"])
                if q0 < q <= q0 + 13 and (q - q0) % 4 == 1 and nb == 1:
                    ins, tag = hh["ins"][(q - q0) // 4]; a.vmi(ins, tag)
                if q == q0 + 25 and nb == 0:
                    a.need(vm=("wdd", i)); st["tr"] = wd_trs(i, lo * 16384)
            if st["tr"] and nb in (0, 2):
                ins, tag = st["tr"].pop(0); a.lgi(ins, tag)
        self.p2_main(a, 5, "n", acc2, hbuf, wdf, extra, 20480, S_T0, seen)
        assert not epi and not pubs and not sts

    def prefetch_miss(self, a):
        dl = self.opt.get("delta", 0)
        a(f"""
        s_cmp_ge_u32 s{S_XCD}, 6
        s_cselect_b32 s{T1}, 24, 28
        s_cselect_b32 s{S_SC}, 1, 0
        s_sub_u32 s{T1}, s{S_J}, s{T1}
        s_lshl_b32 s{T1}, s{T1}, 2
        s_add_u32 s{T1}, s{T1}, s{S_W}
        s_lshr_b32 s{T2}, s{T1}, 4
        s_and_b32 s{T1}, s{T1}, 15
        s_lshr_b32 s{T3}, s{S_XCD}, 1
        s_and_b32 s4, s{S_XCD}, 1
        s_mul_i32 s4, s4, {dl}
        s_add_u32 s4, s4, 4
        v_and_b32 v2, 7, v0
        v_add_u32 v3, s4, v2
        v_mul_u32_u24 v4, 52, v3
        v_lshrrev_b32 v4, 8, v4
        v_mul_u32_u24 v4, 5, v4
        v_sub_u32 v3, v3, v4
        v_lshlrev_b32 v3, 7, v3
        v_lshrrev_b32 v1, 3, v0
        v_add_u32 v1, v1, v3
        v_mul_u32_u24 v1, 3456, v1
        v_lshl_add_u32 v1, v2, 7, v1
        v_cmp_eq_u32 vcc, 7, v2
        v_mov_b32 v3, {OOBV}
        s_mul_i32 s4, s{T1}, {8*3456}
        v_cndmask_b32 v1, v1, v3, vcc
        s_mul_i32 s5, s{T3}, 896
        s_add_u32 s4, s4, s5
        s_cmp_eq_u32 s{T2}, 1
        s_cselect_b32 s12, s64, s6
        s_cselect_b32 s13, s65, s7
        buffer_load_dword v254, v1, {sW}, s4 offen
        s_cmp_eq_u32 s{S_SC}, 1
        s_cbranch_scc1 L_pm_done
        s_mov_b32 s12, s64
        s_mov_b32 s13, s65
        buffer_load_dword v254, v1, {sW}, s4 offen
        L_pm_done:
        """)
    def prefetch_even(self, a):
        pf = self.opt["pfe"]
        wpol = self.opt.get("pfwpol", "")
        a(f"""
        s_lshl_b32 s{T1}, s{S_K0}, 2
        s_add_u32 s{T1}, s{T1}, s{S_W}
        s_cmp_ge_u32 s{T1}, 80
        s_cselect_b32 s12, s64, s6
        s_cselect_b32 s13, s65, s7
        s_cselect_b32 s{T2}, 80, 0
        s_sub_u32 s{T2}, s{T1}, s{T2}
        s_mul_i32 s{T2}, s{T2}, 22
        v_add_u32 v1, s{T2}, v0
        v_mov_b32 v3, {OOBV}
        v_cmp_gt_u32 vcc, 1728, v1
        v_cmp_gt_u32 s[4:5], 22, v0
        v_lshlrev_b32 v1, 7, v1
        s_and_b64 vcc, vcc, s[4:5]
        s_mul_i32 s{T2}, s{T1}, 13
        v_cndmask_b32 v1, v3, v1, vcc
        v_add_u32 v2, s{T2}, v0
        v_cmp_gt_u32 vcc, 13, v0
        v_mul_u32_u24 v2, 1280, v2
        s_mov_b32 s4, {pf*221184}
        s_mov_b32 s5, {pf*128}
        v_cndmask_b32 v2, v3, v2, vcc
        L_pf:
        buffer_load_dword v254, v1, {sW}, s4 offen {wpol}
        buffer_load_dword v254, v2, {sX}, s5 offen
        s_add_u32 s4, s4, 221184
        s_add_u32 s5, s5, 128
        s_cmp_lt_u32 s5, 1280
        s_cbranch_scc1 L_pf
        """)
    def prefetch(self, a):
        if self.opt.get("pfm"): return self.prefetch_miss(a)
        if "pfe" in self.opt: return self.prefetch_even(a)
        pf = self.opt.get("pf")
        if pf is None: return
        wpol = self.opt.get("pfwpol", "")
        a(f"""
        s_cmp_ge_u32 s{S_XCD}, 6
        s_cselect_b32 s{T1}, 24, 28
        s_cselect_b32 s{S_SC}, 2, 1
        s_sub_u32 s{T1}, s{S_J}, s{T1}
        s_lshl_b32 s{T1}, s{T1}, 2
        s_add_u32 s{T1}, s{T1}, s{S_W}
        s_lshr_b32 s{T2}, s{T1}, 4
        s_and_b32 s{T1}, s{T1}, 15
        s_bitcmp1_b32 s{S_XCD}, 0
        s_cselect_b32 s12, s64, s6
        s_cselect_b32 s13, s65, s7
        s_lshr_b32 s{T3}, s{S_XCD}, 1
        v_lshrrev_b32 v1, 3, v0
        v_and_b32 v2, 7, v0
        v_mul_u32_u24 v1, 3456, v1
        v_lshl_add_u32 v1, v2, 7, v1
        v_cmp_eq_u32 vcc, 7, v2
        v_mov_b32 v3, {OOBV}
        s_mul_i32 s4, s{T1}, {8*3456}
        v_cndmask_b32 v1, v1, v3, vcc
        s_mul_i32 s5, s{T3}, 896
        s_add_u32 s4, s4, s5
        s_mul_i32 s5, s{T2}, {128*3456}
        s_add_u32 s4, s4, s5
        s_add_u32 s{S_WSO}, s4, {pf*64*3456}
        v_and_b32 v2, 15, v0
        v_mul_u32_u24 v2, 1280, v2
        v_bfe_u32 v4, v0, 4, 1
        v_lshl_add_u32 v2, v4, 7, v2
        v_cmp_le_u32 vcc, 32, v0
        s_and_b32 s4, s{S_XCD}, 1
        s_lshl_b32 s4, s4, 2
        v_cndmask_b32 v2, v2, v3, vcc
        s_add_u32 s4, s4, s{T3}
        s_lshl_b32 s4, s4, 4
        s_add_u32 s4, s4, s{T1}
        s_mul_i32 s4, s4, 20480
        s_lshl_b32 s5, s{T2}, 8
        s_add_u32 s4, s4, s5
        s_add_u32 s{S_XSO}, s4, {pf*128}
        s_mul_i32 s4, s{S_SC}, {128*3456}
        s_lshl_b32 s5, s{S_SC}, 8
        s_lshl_b32 s6, s{T2}, 1
        s_add_u32 s6, s6, {pf}
        s_lshl_b32 s7, s{S_SC}, 1
        L_pf:
        buffer_load_dword v254, v1, {sW}, s{S_WSO} offen {wpol}
        buffer_load_dword v254, v2, {sX}, s{S_XSO} offen
        s_add_u32 s{S_WSO}, s{S_WSO}, s4
        s_add_u32 s{S_XSO}, s{S_XSO}, s5
        s_add_u32 s6, s6, s7
        s_cmp_lt_u32 s6, 10
        s_cbranch_scc1 L_pf
        """)
    def prefetch_wd(self, a):
        if not self.opt.get("pfd"): return
        a(f"""
        s_lshl_b32 s4, s{S_K0}, 2
        s_add_u32 s4, s4, s{S_W}
        s_mul_i32 s4, s4, {108*128}
        v_lshlrev_b32 v1, 7, v0
        v_cmp_le_u32 vcc, 54, v0
        v_mov_b32 v3, {OOBV}
        s_add_u32 s5, s4, {54*128}
        v_cndmask_b32 v1, v1, v3, vcc
        buffer_load_dword v254, v1, {sD}, s4 offen
        buffer_load_dword v254, v1, {sD}, s5 offen
        """)

    def free(self, a):
        a(f"""
        s_lshl_b32 s{T0}, s{S_XCD}, 2
        s_add_u32 s{T0}, s{T0}, s{S_J}
        s_sub_u32 s{T0}, s{T0}, 28
        s_cmp_eq_u32 s{S_XCD}, 6
        s_cselect_b32 s{T0}, s{S_J}, s{T0}
        s_add_u32 s{T1}, s{S_J}, 8
        s_cmp_eq_u32 s{S_XCD}, 7
        s_cselect_b32 s{T0}, s{T1}, s{T0}
        s_mov_b32 s{S_K0}, s{T0}
        s_mul_i32 s{T1}, s{T0}, 26
        s_lshr_b32 s{T1}, s{T1}, 8
        s_mul_i32 s{T2}, s{T1}, 10
        s_sub_u32 s{S_N}, s{T0}, s{T2}
        s_mul_i32 s{S_RB0}, s{T1}, 6
        s_add_u32 s{S_RB0}, s{S_RB0}, 110
        s_add_u32 s{T2}, s{S_N}, 6
        s_cmp_ge_u32 s{T0}, 30
        s_cselect_b32 s{S_N}, s{T2}, s{S_N}
        s_cselect_b32 s{S_RB0}, 105, s{S_RB0}
        s_cselect_b32 s{S_OLAST}, {OOBV}, 0
        s_cmp_ge_u32 s{S_W}, 2
        s_cselect_b32 s{S_OLAST}, s{S_OLAST}, 0
        s_lshl_b32 s{S_MW}, s{S_W}, 15
        v_mov_b32 v{V_TW}, 0
        v_mov_b32 v{V_TH}, 0
        """)
        self.srds(a)
        self.prefetch(a)
        self.srds2(a)
        self.prefetch_wd(a)
        a(f"s_cmp_ge_u32 s{S_K0}, {0 if self.opt.get('nofree') else 34}\ns_cbranch_scc1 L_end")
        self.p2_setup(a, 6, None)
        trL, wdM = self.wd_addr_ops(S_MW)
        for x in trL + wdM: a(x)
        def wdf(i): return ('a', 16 * i)
        def hbuf(q): return ('v', 128 + 4 * (q % 18))
        def acc2(rb, nb): return ('v', 32 + (rb * 4 + nb) * 4)
        def wdg(i):
            a(f"v_readlane_b32 s{S_WSO}, v{V_TW}, {10+i}")
            a(f"s_add_u32 m0, s{S_MW}, {(i%8)*4096}")
            a("s_nop 3")
            for k in range(4):
                a.vmi(f"buffer_load_dwordx4 v{V_WD+k}, {sD}, s{S_WSO} offen offset:{1024*k} lds", ("wdd", i))
        for i in range(4): wdg(i)
        for i in range(14):
            a.need(vm=("wdd", i))
            for nb in range(4):
                for rd in range(2):
                    a.lgi(f"ds_read_b64_tr_b16 {RR(off(wdf(i), nb*4+2*rd), 2)}, v{V_DR+nb} offset:{(i%8)*4096 + rd*1024}", ("wd", i, nb))
            if i >= 3: a.need(lg=("wd", i - 3, 3))
            if i + 4 < 14: wdg(i + 4)
        a.vmi(f"buffer_load_dword v{V_NON}, off, {sG}, 0 sc1", "nonce")
        self.nonce_get(a, "f")
        self.stamp(a, 4)
        self.poll(a, [0, 1, 2, 3])
        order = self.p2_plan(6); seen = set()
        for q in range(self.LAH(6)):
            self.h_pre(a, q, order, "f", seen); self.h_issue(a, q, order, hbuf, "f", seen)
        self.stamp(a, 5)
        self.p2_main(a, 6, "f", acc2, hbuf, wdf, lambda q, nb: None, 32768, S_MW, seen)

    def gen(self):
        a = SBX()
        if self.st: a("s_memrealtime s[96:97]")
        self.stamp(a, 0)
        a(f"""
        s_load_dwordx4 s[4:7], s[0:1], 0
        s_load_dwordx4 s[64:67], s[0:1], 16
        s_load_dwordx4 s[24:27], s[0:1], 32
        s_load_dwordx2 s[68:69], s[0:1], 48
        s_cmp_ge_u32 s2, 256
        s_cbranch_scc1 L_end
        v_lshrrev_b32 v1, 6, v0
        v_and_b32 v0, 63, v0
        s_and_b32 s{S_XCD}, s2, 7
        v_readfirstlane_b32 s{S_W}, v1
        s_lshr_b32 s{S_J}, s2, 3
        s_cmp_ge_u32 s{S_XCD}, 6
        s_cselect_b32 s{T0}, 24, 28
        s_cmp_ge_u32 s{S_J}, s{T0}
        s_cbranch_scc1 L_free
        """)
        n = SBX(); self.tr(n, "start"); self.normal(n); self.tr(n, "ost"); n.wait_all(); self.tr(n, "end"); self.tr_out(n); n("s_branch L_fin")
        f = SBX(); self.free(f); f.wait_all()
        a.lines += n.lines; a.label("L_free"); a.lines += f.lines
        a.label("L_fin")
        self.stamp(a, 8)
        self.stamps_out(a, 6)
        a("L_end:\ns_endpgm")
        for s in self.slow: a(s)
        return a.text()

class SBX(SB):
    last_rl = -100
    def __call__(self, s):
        for l in s.split("\n"):
            super().__call__(l)
            if l.strip().startswith("v_readlane"): self.last_rl = self.n

def gen(opt):
    g = G(opt)
    body = g.gen()
    body = "; TRACE " + " ".join(g.trn) + "\n" + body
    if "probe" in opt:
        import gen1
        LL = [f"kernel=main_kernel grid=(256,1,1) block=(256,1,1) lds=131072", "kernel=pr_kernel grid=(1,1,1) block=(64,1,1) lds=0"]
        t = header(LL) + kernel_begin("main_kernel") + body
        t += kernel_begin("pr_kernel") + gen1.gen_probe(opt) + kernel_desc("pr_kernel", vgpr=8, accum=8)
        t += kernel_desc("main_kernel", vgpr=512, accum=256)
        return t
    return header(["grid=(256,1,1) block=(256,1,1) lds=131072"]) + kernel_begin(KNAME) + body + kernel_desc(KNAME, vgpr=512, accum=256)

if __name__ == "__main__":
    import json
    opt = json.loads(sys.argv[2]) if len(sys.argv) > 2 else {}
    open(sys.argv[1], "w").write(gen(opt))
```

```python
import sys
from sb import SB
from asmlib import header, kernel_begin, kernel_desc, KNAME

XB, WB, HB, OB = 2621440, 2211840, 54*128*1024, 2621440
FLAG_OFF, FLAG_B = 0x800000, 8*27*640
STAMP_OFF = 0x4000000
OOBV = 0x7ff00000

def R(p, a, n=4): return f"{p}[{a}:{a+n-1}]"
def RR(r, n=4): return R(r[0], r[1], n)
def off(r, k): return (r[0], r[1] + k)

sX, sW, sH, sD, sO, sF, sG = "s[8:11]", "s[12:15]", "s[16:19]", "s[20:23]", "s[24:27]", "s[28:31]", "s[32:35]"
S_W, S_C, S_RG, S_SC, S_K0 = 36, 37, 38, 39, 40
S_RB0, S_N, S_T0 = 41, 42, 43
S_MX, S_MW = 44, 45
S_XSO, S_WSO, S_HSO, S_HLD = 46, 47, 48, 49
S_NON = 50
S_TO = 52
S_OSO = 53
S_J, S_XCD = 54, 55
S_OLAST = 56
S_HL = 57
S_HS8 = 82
S_FB = 64
T0, T1, T2, T3 = 60, 61, 62, 63
V_XD, V_WD, V_XR, V_WR, V_HS = 8, 12, 16, 20, 21
V_TX, V_TW, V_TH = 22, 23, 24
V_FO, V_F, V_FS, V_NON = 25, 26, 28, 29
V_HL0, V_HL1 = 30, 31
V_DR = 4

class G:
    def __init__(self, opt):
        self.opt = opt
        self.st = opt.get("stamps", 0)
        self.slow = []
        self.trn = []
        self.sm = {0: 0, 2: 1, 4: 2, 5: 3, 7: 4, 8: 5}
        self.VTR = 255
    def stamp(self, a, i):
        if self.st == 2: a(f"s_memrealtime s[{70+2*self.sm[i]}:{71+2*self.sm[i]}]") if i in self.sm else None
        elif self.st: a(f"s_memtime s[{70+2*self.sm[i]}:{71+2*self.sm[i]}]") if i in self.sm else None

    def tr(self, a, name):
        if not self.opt.get("trace"): return
        i = len(self.trn)
        p = 90 + 2 * (i % 3)
        if i >= 2:
            a(f"v_writelane_b32 v{self.VTR}, s{90 + 2 * ((i - 2) % 3)}, {i-2}")
        a(f"{'s_memrealtime' if self.opt.get('trace') == 2 else 's_memtime'} s[{p}:{p+1}]")
        self.trn.append(name)
    def tr_out(self, a):
        if not self.opt.get("trace"): return
        n = len(self.trn)
        a("s_waitcnt lgkmcnt(0)")
        for i in (n - 2, n - 1):
            a(f"v_writelane_b32 v{self.VTR}, s{90 + 2 * (i % 3)}, {i}")
        a(f"""
        s_mov_b32 s16, s68
        s_mov_b32 s17, s69
        s_mov_b32 s18, 0x10000000
        s_mov_b32 s19, 0x00020000
        s_lshl_b32 s3, s2, 2
        s_add_u32 s3, s3, s{S_W}
        s_lshl_b32 s3, s3, 8
        s_add_u32 s3, s3, {STAMP_OFF + 0x100000}
        v_lshlrev_b32 v1, 2, v0
        buffer_store_dword v{self.VTR}, v1, s[16:19], s3 offen
        """)
    def stamps_out(self, a, nst):
        if not self.st: return
        a(f"""
        s_memrealtime s[98:99]
        s_waitcnt lgkmcnt(0)
        s_load_dwordx2 s[4:5], s[0:1], 48
        s_waitcnt lgkmcnt(0)
        s_mov_b32 s8, s4
        s_mov_b32 s9, s5
        s_mov_b32 s10, 0x10000000
        s_mov_b32 s11, 0x00020000
        s_lshl_b32 s3, s2, 2
        s_add_u32 s3, s3, s{S_W}
        s_lshl_b32 s3, s3, 6
        s_add_u32 s3, s3, {STAMP_OFF}
        v_mov_b32 v1, s3
        """)
        for i in range(1, nst):
            a(f"s_sub_u32 s4, s{70+2*i}, s70")
            a(f"v_mov_b32 v2, s4")
            a(f"buffer_store_dword v2, v1, s[8:11], 0 offen offset:{4*i}")
        a(f"v_mov_b32 v2, s{S_TO}")
        a(f"buffer_store_dword v2, v1, s[8:11], 0 offen offset:52")
        a(f"v_mov_b32 v2, s96")
        a(f"buffer_store_dword v2, v1, s[8:11], 0 offen offset:56")
        a(f"v_mov_b32 v2, s98")
        a(f"buffer_store_dword v2, v1, s[8:11], 0 offen offset:60")

    def p2_setup(self, a, nblk, ldsbase_shift):
        a(f"""
        s_lshr_b32 s{T0}, s{S_RB0}, 1
        s_add_u32 s{T1}, s{S_RB0}, {nblk-1}
        s_lshr_b32 s{T1}, s{T1}, 1
        s_and_b32 s{T2}, s{T0}, 7
        s_mul_i32 s{T2}, s{T2}, 27
        s_add_u32 s{T2}, s{T2}, {27+7-8}
        s_lshr_b32 s{T2}, s{T2}, 3
        s_lshr_b32 s{T3}, s{S_W}, 1
        s_sub_u32 s{T2}, s{T2}, s{T3}
        """)
        if not self.opt.get("browrot", 1):
            a(f"s_sub_u32 s{T2}, 26, s{T3}")
        a(f"""
        v_lshrrev_b32 v1, 1, v0
        v_lshlrev_b32 v1, 1, v1
        s_add_u32 s{T3}, s{T2}, 27
        v_sub_u32 v1, s{T3}, v1
        v_subrev_u32 v2, 27, v1
        v_min_u32 v1, v1, v2
        """)
        if self.opt.get("browrot", 1):
            a("v_mul_u32_u24 v2, 19, v1\nv_lshrrev_b32 v2, 6, v2")
        else:
            a("v_mov_b32 v2, 0")
        a(f"""
        s_lshr_b32 s4, s{T0}, 3
        s_lshr_b32 s5, s{T1}, 3
        s_and_b32 s6, s{T0}, 7
        s_and_b32 s7, s{T1}, 7
        s_cmp_eq_u32 s4, s5
        s_cselect_b32 s{T0}, s7, 7
        s_cselect_b32 s{T1}, s6, 0
        v_and_b32 v3, 1, v0
        v_cmp_eq_u32 vcc, 1, v3
        v_mov_b32 v3, s6
        v_mov_b32 v{V_F}, s{T1}
        v_cndmask_b32 v3, v3, v{V_F}, vcc
        v_sub_u32 v3, v3, v2
        v_and_b32 v3, 7, v3
        v_mov_b32 v{V_FO}, s{T0}
        v_mov_b32 v{V_F}, s7
        v_cndmask_b32 v{V_FO}, v{V_FO}, v{V_F}, vcc
        v_sub_u32 v{V_FO}, v{V_FO}, v2
        v_and_b32 v{V_FO}, 7, v{V_FO}
        v_mov_b32 v2, s4
        v_mov_b32 v{V_F}, s5
        v_cndmask_b32 v2, v2, v{V_F}, vcc
        v_cmp_ge_u32 vcc, v{V_FO}, v3
        v_mul_u32_u24 v2, 27, v2
        v_add_u32 v2, v2, v1
        v_cndmask_b32 v3, 7, v{V_FO}, vcc
        v_max_u32 v3, 3, v3
        v_subrev_u32 v3, 3, v3
        v_mul_u32_u24 v2, 640, v2
        s_and_b32 s4, s{S_W}, 1
        v_lshl_add_u32 v{V_FO}, v3, 7, v2
        v_mov_b32 v{V_F}, 0
        """)
        a(f"""
        s_lshl_b32 s{T2}, s{T2}, 1
        s_add_u32 s{T2}, s{T2}, s4
        s_add_u32 s{T2}, s{T2}, {54+40}
        v_lshlrev_b32 v1, 2, v0
        v_sub_u32 v1, s{T2}, v1
        v_subrev_u32 v2, 54, v1
        v_min_u32 v1, v1, v2
        s_cmp_ge_u32 s{S_W}, 2
        s_cselect_b32 s4, 23, 99
        v_cmp_eq_u32 vcc, s4, v0
        s_mov_b32 s5, 40960
        s_lshl_b32 s6, s{S_N}, 7
        s_lshl_b32 s7, s{S_RB0}, 10
        v_mul_lo_u32 v2, v1, s5
        v_add_u32 v2, s6, v2
        v_lshlrev_b32 v3, 17, v1
        v_add_u32 v3, s7, v3
        v_mov_b32 v1, {WB}
        v_cndmask_b32 v2, v2, v1, vcc
        v_mov_b32 v1, {HB}
        v_cndmask_b32 v3, v3, v1, vcc
        v_cmp_le_u32 vcc, 10, v0
        s_nop 1
        v_cndmask_b32 v{V_TW}, v{V_TW}, v2, vcc
        v_cndmask_b32 v{V_TH}, v{V_TH}, v3, vcc
        """)
        a(f"""
        v_lshlrev_b32 v{V_HL0}, 4, v0
        v_add_u32 v{V_HL1}, 4096, v{V_HL0}
        s_mul_i32 s{S_OSO}, s{S_RB0}, 20480
        s_add_u32 s{S_OSO}, s{S_OSO}, s6
        """)

    def wd_addr_ops(self, base_expr_sgpr):
        L = f"""
        v_lshrrev_b32 v1, 5, v0
        v_lshlrev_b32 v1, 4, v1
        v_bfe_u32 v2, v0, 2, 3
        v_add_u32 v1, v1, v2
        v_lshlrev_b32 v1, 7, v1
        v_lshrrev_b32 v2, 1, v2
        v_lshlrev_b32 v2, 5, v2
        v_and_b32 v3, 3, v0
        v_lshlrev_b32 v3, 3, v3
        v_add3_u32 v1, v1, v2, v3
        v_add_u32 v{V_DR}, s{base_expr_sgpr}, v1
        v_xor_b32 v{V_DR+1}, 32, v{V_DR}
        v_xor_b32 v{V_DR+2}, 64, v{V_DR}
        v_xor_b32 v{V_DR+3}, 96, v{V_DR}
        """
        M = f"""
        v_lshrrev_b32 v1, 4, v0
        v_lshlrev_b32 v1, 1, v1
        v_and_b32 v2, 7, v0
        v_xor_b32 v1, v1, v2
        v_lshlrev_b32 v1, 4, v1
        v_lshrrev_b32 v2, 3, v0
        v_mul_u32_u24 v2, 1280, v2
        v_add_u32 v{V_WD}, v1, v2
        v_add_u32 v{V_WD+1}, {8*1280-1024}, v{V_WD}
        v_add_u32 v{V_WD+2}, {2*(8*1280-1024)}, v{V_WD}
        v_add_u32 v{V_WD+3}, {3*(8*1280-1024)}, v{V_WD}
        """
        f = lambda s: [x.strip() for x in s.split("\n") if x.strip()]
        return f(L), f(M)

    def poll(self, a, slots):
        m = 0
        for i in slots: m |= 3 << (2 * i)
        a(f"s_mov_b64 exec, {m:#x}")
        a.vmi(f"buffer_load_dword v{V_F}, v{V_FO}, {sF}, 0 offen sc1", None)
        for x in slots: a.alias(("poll", x))
        a("s_mov_b64 exec, -1")
    def check(self, a, i, tag, uid):
        m = 3 << (2 * i)
        a.need(vm=tag)
        a(f"L_chk_{uid}_{i}:")
        a(f"v_cmp_eq_u32 vcc, s{S_NON}, v{V_F}")
        a(f"s_andn2_b32 s{T0}, {m:#x}, vcc_lo")
        if not self.opt.get("nochk"): a(f"s_cbranch_scc1 L_slow_{uid}_{i}")
        a(f"L_ok_{uid}_{i}:")
        self.slow.append(f"""
        L_slow_{uid}_{i}:
        s_cmp_eq_u32 s{S_TO}, 0
        s_cbranch_scc1 L_ok_{uid}_{i}
        s_sub_u32 s{S_TO}, s{S_TO}, 1
        s_sleep {self.opt.get("sleepf", 8) if uid == "f" and i < 6 else self.opt.get("sleepn", 1)}
        s_mov_b64 exec, {(0x3f << (2*i)) & 0xfffffff:#x}
        buffer_load_dword v{V_F}, v{V_FO}, {sF}, 0 offen sc1
        s_mov_b64 exec, -1
        s_waitcnt vmcnt(0)
        s_branch L_chk_{uid}_{i}
        """)
    def nonce_get(self, a, uid):
        a.need(vm="nonce")
        a(f"L_nchk_{uid}:")
        a(f"v_readfirstlane_b32 s{S_NON}, v{V_NON}")
        a(f"s_cmp_eq_u32 s{S_NON}, 0")
        a(f"s_cbranch_scc1 L_nslow_{uid}")
        a(f"L_nok_{uid}:")
        self.slow.append(f"""
        L_nslow_{uid}:
        s_cmp_eq_u32 s{S_TO}, 0
        s_cbranch_scc1 L_nok_{uid}
        s_sub_u32 s{S_TO}, s{S_TO}, 1
        buffer_load_dword v{V_NON}, off, {sG}, 0 sc1
        s_waitcnt vmcnt(0)
        s_branch L_nchk_{uid}
        """)

    def p2_plan(self, nblk):
        G = self.opt.get("tailg", 3)
        order = [(i, rb) for i in range(14 - G) for rb in range(nblk)]
        order += [(i, rb) for rb in range(nblk) for i in range(14 - G, 14)]
        return order
    def h_issue(self, a, q, order, hbuf, uid, seen):
        i, rb = order[q]
        hp = self.opt.get("hldpol", "sc1")
        v = V_HL0 if rb < 4 else V_HL1
        d = a.n - a.last_rl
        if d < 5: a(f"s_nop {4-d}")
        a.vmi(f"buffer_load_dwordx4 {RR(hbuf(q))}, v{v}, {sH}, s{S_HL + i % 3} offen offset:{1024*(rb%4)} {hp}", ("h", q))
    def h_pre(self, a, q, order, uid, seen):
        i, rb = order[q]
        if i not in seen:
            seen.add(i)
            a(f"v_readlane_b32 s{S_HL + i % 3}, v{V_TH}, {10+i}")
            self.check(a, i, ("poll", i), uid)
    def p2_main(self, a, nblk, uid, acc, hbuf, wdf, extra, REG, sreg, seen):
        order = self.p2_plan(nblk)
        LAH = self.LAH(nblk); PD = self.opt.get("pd", LAH)
        NF = len(order)
        first = {}
        for q, (i, rb) in enumerate(order): first.setdefault(i, q)
        pollpos = {}
        for i in range(self.P0, 14):
            pollpos.setdefault(max(0, first[i] - LAH - PD), []).append(i)
        lastq = {}
        for q, (i, rb) in enumerate(order): lastq[rb] = q
        wq = []
        VW, VR = 16, 8
        started = set()
        for q, (i, rb) in enumerate(order):
            if uid == "n" and q % nblk == 0: self.tr(a, f"S{q//nblk}")
            for nb in range(4):
                a.need(vm=("h", q), lg=("wd", i, nb))
                ac = acc(rb, nb)
                c = RR(ac) if (rb, nb) in started else "0"
                started.add((rb, nb))
                a.mfma(f"v_mfma_f32_16x16x32_bf16 {RR(ac)}, {RR(off(wdf(i), nb*4))}, {RR(hbuf(q))}, {c}", ac)
                if nb == 0:
                    if q in pollpos:
                        self.poll(a, pollpos[q])
                if nb == 1 and q + LAH < NF: self.h_pre(a, q + LAH, order, uid, seen)
                if nb == 3 and q + LAH < NF: self.h_issue(a, q + LAH, order, hbuf, uid, seen)
                if wq and wq[0][0] <= q * 4 + nb:
                    _, r2, n2 = wq.pop(0)
                    a.after_mfma(acc(r2, n2), 9)
                    a.lgi(f"ds_write_b128 v{VW + (n2 & 1)}, {RR(acc(r2, n2))} offset:{r2*4096 + (n2 >> 1)*128}", "red")
                extra(q, nb)
                if q == NF - 8 * nblk // 2 and nb == 2:
                    a(f"""
                    v_and_b32 v1, 15, v0
                    v_lshrrev_b32 v2, 4, v0
                    v_and_b32 v3, 7, v0
                    v_xor_b32 v2, v2, v3
                    v_lshlrev_b32 v2, 4, v2
                    v_lshl_add_u32 v1, v1, 8, v2
                    v_add_u32 v{VW}, s{sreg}, v1
                    v_xor_b32 v{VW+1}, 64, v{VW}
                    """)
                if q == NF - 8 * nblk // 2 + 1 and nb == 2:
                    a(f"""
                    v_lshrrev_b32 v1, 3, v0
                    v_lshlrev_b32 v2, 1, v3
                    v_xor_b32 v2, v2, v1
                    v_lshlrev_b32 v2, 4, v2
                    s_lshl_b32 s{T1}, s{S_W}, 3
                    v_add_u32 v1, s{T1}, v1
                    v_lshl_add_u32 v{VR}, v1, 8, v2
                    v_xor_b32 v{VR+1}, 16, v{VR}
                    """)
                if q == NF - 8 * nblk // 2 + 2 and nb == 2:
                    a(f"""
                    v_add_u32 v{VR+2}, {2*REG}, v{VR}
                    v_add_u32 v{VR+3}, {2*REG}, v{VR+1}
                    v_mul_u32_u24 v1, 1280, v1
                    v_lshl_add_u32 v18, v3, 4, v1
                    v_add_u32 v19, s{S_OLAST}, v18
                    """)
            if q == lastq[rb]:
                for n2 in range(4): wq.append((q * 4 + 6 + 3 * n2, rb, n2))
        self.stamp(a, 7)
        if uid == "n": self.tr(a, "p2end")
        while wq:
            _, r2, n2 = wq.pop(0)
            a.after_mfma(acc(r2, n2), 9)
            a.lgi(f"ds_write_b128 v{VW + (n2 & 1)}, {RR(acc(r2, n2))} offset:{r2*4096 + (n2 >> 1)*128}", "red")
        a.wait_all(vm=False)
        if uid == "n": self.tr(a, "redw")
        a("s_barrier")
        if uid == "n": self.tr(a, "redb")
        TMP = 32
        opol = self.opt.get("opol", "")
        def rd(qi):
            for pw in range(4):
                for hf in range(2):
                    t = TMP + qi * 32 + pw * 8 + hf * 4
                    a.lgi(f"ds_read_b128 {R('v', t)}, v{VR + hf + 2*(pw >> 1)} offset:{(pw & 1)*REG + qi*8192}", ("rr", qi, pw))
        rd(0); rd(1)
        for qi in range(3):
            t = TMP + qi * 32
            a.need(lg=("rr", qi, 1))
            for r in range(0, 8, 2): a(f"v_pk_add_f32 {R('v',t+r,2)}, {R('v',t+r,2)}, {R('v',t+8+r,2)}")
            a.need(lg=("rr", qi, 3))
            if qi == 0: rd(2)
            for r in range(0, 8, 2): a(f"v_pk_add_f32 {R('v',t+16+r,2)}, {R('v',t+16+r,2)}, {R('v',t+24+r,2)}")
            for r in range(0, 8, 2): a(f"v_pk_add_f32 {R('v',t+r,2)}, {R('v',t+r,2)}, {R('v',t+16+r,2)}")
            for d in range(4): a(f"v_cvt_pk_bf16_f32 v{t+8+d}, v{t+2*d}, v{t+2*d+1}")
            a.vmi(f"buffer_store_dwordx4 {R('v',t+8)}, v{19 if qi == 2 else 18}, {sO}, s{S_OSO} offen {opol}", "ost")
            if qi < 2: a(f"s_add_u32 s{S_OSO}, s{S_OSO}, {32*1280}")
    def LAH(self, nblk): return self.opt.get("lah", 10)
    P0 = 4

    def srds(self, a):
        a(f"""
        s_mov_b32 s10, {XB}
        s_mov_b32 s11, 0x00020000
        s_mov_b32 s14, {WB}
        s_mov_b32 s15, 0x00020000
        s_cmp_ge_u32 s{S_W}, 2
        s_waitcnt lgkmcnt(0)
        s_mov_b32 s8, s4
        s_mov_b32 s9, s5
        s_cselect_b32 s12, s64, s6
        s_cselect_b32 s13, s65, s7
        """)
    def srds2(self, a):
        a(f"""
        s_mov_b32 s16, s68
        s_mov_b32 s17, s69
        s_mov_b32 s18, {HB}
        s_mov_b32 s19, 0x00020000
        s_mov_b32 s20, s66
        s_mov_b32 s21, s67
        s_mov_b32 s22, {WB}
        s_mov_b32 s23, 0x00020000
        s_mov_b32 s32, s26
        s_mov_b32 s33, s27
        s_mov_b32 s34, 256
        s_mov_b32 s35, 0x00020000
        s_mov_b32 s26, {OB}
        s_mov_b32 s27, 0x00020000
        s_add_u32 s28, s68, {FLAG_OFF}
        s_addc_u32 s29, s69, 0
        s_mov_b32 s30, {FLAG_B}
        s_mov_b32 s31, 0x00020000
        s_mov_b32 s{S_TO}, 100000
        """)

    def normal(self, a):
        opt = self.opt
        rot = opt.get("rot", 1)
        hpol = opt.get("hpol", "sc1")
        ldpol = opt.get("ldpol", "")
        exact = opt.get("exact", 0)
        a(f"""
        s_lshr_b32 s{T0}, s{S_XCD}, 1
        s_mul_i32 s{S_C}, s{T0}, 7
        s_lshr_b32 s{S_K0}, s{S_J}, 2
        s_add_u32 s{S_C}, s{S_C}, s{S_K0}
        s_and_b32 s{S_RG}, s{S_XCD}, 1
        s_lshl_b32 s{S_RG}, s{S_RG}, 2
        s_and_b32 s{T0}, s{S_J}, 3
        s_add_u32 s{S_RG}, s{S_RG}, s{T0}
        """)
        GR = 10 if rot in (1, 20) else max(rot, 1)
        XORROT = 0
        if rot < 0:
            XORROT = -rot
            a(f"""
            s_add_u32 s{S_K0}, s{S_K0}, s{T0}
            s_and_b32 s{S_K0}, s{S_K0}, 1
            """)
        elif rot == 20:
            dl = opt.get("delta", 0)
            a(f"""
            s_add_u32 s{S_K0}, s{S_K0}, s{T0}
            s_and_b32 s{T0}, s{S_XCD}, 1
            s_mul_i32 s{T0}, s{T0}, {dl}
            s_add_u32 s{S_K0}, s{S_K0}, s{T0}
            s_mul_i32 s{T0}, s{S_K0}, 52
            s_lshr_b32 s{T0}, s{T0}, 8
            s_mul_i32 s{T0}, s{T0}, 5
            s_sub_u32 s{S_K0}, s{S_K0}, s{T0}
            s_lshl_b32 s{S_K0}, s{S_K0}, 1
            """)
        elif rot == 0:
            a(f"s_mov_b32 s{S_K0}, 0")
        elif rot >= 2:
            mg = (256 + rot - 1) // rot
            a(f"""
            s_add_u32 s{S_K0}, s{S_K0}, s{T0}
            s_mul_i32 s{T0}, s{S_K0}, {mg}
            s_lshr_b32 s{T0}, s{T0}, 8
            s_mul_i32 s{T0}, s{T0}, {rot}
            s_sub_u32 s{S_K0}, s{S_K0}, s{T0}
            """)
        elif rot == 1:
            a(f"""
            s_mul_i32 s{T0}, s{T0}, 5
            s_lshr_b32 s{T0}, s{T0}, 1
            s_add_u32 s{S_K0}, s{S_K0}, s{T0}
            s_cmp_ge_u32 s{S_K0}, 10
            s_cselect_b32 s{T0}, 10, 0
            s_sub_u32 s{S_K0}, s{S_K0}, s{T0}
            """)
        if opt.get("browrot", 1):
            a(f"s_mul_i32 s{S_SC}, s{S_C}, 19\ns_lshr_b32 s{S_SC}, s{S_SC}, 6")
        else:
            a(f"s_mov_b32 s{S_SC}, 0")
        a(f"""
        v_lshrrev_b32 v2, 3, v0
        v_and_b32 v3, 7, v0
        v_lshrrev_b32 v4, 4, v0
        v_xor_b32 v5, v4, v3
        v_lshlrev_b32 v5, 4, v5
        v_mul_u32_u24 v6, 1280, v2
        v_add_u32 v{V_XD}, v5, v6
        v_xor_b32 v5, 64, v5
        v_add_u32 v5, v5, v6
        v_add_u32 v{V_XD+1}, {8*1280-1024}, v5
        v_add_u32 v{V_XD+2}, {2*(8*1280-1024)}, v{V_XD}
        v_add_u32 v{V_XD+3}, {3*(8*1280-1024)}, v5
        s_and_b32 s{T0}, s{S_W}, 2
        v_and_b32 v5, 1, v4
        v_add_u32 v5, s{T0}, v5
        v_lshlrev_b32 v5, 1, v5
        v_xor_b32 v5, v5, v3
        v_lshlrev_b32 v5, 4, v5
        v_mul_u32_u24 v6, 3456, v2
        v_add_u32 v{V_WD}, v5, v6
        v_add_u32 v{V_WD+1}, {8*3456-1024}, v{V_WD}
        v_add_u32 v{V_WD+2}, {2*(8*3456-1024)}, v{V_WD}
        v_add_u32 v{V_WD+3}, {3*(8*3456-1024)}, v{V_WD}
        """)
        a(f"""
        s_lshl_b32 s{T1}, s{S_RG}, 3
        s_add_u32 s{T0}, s{S_SC}, s{S_W}
        s_and_b32 s{T0}, s{T0}, 7
        s_add_u32 s{T0}, s{T0}, s{T1}
        s_mul_i32 s{T0}, s{T0}, 40960
        s_lshl_b32 s{T2}, s{S_K0}, 7
        s_add_u32 s{S_XSO}, s{T0}, s{T2}
        s_and_b32 s{T0}, s{S_W}, 1
        s_mul_i32 s{T0}, s{T0}, 110592
        s_lshl_b32 s{T2}, s{S_C}, 7
        s_add_u32 s{T3}, s{T0}, s{T2}
        s_mul_i32 s{T2}, s{S_K0}, 221184
        s_add_u32 s{S_WSO}, s{T3}, s{T2}
        s_lshl_b32 s{S_MX}, s{S_W}, 12
        s_add_u32 s{S_MW}, s{S_MX}, 65536
        """)
        self.srds(a)
        self.stamp(a, 1)
        xpol = opt.get("xpol", ldpol); wpol = opt.get("wpol", ldpol); dpol = opt.get("dpol", "")
        SO = [S_WSO, S_XSO]
        def four(kind, half, lane, ldsoff, tag):
            srd, vb, m0, tabv, pol = {"x": (sX, V_XD, S_MX, V_TX, xpol), "w": (sW, V_WD, S_MW, V_TW, wpol), "d": (sD, V_WD, S_MW, V_TW, dpol)}[kind]
            so = SO[half]
            return dict(rl=f"v_readlane_b32 s{so}, v{tabv}, {lane}", m0=f"s_add_u32 m0, s{m0}, {ldsoff}",
                        ins=[(f"buffer_load_dwordx4 v{vb+k}, {srd}, s{so} offen offset:{1024*k} {pol} lds", tag) for k in range(4)])
        def dma_group(g):
            o = (g % 4) * 16384
            if g < 10: return [four("w", 0, g, o, ("dma", g)), four("x", 1, g, o, ("dma", g))]
            if g < 20: return [four("x", 0, g, o, ("dma", g)), four("d", 1, g, o, ("wdd", g - 10))]
            if g == 20: return [four("d", 0, 20, 0, ("wdd", 10)), four("d", 1, 21, 16384, ("wdd", 11))]
            return [None, None]
        def issue_now(h, rl=True):
            if rl: a(h["rl"]); a("s_nop 3")
            a(h["m0"]); a("s_nop 0")
            for ins, tag in h["ins"]: a.vmi(ins, tag)
        self.tr(a, "srd")
        for h in dma_group(0): issue_now(h, False)
        self.tr(a, "dma0")
        self.srds2(a)
        a(f"""
        s_memrealtime s[4:5]
        s_or_b32 s6, s2, s{S_W}
        v_or_b32 v1, s6, v0
        v_cmp_eq_u32 vcc, 0, v1
        v_mov_b32 v2, {OOBV}
        s_waitcnt lgkmcnt(0)
        s_or_b32 s4, s4, 1
        v_cndmask_b32 v1, v2, v1, vcc
        v_mov_b32 v3, s4
        """)
        a.vmi(f"buffer_store_dword v3, v1, {sG}, 0 offen sc1", "nst")
        a(f"""
        s_mul_i32 s4, s{S_RG}, 27
        s_add_u32 s4, s4, s{S_C}
        s_mul_i32 s4, s4, 640
        s_add_u32 s{S_FB}, s28, s4
        s_addc_u32 s{S_FB+1}, s29, 0
        """)
        a(f"""
        v_subrev_u32 v1, 10, v0
        v_lshlrev_b32 v1, 2, v1
        v_add_u32 v1, s{S_W}, v1
        v_and_b32 v1, 0xff, v1
        v_mul_u32_u24 v2, 26, v1
        v_lshrrev_b32 v2, 8, v2
        v_mul_u32_u24 v3, 10, v2
        v_sub_u32 v1, v1, v3
        v_add_u32 v2, 4, v2
        v_cmp_gt_u32 vcc, 10, v0
        v_mov_b32 v3, s{S_W}
        s_mov_b32 s4, 40960
        v_cndmask_b32 v1, v1, v0, vcc
        v_cndmask_b32 v2, v2, v3, vcc
        v_cmp_gt_u32 vcc, {XORROT if XORROT else GR}, v1
        v_add_u32 v4, s{S_K0}, v1
        v_subrev_u32 v3, {GR}, v4
        {f"v_xor_b32 v4, s{S_K0}, v1" if XORROT else "v_min_u32 v4, v4, v3"}
        v_cndmask_b32 v1, v1, v4, vcc
        v_add_u32 v2, s{S_SC}, v2
        v_and_b32 v2, 7, v2
        v_add_u32 v2, s{T1}, v2
        v_mul_lo_u32 v2, v2, s4
        v_lshlrev_b32 v3, 7, v1
        v_add_u32 v{V_TX}, v2, v3
        s_mov_b32 s4, 221184
        v_mul_lo_u32 v2, v1, s4
        v_add_u32 v{V_TW}, s{T3}, v2
        s_lshr_b32 s4, s{S_W}, 1
        s_lshl_b32 s5, s{S_C}, 1
        s_add_u32 s4, s4, s5
        s_lshl_b32 s4, s4, 7
        s_lshl_b32 s5, s{S_RG}, 4
        s_add_u32 s4, s4, s5
        v_add_u32 v1, s{S_SC}, v0
        v_and_b32 v1, 7, v1
        v_lshlrev_b32 v1, 1, v1
        v_add_u32 v1, s4, v1
        v_lshlrev_b32 v{V_TH}, 10, v1
        """)
        a(f"""
        v_and_b32 v2, 31, v0
        v_lshrrev_b32 v3, 5, v0
        v_bfe_u32 v4, v0, 1, 3
        v_xor_b32 v4, v4, v3
        v_lshlrev_b32 v4, 4, v4
        v_lshl_add_u32 v{V_XR}, v2, 7, v4
        v_xor_b32 v{V_XR+1}, 32, v{V_XR}
        v_xor_b32 v{V_XR+2}, 64, v{V_XR}
        v_xor_b32 v{V_XR+3}, 96, v{V_XR}
        v_bfe_u32 v4, v0, 4, 1
        v_bfe_u32 v5, v0, 2, 2
        v_lshl_add_u32 v6, v3, 3, v5
        v_lshlrev_b32 v6, 7, v6
        v_lshl_add_u32 v6, v4, 13, v6
        v_bfe_u32 v7, v0, 3, 2
        v_xor_b32 v7, s{S_W}, v7
        v_lshl_add_u32 v6, v7, 5, v6
        v_and_b32 v7, 3, v0
        v_lshl_add_u32 v6, v7, 3, v6
        v_add_u32 v{V_WR}, 65536, v6
        s_and_b32 s4, s{S_W}, 1
        s_lshl_b32 s4, s4, 1
        v_add_u32 v6, s4, v3
        v_lshlrev_b32 v6, 8, v6
        v_lshl_add_u32 v6, v4, 10, v6
        v_and_b32 v7, 15, v0
        v_lshl_add_u32 v{V_HS}, v7, 4, v6
        """)
        a(f"""
        s_mul_i32 s4, s{S_XCD}, 28
        s_cmp_eq_u32 s{S_XCD}, 7
        s_cselect_b32 s4, 192, s4
        s_add_u32 s4, s4, s{S_J}
        s_mul_i32 s5, s4, 205
        s_lshr_b32 s5, s5, 11
        s_mul_i32 s6, s5, 10
        s_sub_u32 s{S_N}, s4, s6
        s_mul_i32 s{S_RB0}, s5, 5
        s_cmp_ge_u32 s{S_W}, 2
        s_cselect_b32 s{S_OLAST}, {OOBV}, 0
        s_mul_i32 s{S_T0}, s{S_W}, 20480
        """)
        self.p2_setup(a, 5, None)
        trL, wdM = self.wd_addr_ops(S_MW)
        for x in trL: a(x)
        self.tr(a, "setup")
        for h in dma_group(1): issue_now(h)
        self.tr(a, "dma1")

        A0, A4 = 32, 48
        ACC = [A0, 64, 80, 96, A4]
        XF = 112
        LA = 7
        def wdf(i):
            if i < 6: return ('a', 160 + 16 * i)
            if i < 11: return ('v', 144 + 16 * (i - 6))
            return ('v', 64 + 16 * (i - 11))
        HB_ = [('v', 224 + 4 * k) for k in range(6)] + [('a', 4 * k) for k in range(9)]
        def hbuf(q): return HB_[q % 15]
        def acc2(rb, nb): return ('a', 40 + (rb * 4 + nb) * 4)
        def minfo(n):
            if n < 160:
                s = n >> 4; ks = (n >> 2) & 3; b = n & 3
                return dict(stage=s, unit=b, ks=ks, wf=4*s+ks, acc=ACC[b], first=(s == 0 and ks == 0), blk=b, last=(n >= 156))
            m = n - 160; u = m >> 2; ks = m & 3
            blk = 4 + u // 10; kk = u % 10
            return dict(stage=10 + (u >> 2), unit=u & 3, ks=ks, wf=4*kk+ks, acc=ACC[4] if blk % 2 == 0 else ACC[0],
                        first=(kk == 0 and ks == 0), blk=blk, last=(kk == 9 and ks == 3))
        epi = []
        pubs = []
        stN = opt.get("stN", {0: 206, 1: 206, 2: 206, 3: 206, 4: 206, 5: 247, 6: 288, 7: 327})
        stN = {int(k): v for k, v in stN.items()}
        EP = opt.get("epr", 2)
        sts = []
        def add_epi(blk, acc, n):
            dst = acc + 8
            if blk == 0: dst = 248
            ops = []
            if exact:
                for j in range(16):
                    ops.append(("v", f"v_cvt_pk_bf16_f32 v{acc+j}, 0, v{acc+j}", acc))
            for j in range(8):
                ops.append(("v", f"v_mul_f32 v{acc+j}, v{acc+j}, v{acc+8+j}", acc))
            for d in range(4):
                ops.append(("v", f"v_cvt_pk_bf16_f32 v{dst+d}, v{acc+2*d}, v{acc+2*d+1}", acc))
            ops.insert(0, ("r", f"v_readlane_b32 s{S_HS8+blk}, v{V_TH}, {blk}", acc))
            ops.append(("s", f"buffer_store_dwordx4 {R('v',dst)}, v{V_HS}, {sH}, s{S_HS8+blk} offen {hpol}", blk))
            for o in ops: epi.append((n + 3, o))
        def run_epi(n):
            cnt = EP if n < 200 else EP + 1
            while epi and epi[0][0] <= n and (cnt > 0 or epi[0][1][0] == "s"):
                _, (kind, ins, x) = epi.pop(0)
                if kind == "v":
                    a.after_mfma(x, 13); a(ins); cnt -= 1
                elif kind == "r":
                    a(ins); cnt -= 1
                else:
                    sts.append((stN[x], ins, x))
            while sts and sts[0][0] <= n:
                _, ins, x = sts.pop(0)
                if opt.get("nohst"): continue
                a.vmi(ins, ("hst", x))
                if x >= 3: pubs.append((max(0, x - 3), ("hst", x)))
        def pub_ready():
            return bool(pubs) and a.vm_covered(pubs[0][1])
        def run_pub():
            ks = []
            while pub_ready(): ks.append(pubs.pop(0)[0])
            if ks:
                a(f"s_cmp_lg_u32 s{S_W}, 0")
                a(f"s_cbranch_scc1 L_pub_{ks[0]}")
                for k in ks: a(f"s_atomic_swap s{S_NON}, s[{S_FB}:{S_FB+1}], {128*k}")
                a(f"L_pub_{ks[0]}:")
        def wd_trs(i, ldsoff):
            return [(f"ds_read_b64_tr_b16 {RR(off(wdf(i), nb*4+2*rd), 2)}, v{V_DR+nb} offset:{ldsoff + rd*1024}", ("wd", i, nb)) for nb in range(4) for rd in range(2)]
        trq = []; misc = []
        WG = opt.get("waitgran", 2)
        order = self.p2_plan(5); LAH = self.LAH(5); seen = set()
        hq = 0
        a(dma_group(2)[0]["rl"])
        for n in range(-LA, 320):
            if n >= 0:
                mi = minfo(n)
                if n % WG == 0:
                    needs = [("x", min(319, n + WG - 1))]
                    if n < 160 and mi["unit"] == 0: needs.append(("w", mi["wf"]))
                    a.need(lg=needs)
                acc = mi["acc"]; xf = XF + (n & 7) * 4
                c = "0" if mi["first"] else R("v", acc, 16)
                a.mfma(f"v_mfma_f32_32x32x16_bf16 {R('v',acc,16)}, {R('a',mi['wf']*4)}, {R('v',xf)}, {c}", acc)
                if mi["last"]: add_epi(mi["blk"], acc, n)
                if n == 0: self.stamp(a, 3)
                if n == 159: self.stamp(a, 4)
            nn = n + LA
            s = nn >> 4; gp = nn & 15
            grp = dma_group(s + 2)
            if gp == 0:
                assert not trq
                if s < 20:
                    tags = [("dma", s)]
                    if s >= 10: tags.append(("wdd", s - 10))
                    a.need(vm=tags)
                    a("s_barrier")
                    if s == 0: self.stamp(a, 2)
                    run_pub()
                    self.tr(a, f"B{s}")
                    if s >= 10: trq = wd_trs(s - 10, (s % 4) * 16384)
                else:
                    a.need(vm=("wdd", 10))
                    trq = wd_trs(10, 0)
                if s == 8: misc += wdM
                if s == 2: misc.append(("nonce_ld",))
                if s == 6: misc.append(("nonce_get",))
                if s == 18: misc.append(("poll", [0, 1]))
                if s == 19: misc.append(("poll", [2, 3]))
            h = grp[gp >> 3]
            if h and gp % 8 == 0: a(h["m0"])
            if gp == 4 and grp[1]: a(grp[1]["rl"])
            if gp == 12 and dma_group(s + 3)[0]: a(dma_group(s + 3)[0]["rl"])
            if nn < 320:
                mi = minfo(nn)
                slot = mi["stage"] % 4
                a.lgi(f"ds_read_b128 {R('v', XF + (nn & 7)*4)}, v{V_XR+mi['ks']} offset:{slot*16384 + mi['unit']*4096}", ("x", nn))
                if nn < 160 and mi["unit"] in (0, 2):
                    rd = mi["unit"] >> 1
                    a.lgi(f"ds_read_b64_tr_b16 {R('a', mi['wf']*4+2*rd, 2)}, v{V_WR} offset:{slot*16384 + mi['ks']*2048 + rd*512}", ("w", mi["wf"]))
            if trq and (nn % 2 == 0 or nn >= 320):
                ins, tag = trq.pop(0); a.lgi(ins, tag)
            k = 2
            while misc and k > 0:
                x = misc.pop(0); k -= 1
                if x == ("nonce_ld",): a.vmi(f"buffer_load_dword v{V_NON}, off, {sG}, 0 sc1", "nonce")
                elif x == ("nonce_get",): self.nonce_get(a, "n")
                elif x[0] == "poll": self.poll(a, x[1])
                else: a(x)
            if h and gp % 2 == 1:
                d = a.n - a.last_rl
                if gp % 8 == 1 and d < 5: a(f"s_nop {4-d}")
                ins, tag = h["ins"][(gp & 7) >> 1]; a.vmi(ins, tag)
            if s >= 19 and hq < LAH:
                if gp % 2 == 0: self.h_pre(a, hq, order, "n", seen)
                else: self.h_issue(a, hq, order, hbuf, "n", seen); hq += 1
            run_epi(n)
        self.stamp(a, 5)
        while trq:
            ins, tag = trq.pop(0); a.lgi(ins, tag)
        while hq < LAH:
            self.h_pre(a, hq, order, "n", seen); self.h_issue(a, hq, order, hbuf, "n", seen); hq += 1
        st = dict(q=[], tr=[])
        def extra(q, nb):
            n = 320 + (q * 4 + nb) // 2
            run_epi(n)
            if nb == 0 and pub_ready():
                if pubs[0][0] == 4: a.need(lg=("wd", 11, 3))
                a("s_barrier"); run_pub()
            if q == 5 and nb == 0:
                a.need(vm=("wdd", 11)); st["tr"] = wd_trs(11, 16384)
            if opt.get("nohst") and q == 14 and nb == 0:
                a.need(lg=("wd", 11, 3)); a("s_barrier")
            for (q0, i, lo) in ((6, 12, 2), (22, 13, 3)):
                hh = four("d", 0, 10 + i, lo * 16384, ("wdd", i))
                if q == q0 and nb == 0: a(hh["rl"]); a(hh["m0"])
                if q0 < q <= q0 + 13 and (q - q0) % 4 == 1 and nb == 1:
                    ins, tag = hh["ins"][(q - q0) // 4]; a.vmi(ins, tag)
                if q == q0 + 25 and nb == 0:
                    a.need(vm=("wdd", i)); st["tr"] = wd_trs(i, lo * 16384)
            if st["tr"] and nb in (0, 2):
                ins, tag = st["tr"].pop(0); a.lgi(ins, tag)
        self.p2_main(a, 5, "n", acc2, hbuf, wdf, extra, 20480, S_T0, seen)
        assert not epi and not pubs and not sts

    def prefetch_miss(self, a):
        dl = self.opt.get("delta", 0)
        a(f"""
        s_cmp_ge_u32 s{S_XCD}, 6
        s_cselect_b32 s{T1}, 24, 28
        s_cselect_b32 s{S_SC}, 1, 0
        s_sub_u32 s{T1}, s{S_J}, s{T1}
        s_lshl_b32 s{T1}, s{T1}, 2
        s_add_u32 s{T1}, s{T1}, s{S_W}
        s_lshr_b32 s{T2}, s{T1}, 4
        s_and_b32 s{T1}, s{T1}, 15
        s_lshr_b32 s{T3}, s{S_XCD}, 1
        s_and_b32 s4, s{S_XCD}, 1
        s_mul_i32 s4, s4, {dl}
        s_add_u32 s4, s4, 4
        v_and_b32 v2, 7, v0
        v_add_u32 v3, s4, v2
        v_mul_u32_u24 v4, 52, v3
        v_lshrrev_b32 v4, 8, v4
        v_mul_u32_u24 v4, 5, v4
        v_sub_u32 v3, v3, v4
        v_lshlrev_b32 v3, 7, v3
        v_lshrrev_b32 v1, 3, v0
        v_add_u32 v1, v1, v3
        v_mul_u32_u24 v1, 3456, v1
        v_lshl_add_u32 v1, v2, 7, v1
        v_cmp_eq_u32 vcc, 7, v2
        v_mov_b32 v3, {OOBV}
        s_mul_i32 s4, s{T1}, {8*3456}
        v_cndmask_b32 v1, v1, v3, vcc
        s_mul_i32 s5, s{T3}, 896
        s_add_u32 s4, s4, s5
        s_cmp_eq_u32 s{T2}, 1
        s_cselect_b32 s12, s64, s6
        s_cselect_b32 s13, s65, s7
        buffer_load_dword v254, v1, {sW}, s4 offen
        s_cmp_eq_u32 s{S_SC}, 1
        s_cbranch_scc1 L_pm_done
        s_mov_b32 s12, s64
        s_mov_b32 s13, s65
        buffer_load_dword v254, v1, {sW}, s4 offen
        L_pm_done:
        """)
    def prefetch_even(self, a):
        pf = self.opt["pfe"]
        wpol = self.opt.get("pfwpol", "")
        a(f"""
        s_lshl_b32 s{T1}, s{S_K0}, 2
        s_add_u32 s{T1}, s{T1}, s{S_W}
        s_cmp_ge_u32 s{T1}, 80
        s_cselect_b32 s12, s64, s6
        s_cselect_b32 s13, s65, s7
        s_cselect_b32 s{T2}, 80, 0
        s_sub_u32 s{T2}, s{T1}, s{T2}
        s_mul_i32 s{T2}, s{T2}, 22
        v_add_u32 v1, s{T2}, v0
        v_mov_b32 v3, {OOBV}
        v_cmp_gt_u32 vcc, 1728, v1
        v_cmp_gt_u32 s[4:5], 22, v0
        v_lshlrev_b32 v1, 7, v1
        s_and_b64 vcc, vcc, s[4:5]
        s_mul_i32 s{T2}, s{T1}, 13
        v_cndmask_b32 v1, v3, v1, vcc
        v_add_u32 v2, s{T2}, v0
        v_cmp_gt_u32 vcc, 13, v0
        v_mul_u32_u24 v2, 1280, v2
        s_mov_b32 s4, {pf*221184}
        s_mov_b32 s5, {pf*128}
        v_cndmask_b32 v2, v3, v2, vcc
        L_pf:
        buffer_load_dword v254, v1, {sW}, s4 offen {wpol}
        buffer_load_dword v254, v2, {sX}, s5 offen
        s_add_u32 s4, s4, 221184
        s_add_u32 s5, s5, 128
        s_cmp_lt_u32 s5, 1280
        s_cbranch_scc1 L_pf
        """)
    def prefetch(self, a):
        if self.opt.get("pfm"): return self.prefetch_miss(a)
        if "pfe" in self.opt: return self.prefetch_even(a)
        pf = self.opt.get("pf")
        if pf is None: return
        wpol = self.opt.get("pfwpol", "")
        a(f"""
        s_cmp_ge_u32 s{S_XCD}, 6
        s_cselect_b32 s{T1}, 24, 28
        s_cselect_b32 s{S_SC}, 2, 1
        s_sub_u32 s{T1}, s{S_J}, s{T1}
        s_lshl_b32 s{T1}, s{T1}, 2
        s_add_u32 s{T1}, s{T1}, s{S_W}
        s_lshr_b32 s{T2}, s{T1}, 4
        s_and_b32 s{T1}, s{T1}, 15
        s_bitcmp1_b32 s{S_XCD}, 0
        s_cselect_b32 s12, s64, s6
        s_cselect_b32 s13, s65, s7
        s_lshr_b32 s{T3}, s{S_XCD}, 1
        v_lshrrev_b32 v1, 3, v0
        v_and_b32 v2, 7, v0
        v_mul_u32_u24 v1, 3456, v1
        v_lshl_add_u32 v1, v2, 7, v1
        v_cmp_eq_u32 vcc, 7, v2
        v_mov_b32 v3, {OOBV}
        s_mul_i32 s4, s{T1}, {8*3456}
        v_cndmask_b32 v1, v1, v3, vcc
        s_mul_i32 s5, s{T3}, 896
        s_add_u32 s4, s4, s5
        s_mul_i32 s5, s{T2}, {128*3456}
        s_add_u32 s4, s4, s5
        s_add_u32 s{S_WSO}, s4, {pf*64*3456}
        v_and_b32 v2, 15, v0
        v_mul_u32_u24 v2, 1280, v2
        v_bfe_u32 v4, v0, 4, 1
        v_lshl_add_u32 v2, v4, 7, v2
        v_cmp_le_u32 vcc, 32, v0
        s_and_b32 s4, s{S_XCD}, 1
        s_lshl_b32 s4, s4, 2
        v_cndmask_b32 v2, v2, v3, vcc
        s_add_u32 s4, s4, s{T3}
        s_lshl_b32 s4, s4, 4
        s_add_u32 s4, s4, s{T1}
        s_mul_i32 s4, s4, 20480
        s_lshl_b32 s5, s{T2}, 8
        s_add_u32 s4, s4, s5
        s_add_u32 s{S_XSO}, s4, {pf*128}
        s_mul_i32 s4, s{S_SC}, {128*3456}
        s_lshl_b32 s5, s{S_SC}, 8
        s_lshl_b32 s6, s{T2}, 1
        s_add_u32 s6, s6, {pf}
        s_lshl_b32 s7, s{S_SC}, 1
        L_pf:
        buffer_load_dword v254, v1, {sW}, s{S_WSO} offen {wpol}
        buffer_load_dword v254, v2, {sX}, s{S_XSO} offen
        s_add_u32 s{S_WSO}, s{S_WSO}, s4
        s_add_u32 s{S_XSO}, s{S_XSO}, s5
        s_add_u32 s6, s6, s7
        s_cmp_lt_u32 s6, 10
        s_cbranch_scc1 L_pf
        """)
    def prefetch_wd(self, a):
        if not self.opt.get("pfd"): return
        a(f"""
        s_lshl_b32 s4, s{S_K0}, 2
        s_add_u32 s4, s4, s{S_W}
        s_mul_i32 s4, s4, {108*128}
        v_lshlrev_b32 v1, 7, v0
        v_cmp_le_u32 vcc, 54, v0
        v_mov_b32 v3, {OOBV}
        s_add_u32 s5, s4, {54*128}
        v_cndmask_b32 v1, v1, v3, vcc
        buffer_load_dword v254, v1, {sD}, s4 offen
        buffer_load_dword v254, v1, {sD}, s5 offen
        """)

    def free(self, a):
        a(f"""
        s_lshl_b32 s{T0}, s{S_XCD}, 2
        s_add_u32 s{T0}, s{T0}, s{S_J}
        s_sub_u32 s{T0}, s{T0}, 28
        s_cmp_eq_u32 s{S_XCD}, 6
        s_cselect_b32 s{T0}, s{S_J}, s{T0}
        s_add_u32 s{T1}, s{S_J}, 8
        s_cmp_eq_u32 s{S_XCD}, 7
        s_cselect_b32 s{T0}, s{T1}, s{T0}
        s_mov_b32 s{S_K0}, s{T0}
        s_mul_i32 s{T1}, s{T0}, 26
        s_lshr_b32 s{T1}, s{T1}, 8
        s_mul_i32 s{T2}, s{T1}, 10
        s_sub_u32 s{S_N}, s{T0}, s{T2}
        s_mul_i32 s{S_RB0}, s{T1}, 6
        s_add_u32 s{S_RB0}, s{S_RB0}, 110
        s_add_u32 s{T2}, s{S_N}, 6
        s_cmp_ge_u32 s{T0}, 30
        s_cselect_b32 s{S_N}, s{T2}, s{S_N}
        s_cselect_b32 s{S_RB0}, 105, s{S_RB0}
        s_cselect_b32 s{S_OLAST}, {OOBV}, 0
        s_cmp_ge_u32 s{S_W}, 2
        s_cselect_b32 s{S_OLAST}, s{S_OLAST}, 0
        s_lshl_b32 s{S_MW}, s{S_W}, 15
        v_mov_b32 v{V_TW}, 0
        v_mov_b32 v{V_TH}, 0
        """)
        self.srds(a)
        self.prefetch(a)
        self.srds2(a)
        self.prefetch_wd(a)
        a(f"s_cmp_ge_u32 s{S_K0}, {0 if self.opt.get('nofree') else 34}\ns_cbranch_scc1 L_end")
        self.p2_setup(a, 6, None)
        trL, wdM = self.wd_addr_ops(S_MW)
        for x in trL + wdM: a(x)
        def wdf(i): return ('a', 16 * i)
        def hbuf(q): return ('v', 128 + 4 * (q % 18))
        def acc2(rb, nb): return ('v', 32 + (rb * 4 + nb) * 4)
        def wdg(i):
            a(f"v_readlane_b32 s{S_WSO}, v{V_TW}, {10+i}")
            a(f"s_add_u32 m0, s{S_MW}, {(i%8)*4096}")
            a("s_nop 3")
            for k in range(4):
                a.vmi(f"buffer_load_dwordx4 v{V_WD+k}, {sD}, s{S_WSO} offen offset:{1024*k} lds", ("wdd", i))
        for i in range(4): wdg(i)
        for i in range(14):
            a.need(vm=("wdd", i))
            for nb in range(4):
                for rd in range(2):
                    a.lgi(f"ds_read_b64_tr_b16 {RR(off(wdf(i), nb*4+2*rd), 2)}, v{V_DR+nb} offset:{(i%8)*4096 + rd*1024}", ("wd", i, nb))
            if i >= 3: a.need(lg=("wd", i - 3, 3))
            if i + 4 < 14: wdg(i + 4)
        a.vmi(f"buffer_load_dword v{V_NON}, off, {sG}, 0 sc1", "nonce")
        self.nonce_get(a, "f")
        self.stamp(a, 4)
        self.poll(a, [0, 1, 2, 3])
        order = self.p2_plan(6); seen = set()
        for q in range(self.LAH(6)):
            self.h_pre(a, q, order, "f", seen); self.h_issue(a, q, order, hbuf, "f", seen)
        self.stamp(a, 5)
        self.p2_main(a, 6, "f", acc2, hbuf, wdf, lambda q, nb: None, 32768, S_MW, seen)

    def gen(self):
        a = SBX()
        if self.st: a("s_memrealtime s[96:97]")
        self.stamp(a, 0)
        a(f"""
        s_load_dwordx4 s[4:7], s[0:1], 0
        s_load_dwordx4 s[64:67], s[0:1], 16
        s_load_dwordx4 s[24:27], s[0:1], 32
        s_load_dwordx2 s[68:69], s[0:1], 48
        s_cmp_ge_u32 s2, 256
        s_cbranch_scc1 L_end
        v_lshrrev_b32 v1, 6, v0
        v_and_b32 v0, 63, v0
        s_and_b32 s{S_XCD}, s2, 7
        v_readfirstlane_b32 s{S_W}, v1
        s_lshr_b32 s{S_J}, s2, 3
        s_cmp_ge_u32 s{S_XCD}, 6
        s_cselect_b32 s{T0}, 24, 28
        s_cmp_ge_u32 s{S_J}, s{T0}
        s_cbranch_scc1 L_free
        """)
        n = SBX(); self.tr(n, "start"); self.normal(n); self.tr(n, "ost"); n.wait_all(); self.tr(n, "end"); self.tr_out(n); n("s_branch L_fin")
        f = SBX(); self.free(f); f.wait_all()
        a.lines += n.lines; a.label("L_free"); a.lines += f.lines
        a.label("L_fin")
        self.stamp(a, 8)
        self.stamps_out(a, 6)
        a("L_end:\ns_endpgm")
        for s in self.slow: a(s)
        return a.text()

class SBX(SB):
    last_rl = -100
    def __call__(self, s):
        for l in s.split("\n"):
            super().__call__(l)
            if l.strip().startswith("v_readlane"): self.last_rl = self.n

def gen_probe2(idx, stat, mult):
    a = SB()
    a(f"""
    s_cmp_ge_u32 s2, 1
    s_cbranch_scc1 L_pr_end
    s_memrealtime s[10:11]
    s_load_dwordx2 s[4:5], s[0:1], 48
    v_lshlrev_b32 v1, 10, v0
    s_waitcnt lgkmcnt(0)
    s_mov_b32 s6, 0x10000000
    s_mov_b32 s7, 0x00020000
    s_mov_b32 s8, {STAMP_OFF + 0x100000}
    """)
    for r in range(3):
        a(f"buffer_load_dword v{2+r}, v1, s[4:7], s8 offen")
        a(f"buffer_load_dword v{5+r}, v1, s[4:7], s8 offen offset:{4*idx}")
        a("s_add_u32 s8, s8, 65536")
    op = {"max": "min", "min": "max", "avg": "add"}[stat]
    a("s_waitcnt vmcnt(0)")
    for r in range(6): a(f"v_sub_u32 v{2+r}, s10, v{2+r}")
    a(f"""
    v_max_u32 v2, v2, v3
    v_max_u32 v2, v2, v4
    v_{op}_u32 v5, v5, v6
    v_{op}_u32 v5, v5, v7
    s_mov_b32 s20, 0
    s_mov_b32 s21, {0xfffffff if op == "min" else 0}
    s_mov_b32 s22, 0
    L_pr_red:
    s_nop 3
    v_readlane_b32 s23, v2, s22
    v_readlane_b32 s24, v5, s22
    s_nop 3
    s_max_u32 s20, s20, s23
    s_{op}_u32 s21, s21, s24
    s_add_u32 s22, s22, 1
    s_cmp_lt_u32 s22, 64
    s_cbranch_scc1 L_pr_red
    """)
    if stat == "avg":
        a("s_mul_i32 s21, s21, 341\ns_lshr_b32 s21, s21, 16")
    a(f"""
    s_sub_u32 s8, s20, s21
    s_min_u32 s8, s8, 4000
    s_mul_i32 s8, s8, {mult}
    s_add_u32 s8, s8, 500
    L_pr_loop:
    s_memrealtime s[12:13]
    s_waitcnt lgkmcnt(0)
    s_sub_u32 s9, s12, s10
    s_cmp_lt_u32 s9, s8
    s_cbranch_scc1 L_pr_loop
    L_pr_end:
    s_endpgm
    """)
    return a.text()

def gen(opt):
    g = G(opt)
    body = g.gen()
    body = "; TRACE " + " ".join(g.trn) + "\n" + body
    if "probe2" in opt:
        nm, stat, mult = opt["probe2"]
        LL = [f"kernel=main_kernel grid=(256,1,1) block=(256,1,1) lds=131072", "kernel=pr_kernel grid=(1,1,1) block=(64,1,1) lds=0"]
        t = header(LL) + kernel_begin("main_kernel") + body
        t += kernel_begin("pr_kernel") + gen_probe2(g.trn.index(nm), stat, mult) + kernel_desc("pr_kernel", vgpr=8, accum=8)
        t += kernel_desc("main_kernel", vgpr=512, accum=256)
        return t
    if "probe" in opt:
        import gen1
        LL = [f"kernel=main_kernel grid=(256,1,1) block=(256,1,1) lds=131072", "kernel=pr_kernel grid=(1,1,1) block=(64,1,1) lds=0"]
        t = header(LL) + kernel_begin("main_kernel") + body
        t += kernel_begin("pr_kernel") + gen1.gen_probe(opt) + kernel_desc("pr_kernel", vgpr=8, accum=8)
        t += kernel_desc("main_kernel", vgpr=512, accum=256)
        return t
    return header(["grid=(256,1,1) block=(256,1,1) lds=131072"]) + kernel_begin(KNAME) + body + kernel_desc(KNAME, vgpr=512, accum=256)

if __name__ == "__main__":
    import json
    opt = json.loads(sys.argv[2]) if len(sys.argv) > 2 else {}
    open(sys.argv[1], "w").write(gen(opt))
```

```python
import sys
from sb import SB
from asmlib import header, kernel_begin, kernel_desc, KNAME

XB, WB, HB, OB = 2621440, 2211840, 54*128*1024, 2621440
FLAG_OFF, FLAG_B = 0x800000, 8*27*640
STAMP_OFF = 0x4000000
OOBV = 0x7ff00000

def R(p, a, n=4): return f"{p}[{a}:{a+n-1}]"
def RR(r, n=4): return R(r[0], r[1], n)
def off(r, k): return (r[0], r[1] + k)

sX, sW, sH, sD, sO, sF, sG = "s[8:11]", "s[12:15]", "s[16:19]", "s[20:23]", "s[24:27]", "s[28:31]", "s[32:35]"
S_W, S_C, S_RG, S_SC, S_K0 = 36, 37, 38, 39, 40
S_RB0, S_N, S_T0 = 41, 42, 43
S_MX, S_MW = 44, 45
S_XSO, S_WSO, S_HSO, S_HLD = 46, 47, 48, 49
S_NON = 50
S_TO = 52
S_OSO = 53
S_J, S_XCD = 54, 55
S_OLAST = 56
S_HL = 57
S_HS8 = 82
S_FB = 64
T0, T1, T2, T3 = 60, 61, 62, 63
V_XD, V_WD, V_XR, V_WR, V_HS = 8, 12, 16, 20, 21
V_TX, V_TW, V_TH = 22, 23, 24
V_FO, V_F, V_FS, V_NON = 25, 26, 28, 29
V_HL0, V_HL1 = 30, 31
V_DR = 4

class G:
    def __init__(self, opt):
        self.opt = opt
        self.st = opt.get("stamps", 0)
        self.slow = []
        self.trn = []
        self.sm = {0: 0, 2: 1, 4: 2, 5: 3, 7: 4, 8: 5}
        if self.st == 3: self.sm = {}
        self.VTR = 255
    def stamp(self, a, i):
        if self.st == 2: a(f"s_memrealtime s[{70+2*self.sm[i]}:{71+2*self.sm[i]}]") if i in self.sm else None
        elif self.st: a(f"s_memtime s[{70+2*self.sm[i]}:{71+2*self.sm[i]}]") if i in self.sm else None

    def tr(self, a, name):
        if not self.opt.get("trace"): return
        i = len(self.trn)
        p = 90 + 2 * (i % 3)
        if i >= 2:
            a(f"v_writelane_b32 v{self.VTR}, s{90 + 2 * ((i - 2) % 3)}, {i-2}")
        a(f"{'s_memrealtime' if self.opt.get('trace') == 2 else 's_memtime'} s[{p}:{p+1}]")
        self.trn.append(name)
    def tr_out(self, a):
        if not self.opt.get("trace"): return
        n = len(self.trn)
        a("s_waitcnt lgkmcnt(0)")
        for i in (n - 2, n - 1):
            a(f"v_writelane_b32 v{self.VTR}, s{90 + 2 * (i % 3)}, {i}")
        a(f"""
        s_mov_b32 s16, s68
        s_mov_b32 s17, s69
        s_mov_b32 s18, 0x10000000
        s_mov_b32 s19, 0x00020000
        s_lshl_b32 s3, s2, 2
        s_add_u32 s3, s3, s{S_W}
        s_lshl_b32 s3, s3, 8
        s_add_u32 s3, s3, {STAMP_OFF + 0x100000}
        v_lshlrev_b32 v1, 2, v0
        buffer_store_dword v{self.VTR}, v1, s[16:19], s3 offen
        """)
    def stamps_out(self, a, nst):
        if not self.st: return
        a(f"""
        s_memrealtime s[98:99]
        s_waitcnt lgkmcnt(0)
        s_load_dwordx2 s[4:5], s[0:1], 48
        s_waitcnt lgkmcnt(0)
        s_mov_b32 s8, s4
        s_mov_b32 s9, s5
        s_mov_b32 s10, 0x10000000
        s_mov_b32 s11, 0x00020000
        s_lshl_b32 s3, s2, 2
        s_add_u32 s3, s3, s{S_W}
        s_lshl_b32 s3, s3, 6
        s_add_u32 s3, s3, {STAMP_OFF}
        v_mov_b32 v1, s3
        """)
        for i in range(1, nst):
            a(f"s_sub_u32 s4, s{70+2*i}, s70")
            a(f"v_mov_b32 v2, s4")
            a(f"buffer_store_dword v2, v1, s[8:11], 0 offen offset:{4*i}")
        a(f"v_mov_b32 v2, s{S_TO}")
        a(f"buffer_store_dword v2, v1, s[8:11], 0 offen offset:52")
        a(f"v_mov_b32 v2, s96")
        a(f"buffer_store_dword v2, v1, s[8:11], 0 offen offset:56")
        a(f"v_mov_b32 v2, s98")
        a(f"buffer_store_dword v2, v1, s[8:11], 0 offen offset:60")

    def p2_setup(self, a, nblk, ldsbase_shift):
        a(f"""
        s_lshr_b32 s{T0}, s{S_RB0}, 1
        s_add_u32 s{T1}, s{S_RB0}, {nblk-1}
        s_lshr_b32 s{T1}, s{T1}, 1
        s_and_b32 s{T2}, s{T0}, 7
        s_mul_i32 s{T2}, s{T2}, 27
        s_add_u32 s{T2}, s{T2}, {27+7-8}
        s_lshr_b32 s{T2}, s{T2}, 3
        s_lshr_b32 s{T3}, s{S_W}, 1
        s_sub_u32 s{T2}, s{T2}, s{T3}
        """)
        if not self.opt.get("browrot", 1):
            a(f"s_sub_u32 s{T2}, 26, s{T3}")
        a(f"""
        v_lshrrev_b32 v1, 1, v0
        v_lshlrev_b32 v1, 1, v1
        s_add_u32 s{T3}, s{T2}, 27
        v_sub_u32 v1, s{T3}, v1
        v_subrev_u32 v2, 27, v1
        v_min_u32 v1, v1, v2
        """)
        if self.opt.get("browrot", 1):
            a("v_mul_u32_u24 v2, 19, v1\nv_lshrrev_b32 v2, 6, v2")
        else:
            a("v_mov_b32 v2, 0")
        a(f"""
        s_lshr_b32 s4, s{T0}, 3
        s_lshr_b32 s5, s{T1}, 3
        s_and_b32 s6, s{T0}, 7
        s_and_b32 s7, s{T1}, 7
        s_cmp_eq_u32 s4, s5
        s_cselect_b32 s{T0}, s7, 7
        s_cselect_b32 s{T1}, s6, 0
        v_and_b32 v3, 1, v0
        v_cmp_eq_u32 vcc, 1, v3
        v_mov_b32 v3, s6
        v_mov_b32 v{V_F}, s{T1}
        v_cndmask_b32 v3, v3, v{V_F}, vcc
        v_sub_u32 v3, v3, v2
        v_and_b32 v3, 7, v3
        v_mov_b32 v{V_FO}, s{T0}
        v_mov_b32 v{V_F}, s7
        v_cndmask_b32 v{V_FO}, v{V_FO}, v{V_F}, vcc
        v_sub_u32 v{V_FO}, v{V_FO}, v2
        v_and_b32 v{V_FO}, 7, v{V_FO}
        v_mov_b32 v2, s4
        v_mov_b32 v{V_F}, s5
        v_cndmask_b32 v2, v2, v{V_F}, vcc
        v_cmp_ge_u32 vcc, v{V_FO}, v3
        v_mul_u32_u24 v2, 27, v2
        v_add_u32 v2, v2, v1
        v_cndmask_b32 v3, 7, v{V_FO}, vcc
        v_max_u32 v3, 3, v3
        v_subrev_u32 v3, 3, v3
        v_mul_u32_u24 v2, 640, v2
        s_and_b32 s4, s{S_W}, 1
        v_lshl_add_u32 v{V_FO}, v3, 7, v2
        v_mov_b32 v{V_F}, 0
        """)
        a(f"""
        s_lshl_b32 s{T2}, s{T2}, 1
        s_add_u32 s{T2}, s{T2}, s4
        s_add_u32 s{T2}, s{T2}, {54+40}
        v_lshlrev_b32 v1, 2, v0
        v_sub_u32 v1, s{T2}, v1
        v_subrev_u32 v2, 54, v1
        v_min_u32 v1, v1, v2
        s_cmp_ge_u32 s{S_W}, 2
        s_cselect_b32 s4, 23, 99
        v_cmp_eq_u32 vcc, s4, v0
        s_mov_b32 s5, 40960
        s_lshl_b32 s6, s{S_N}, 7
        s_lshl_b32 s7, s{S_RB0}, 10
        v_mul_lo_u32 v2, v1, s5
        v_add_u32 v2, s6, v2
        v_lshlrev_b32 v3, 17, v1
        v_add_u32 v3, s7, v3
        v_mov_b32 v1, {WB}
        v_cndmask_b32 v2, v2, v1, vcc
        v_mov_b32 v1, {HB}
        v_cndmask_b32 v3, v3, v1, vcc
        v_cmp_le_u32 vcc, 10, v0
        s_nop 1
        v_cndmask_b32 v{V_TW}, v{V_TW}, v2, vcc
        v_cndmask_b32 v{V_TH}, v{V_TH}, v3, vcc
        """)
        a(f"""
        v_lshlrev_b32 v{V_HL0}, 4, v0
        v_add_u32 v{V_HL1}, 4096, v{V_HL0}
        s_mul_i32 s{S_OSO}, s{S_RB0}, 20480
        s_add_u32 s{S_OSO}, s{S_OSO}, s6
        """)

    def wd_addr_ops(self, base_expr_sgpr):
        L = f"""
        v_lshrrev_b32 v1, 5, v0
        v_lshlrev_b32 v1, 4, v1
        v_bfe_u32 v2, v0, 2, 3
        v_add_u32 v1, v1, v2
        v_lshlrev_b32 v1, 7, v1
        v_lshrrev_b32 v2, 1, v2
        v_lshlrev_b32 v2, 5, v2
        v_and_b32 v3, 3, v0
        v_lshlrev_b32 v3, 3, v3
        v_add3_u32 v1, v1, v2, v3
        v_add_u32 v{V_DR}, s{base_expr_sgpr}, v1
        v_xor_b32 v{V_DR+1}, 32, v{V_DR}
        v_xor_b32 v{V_DR+2}, 64, v{V_DR}
        v_xor_b32 v{V_DR+3}, 96, v{V_DR}
        """
        M = f"""
        v_lshrrev_b32 v1, 4, v0
        v_lshlrev_b32 v1, 1, v1
        v_and_b32 v2, 7, v0
        v_xor_b32 v1, v1, v2
        v_lshlrev_b32 v1, 4, v1
        v_lshrrev_b32 v2, 3, v0
        v_mul_u32_u24 v2, 1280, v2
        v_add_u32 v{V_WD}, v1, v2
        v_add_u32 v{V_WD+1}, {8*1280-1024}, v{V_WD}
        v_add_u32 v{V_WD+2}, {2*(8*1280-1024)}, v{V_WD}
        v_add_u32 v{V_WD+3}, {3*(8*1280-1024)}, v{V_WD}
        """
        f = lambda s: [x.strip() for x in s.split("\n") if x.strip()]
        return f(L), f(M)

    def poll(self, a, slots):
        if self.opt.get("nopoll"): return
        m = 0
        for i in slots: m |= 3 << (2 * i)
        a(f"s_mov_b64 exec, {m:#x}")
        a.vmi(f"buffer_load_dword v{V_F}, v{V_FO}, {sF}, 0 offen sc1", None)
        for x in slots: a.alias(("poll", x))
        a("s_mov_b64 exec, -1")
    def check(self, a, i, tag, uid):
        m = 3 << (2 * i)
        a.need(vm=tag)
        a(f"L_chk_{uid}_{i}:")
        a(f"v_cmp_eq_u32 vcc, s{S_NON}, v{V_F}")
        a(f"s_andn2_b32 s{T0}, {m:#x}, vcc_lo")
        if not self.opt.get("nochk"): a(f"s_cbranch_scc1 L_slow_{uid}_{i}")
        a(f"L_ok_{uid}_{i}:")
        self.slow.append(f"""
        L_slow_{uid}_{i}:
        s_cmp_eq_u32 s{S_TO}, 0
        s_cbranch_scc1 L_ok_{uid}_{i}
        s_sub_u32 s{S_TO}, s{S_TO}, 1
        s_sleep {self.opt.get("sleepf", 8) if uid == "f" and i < 6 else self.opt.get("sleepn", 1)}
        s_mov_b64 exec, {(0x3f << (2*i)) & 0xfffffff:#x}
        buffer_load_dword v{V_F}, v{V_FO}, {sF}, 0 offen sc1
        s_mov_b64 exec, -1
        s_waitcnt vmcnt(0)
        s_branch L_chk_{uid}_{i}
        """)
    def nonce_get(self, a, uid):
        a.need(vm="nonce")
        a(f"L_nchk_{uid}:")
        a(f"v_readfirstlane_b32 s{S_NON}, v{V_NON}")
        a(f"s_cmp_eq_u32 s{S_NON}, 0")
        a(f"s_cbranch_scc1 L_nslow_{uid}")
        a(f"L_nok_{uid}:")
        self.slow.append(f"""
        L_nslow_{uid}:
        s_cmp_eq_u32 s{S_TO}, 0
        s_cbranch_scc1 L_nok_{uid}
        s_sub_u32 s{S_TO}, s{S_TO}, 1
        buffer_load_dword v{V_NON}, off, {sG}, 0 sc1
        s_waitcnt vmcnt(0)
        s_branch L_nchk_{uid}
        """)

    def p2_plan(self, nblk):
        G = self.opt.get("tailg", 3)
        order = [(i, rb) for i in range(14 - G) for rb in range(nblk)]
        order += [(i, rb) for rb in range(nblk) for i in range(14 - G, 14)]
        return order
    def h_issue(self, a, q, order, hbuf, uid, seen):
        i, rb = order[q]
        hp = self.opt.get("hldpol", "sc1")
        v = V_HL0 if rb < 4 else V_HL1
        d = a.n - a.last_rl
        if d < 5: a(f"s_nop {4-d}")
        a.vmi(f"buffer_load_dwordx4 {RR(hbuf(q))}, v{v}, {sH}, s{S_HL + i % 3} offen offset:{1024*(rb%4)} {hp}", ("h", q))
    def h_pre(self, a, q, order, uid, seen):
        i, rb = order[q]
        if i not in seen:
            seen.add(i)
            a(f"v_readlane_b32 s{S_HL + i % 3}, v{V_TH}, {10+i}")
            if self.opt.get("nohld"): a(f"s_mov_b32 s{S_HL + i % 3}, {HB}")
            if self.opt.get("nopoll"): return
            self.check(a, i, ("poll", i), uid)
    def p2_main(self, a, nblk, uid, acc, hbuf, wdf, extra, REG, sreg, seen):
        order = self.p2_plan(nblk)
        LAH = self.LAH(nblk); PD = self.opt.get("pd", LAH)
        NF = len(order)
        first = {}
        for q, (i, rb) in enumerate(order): first.setdefault(i, q)
        pollpos = {}
        for i in range(self.P0, 14):
            pollpos.setdefault(max(0, first[i] - LAH - PD), []).append(i)
        lastq = {}
        for q, (i, rb) in enumerate(order): lastq[rb] = q
        wq = []
        VW, VR = 16, 8
        started = set()
        for q, (i, rb) in enumerate(order):
            if uid == "n" and q % nblk == 0: self.tr(a, f"S{q//nblk}")
            for nb in range(4):
                a.need(vm=("h", q), lg=("wd", i, nb))
                ac = acc(rb, nb)
                c = RR(ac) if (rb, nb) in started else "0"
                started.add((rb, nb))
                a.mfma(f"v_mfma_f32_16x16x32_bf16 {RR(ac)}, {RR(off(wdf(i), nb*4))}, {RR(hbuf(q))}, {c}", ac)
                if nb == 0:
                    if q in pollpos:
                        self.poll(a, pollpos[q])
                if nb == 1 and q + LAH < NF: self.h_pre(a, q + LAH, order, uid, seen)
                if nb == 3 and q + LAH < NF: self.h_issue(a, q + LAH, order, hbuf, uid, seen)
                if wq and wq[0][0] <= q * 4 + nb:
                    _, r2, n2 = wq.pop(0)
                    a.after_mfma(acc(r2, n2), 9)
                    a.lgi(f"ds_write_b128 v{VW + (n2 & 1)}, {RR(acc(r2, n2))} offset:{r2*4096 + (n2 >> 1)*128}", "red")
                extra(q, nb)
                if q == NF - 8 * nblk // 2 and nb == 2:
                    a(f"""
                    v_and_b32 v1, 15, v0
                    v_lshrrev_b32 v2, 4, v0
                    v_and_b32 v3, 7, v0
                    v_xor_b32 v2, v2, v3
                    v_lshlrev_b32 v2, 4, v2
                    v_lshl_add_u32 v1, v1, 8, v2
                    v_add_u32 v{VW}, s{sreg}, v1
                    v_xor_b32 v{VW+1}, 64, v{VW}
                    """)
                if q == NF - 8 * nblk // 2 + 1 and nb == 2:
                    a(f"""
                    v_lshrrev_b32 v1, 3, v0
                    v_lshlrev_b32 v2, 1, v3
                    v_xor_b32 v2, v2, v1
                    v_lshlrev_b32 v2, 4, v2
                    s_lshl_b32 s{T1}, s{S_W}, 3
                    v_add_u32 v1, s{T1}, v1
                    v_lshl_add_u32 v{VR}, v1, 8, v2
                    v_xor_b32 v{VR+1}, 16, v{VR}
                    """)
                if q == NF - 8 * nblk // 2 + 2 and nb == 2:
                    a(f"""
                    v_add_u32 v{VR+2}, {2*REG}, v{VR}
                    v_add_u32 v{VR+3}, {2*REG}, v{VR+1}
                    v_mul_u32_u24 v1, 1280, v1
                    v_lshl_add_u32 v18, v3, 4, v1
                    v_add_u32 v19, s{S_OLAST}, v18
                    """)
            if q == lastq[rb]:
                for n2 in range(4): wq.append((q * 4 + 6 + 3 * n2, rb, n2))
        self.stamp(a, 7)
        if uid == "n": self.tr(a, "p2end")
        while wq:
            _, r2, n2 = wq.pop(0)
            a.after_mfma(acc(r2, n2), 9)
            a.lgi(f"ds_write_b128 v{VW + (n2 & 1)}, {RR(acc(r2, n2))} offset:{r2*4096 + (n2 >> 1)*128}", "red")
        a.wait_all(vm=False)
        if uid == "n": self.tr(a, "redw")
        a("s_barrier")
        if uid == "n": self.tr(a, "redb")
        TMP = 32
        opol = self.opt.get("opol", "")
        def rd(qi):
            for pw in range(4):
                for hf in range(2):
                    t = TMP + qi * 32 + pw * 8 + hf * 4
                    a.lgi(f"ds_read_b128 {R('v', t)}, v{VR + hf + 2*(pw >> 1)} offset:{(pw & 1)*REG + qi*8192}", ("rr", qi, pw))
        rd(0); rd(1)
        for qi in range(3):
            t = TMP + qi * 32
            a.need(lg=("rr", qi, 1))
            for r in range(0, 8, 2): a(f"v_pk_add_f32 {R('v',t+r,2)}, {R('v',t+r,2)}, {R('v',t+8+r,2)}")
            a.need(lg=("rr", qi, 3))
            if qi == 0: rd(2)
            for r in range(0, 8, 2): a(f"v_pk_add_f32 {R('v',t+16+r,2)}, {R('v',t+16+r,2)}, {R('v',t+24+r,2)}")
            for r in range(0, 8, 2): a(f"v_pk_add_f32 {R('v',t+r,2)}, {R('v',t+r,2)}, {R('v',t+16+r,2)}")
            for d in range(4): a(f"v_cvt_pk_bf16_f32 v{t+8+d}, v{t+2*d}, v{t+2*d+1}")
            a.vmi(f"buffer_store_dwordx4 {R('v',t+8)}, v{19 if qi == 2 else 18}, {sO}, s{S_OSO} offen {opol}", "ost")
            if qi < 2: a(f"s_add_u32 s{S_OSO}, s{S_OSO}, {32*1280}")
    def LAH(self, nblk): return self.opt.get("lah", 10)
    P0 = 4

    def srds(self, a):
        a(f"""
        s_mov_b32 s10, {XB}
        s_mov_b32 s11, 0x00020000
        s_mov_b32 s14, {WB}
        s_mov_b32 s15, 0x00020000
        s_cmp_ge_u32 s{S_W}, 2
        s_waitcnt lgkmcnt(0)
        s_mov_b32 s8, s4
        s_mov_b32 s9, s5
        s_cselect_b32 s12, s64, s6
        s_cselect_b32 s13, s65, s7
        """)
    def srds2(self, a):
        a(f"""
        s_mov_b32 s16, s68
        s_mov_b32 s17, s69
        s_mov_b32 s18, {HB}
        s_mov_b32 s19, 0x00020000
        s_mov_b32 s20, {"s64" if self.opt.get("dbgwd") else "s66"}
        s_mov_b32 s21, {"s65" if self.opt.get("dbgwd") else "s67"}
        s_mov_b32 s22, {WB}
        s_mov_b32 s23, 0x00020000
        s_mov_b32 s32, s26
        s_mov_b32 s33, s27
        s_mov_b32 s34, 256
        s_mov_b32 s35, 0x00020000
        s_mov_b32 s26, {OB}
        s_mov_b32 s27, 0x00020000
        s_add_u32 s28, s68, {FLAG_OFF}
        s_addc_u32 s29, s69, 0
        s_mov_b32 s30, {FLAG_B}
        s_mov_b32 s31, 0x00020000
        s_mov_b32 s{S_TO}, 100000
        """)

    def normal(self, a):
        opt = self.opt
        rot = opt.get("rot", 1)
        hpol = opt.get("hpol", "sc1")
        ldpol = opt.get("ldpol", "")
        exact = opt.get("exact", 0)
        a(f"""
        s_lshr_b32 s{T0}, s{S_XCD}, 1
        s_mul_i32 s{S_C}, s{T0}, 7
        s_lshr_b32 s{S_K0}, s{S_J}, 2
        s_add_u32 s{S_C}, s{S_C}, s{S_K0}
        s_and_b32 s{S_RG}, s{S_XCD}, 1
        s_lshl_b32 s{S_RG}, s{S_RG}, 2
        s_and_b32 s{T0}, s{S_J}, 3
        s_add_u32 s{S_RG}, s{S_RG}, s{T0}
        """)
        GR = 10 if rot in (1, 20) else max(rot, 1)
        XORROT = 0
        if rot < 0:
            XORROT = -rot
            a(f"""
            s_add_u32 s{S_K0}, s{S_K0}, s{T0}
            s_and_b32 s{S_K0}, s{S_K0}, 1
            """)
        elif rot == 20:
            dl = opt.get("delta", 0)
            a(f"""
            s_add_u32 s{S_K0}, s{S_K0}, s{T0}
            s_and_b32 s{T0}, s{S_XCD}, 1
            s_mul_i32 s{T0}, s{T0}, {dl}
            s_add_u32 s{S_K0}, s{S_K0}, s{T0}
            s_mul_i32 s{T0}, s{S_K0}, 52
            s_lshr_b32 s{T0}, s{T0}, 8
            s_mul_i32 s{T0}, s{T0}, 5
            s_sub_u32 s{S_K0}, s{S_K0}, s{T0}
            s_lshl_b32 s{S_K0}, s{S_K0}, 1
            """)
        elif rot == 0:
            a(f"s_mov_b32 s{S_K0}, 0")
        elif rot >= 2:
            mg = (256 + rot - 1) // rot
            a(f"""
            s_add_u32 s{S_K0}, s{S_K0}, s{T0}
            s_mul_i32 s{T0}, s{S_K0}, {mg}
            s_lshr_b32 s{T0}, s{T0}, 8
            s_mul_i32 s{T0}, s{T0}, {rot}
            s_sub_u32 s{S_K0}, s{S_K0}, s{T0}
            """)
        elif rot == 1:
            a(f"""
            s_mul_i32 s{T0}, s{T0}, 5
            s_lshr_b32 s{T0}, s{T0}, 1
            s_add_u32 s{S_K0}, s{S_K0}, s{T0}
            s_cmp_ge_u32 s{S_K0}, 10
            s_cselect_b32 s{T0}, 10, 0
            s_sub_u32 s{S_K0}, s{S_K0}, s{T0}
            """)
        if opt.get("browrot", 1):
            a(f"s_mul_i32 s{S_SC}, s{S_C}, 19\ns_lshr_b32 s{S_SC}, s{S_SC}, 6")
        else:
            a(f"s_mov_b32 s{S_SC}, 0")
        a(f"""
        v_lshrrev_b32 v2, 3, v0
        v_and_b32 v3, 7, v0
        v_lshrrev_b32 v4, 4, v0
        v_xor_b32 v5, v4, v3
        v_lshlrev_b32 v5, 4, v5
        v_mul_u32_u24 v6, 1280, v2
        v_add_u32 v{V_XD}, v5, v6
        v_xor_b32 v5, 64, v5
        v_add_u32 v5, v5, v6
        v_add_u32 v{V_XD+1}, {8*1280-1024}, v5
        v_add_u32 v{V_XD+2}, {2*(8*1280-1024)}, v{V_XD}
        v_add_u32 v{V_XD+3}, {3*(8*1280-1024)}, v5
        s_and_b32 s{T0}, s{S_W}, 2
        v_and_b32 v5, 1, v4
        v_add_u32 v5, s{T0}, v5
        v_lshlrev_b32 v5, 1, v5
        v_xor_b32 v5, v5, v3
        v_lshlrev_b32 v5, 4, v5
        v_mul_u32_u24 v6, 3456, v2
        v_add_u32 v{V_WD}, v5, v6
        v_add_u32 v{V_WD+1}, {8*3456-1024}, v{V_WD}
        v_add_u32 v{V_WD+2}, {2*(8*3456-1024)}, v{V_WD}
        v_add_u32 v{V_WD+3}, {3*(8*3456-1024)}, v{V_WD}
        """)
        a(f"""
        s_lshl_b32 s{T1}, s{S_RG}, 3
        s_add_u32 s{T0}, s{S_SC}, s{S_W}
        s_and_b32 s{T0}, s{T0}, 7
        s_add_u32 s{T0}, s{T0}, s{T1}
        s_mul_i32 s{T0}, s{T0}, 40960
        s_lshl_b32 s{T2}, s{S_K0}, 7
        s_add_u32 s{S_XSO}, s{T0}, s{T2}
        s_and_b32 s{T0}, s{S_W}, 1
        s_mul_i32 s{T0}, s{T0}, 110592
        s_lshl_b32 s{T2}, s{S_C}, 7
        s_add_u32 s{T3}, s{T0}, s{T2}
        s_mul_i32 s{T2}, s{S_K0}, 221184
        s_add_u32 s{S_WSO}, s{T3}, s{T2}
        s_lshl_b32 s{S_MX}, s{S_W}, 12
        s_add_u32 s{S_MW}, s{S_MX}, 65536
        """)
        self.srds(a)
        self.stamp(a, 1)
        xpol = opt.get("xpol", ldpol); wpol = opt.get("wpol", ldpol); dpol = opt.get("dpol", "")
        SO = [S_WSO, S_XSO]
        def four(kind, half, lane, ldsoff, tag):
            srd, vb, m0, tabv, pol = {"x": (sX, V_XD, S_MX, V_TX, xpol), "w": (sW, V_WD, S_MW, V_TW, wpol), "d": (sD, V_WD, S_MW, V_TW, dpol)}[kind]
            so = SO[half]
            return dict(rl=f"v_readlane_b32 s{so}, v{tabv}, {lane}", m0=f"s_add_u32 m0, s{m0}, {ldsoff}",
                        ins=[(f"buffer_load_dwordx4 v{vb+k}, {srd}, s{so} offen offset:{1024*k} {pol} lds", tag) for k in range(4)])
        def dma_group(g):
            o = (g % 4) * 16384
            if g < 10: return [four("w", 0, g, o, ("dma", g)), four("x", 1, g, o, ("dma", g))]
            if g < 20: return [four("x", 0, g, o, ("dma", g)), four("d", 1, g, o, ("wdd", g - 10))]
            if g == 20: return [four("d", 0, 20, 0, ("wdd", 10)), four("d", 1, 21, 16384, ("wdd", 11))]
            return [None, None]
        def issue_now(h, rl=True):
            if rl: a(h["rl"]); a("s_nop 3")
            a(h["m0"]); a("s_nop 0")
            for ins, tag in h["ins"]: a.vmi(ins, tag)
        self.tr(a, "srd")
        for h in dma_group(0): issue_now(h, False)
        self.tr(a, "dma0")
        self.srds2(a)
        a(f"""
        s_memrealtime s[4:5]
        s_or_b32 s6, s2, s{S_W}
        v_or_b32 v1, s6, v0
        v_cmp_eq_u32 vcc, 0, v1
        v_mov_b32 v2, {OOBV}
        s_waitcnt lgkmcnt(0)
        s_or_b32 s4, s4, 1
        v_cndmask_b32 v1, v2, v1, vcc
        v_mov_b32 v3, s4
        """)
        a.vmi(f"buffer_store_dword v3, v1, {sG}, 0 offen sc1", "nst")
        a(f"""
        s_mul_i32 s4, s{S_RG}, 27
        s_add_u32 s4, s4, s{S_C}
        s_mul_i32 s4, s4, 640
        s_add_u32 s{S_FB}, s28, s4
        s_addc_u32 s{S_FB+1}, s29, 0
        """)
        a(f"""
        v_subrev_u32 v1, 10, v0
        v_lshlrev_b32 v1, 2, v1
        v_add_u32 v1, s{S_W}, v1
        v_and_b32 v1, 0xff, v1
        v_mul_u32_u24 v2, 26, v1
        v_lshrrev_b32 v2, 8, v2
        v_mul_u32_u24 v3, 10, v2
        v_sub_u32 v1, v1, v3
        v_add_u32 v2, 4, v2
        v_cmp_gt_u32 vcc, 10, v0
        v_mov_b32 v3, s{S_W}
        s_mov_b32 s4, 40960
        v_cndmask_b32 v1, v1, v0, vcc
        v_cndmask_b32 v2, v2, v3, vcc
        v_cmp_gt_u32 vcc, {XORROT if XORROT else GR}, v1
        v_add_u32 v4, s{S_K0}, v1
        v_subrev_u32 v3, {GR}, v4
        {f"v_xor_b32 v4, s{S_K0}, v1" if XORROT else "v_min_u32 v4, v4, v3"}
        v_cndmask_b32 v1, v1, v4, vcc
        v_add_u32 v2, s{S_SC}, v2
        v_and_b32 v2, 7, v2
        v_add_u32 v2, s{T1}, v2
        v_mul_lo_u32 v2, v2, s4
        v_lshlrev_b32 v3, 7, v1
        v_add_u32 v{V_TX}, v2, v3
        s_mov_b32 s4, 221184
        v_mul_lo_u32 v2, v1, s4
        v_add_u32 v{V_TW}, s{T3}, v2
        s_lshr_b32 s4, s{S_W}, 1
        s_lshl_b32 s5, s{S_C}, 1
        s_add_u32 s4, s4, s5
        s_lshl_b32 s4, s4, 7
        s_lshl_b32 s5, s{S_RG}, 4
        s_add_u32 s4, s4, s5
        v_add_u32 v1, s{S_SC}, v0
        v_and_b32 v1, 7, v1
        v_lshlrev_b32 v1, 1, v1
        v_add_u32 v1, s4, v1
        v_lshlrev_b32 v{V_TH}, 10, v1
        """)
        a(f"""
        v_and_b32 v2, 31, v0
        v_lshrrev_b32 v3, 5, v0
        v_bfe_u32 v4, v0, 1, 3
        v_xor_b32 v4, v4, v3
        v_lshlrev_b32 v4, 4, v4
        v_lshl_add_u32 v{V_XR}, v2, 7, v4
        v_xor_b32 v{V_XR+1}, 32, v{V_XR}
        v_xor_b32 v{V_XR+2}, 64, v{V_XR}
        v_xor_b32 v{V_XR+3}, 96, v{V_XR}
        v_bfe_u32 v4, v0, 4, 1
        v_bfe_u32 v5, v0, 2, 2
        v_lshl_add_u32 v6, v3, 3, v5
        v_lshlrev_b32 v6, 7, v6
        v_lshl_add_u32 v6, v4, 13, v6
        v_bfe_u32 v7, v0, 3, 2
        v_xor_b32 v7, s{S_W}, v7
        v_lshl_add_u32 v6, v7, 5, v6
        v_and_b32 v7, 3, v0
        v_lshl_add_u32 v6, v7, 3, v6
        v_add_u32 v{V_WR}, 65536, v6
        s_and_b32 s4, s{S_W}, 1
        s_lshl_b32 s4, s4, 1
        v_add_u32 v6, s4, v3
        v_lshlrev_b32 v6, 8, v6
        v_lshl_add_u32 v6, v4, 10, v6
        v_and_b32 v7, 15, v0
        v_lshl_add_u32 v{V_HS}, v7, 4, v6
        """)
        a(f"""
        s_mul_i32 s4, s{S_XCD}, 28
        s_cmp_eq_u32 s{S_XCD}, 7
        s_cselect_b32 s4, 192, s4
        s_add_u32 s4, s4, s{S_J}
        s_mul_i32 s5, s4, 205
        s_lshr_b32 s5, s5, 11
        s_mul_i32 s6, s5, 10
        s_sub_u32 s{S_N}, s4, s6
        s_mul_i32 s{S_RB0}, s5, 5
        s_cmp_ge_u32 s{S_W}, 2
        s_cselect_b32 s{S_OLAST}, {OOBV}, 0
        s_mul_i32 s{S_T0}, s{S_W}, 20480
        """)
        self.p2_setup(a, 5, None)
        trL, wdM = self.wd_addr_ops(S_MW)
        for x in trL: a(x)
        self.tr(a, "setup")
        for h in dma_group(1): issue_now(h)
        self.tr(a, "dma1")

        A0, A4 = 32, 48
        ACC = [A0, 64, 80, 96, A4]
        XF = 112
        LA = 7
        def wdf(i):
            if i < 6: return ('a', 160 + 16 * i)
            if i < 11: return ('v', 144 + 16 * (i - 6))
            return ('v', 64 + 16 * (i - 11))
        HB_ = [('v', 224 + 4 * k) for k in range(6)] + [('a', 4 * k) for k in range(9)]
        def hbuf(q): return HB_[q % 15]
        def acc2(rb, nb): return ('a', 40 + (rb * 4 + nb) * 4)
        def minfo(n):
            if n < 160:
                s = n >> 4; ks = (n >> 2) & 3; b = n & 3
                return dict(stage=s, unit=b, ks=ks, wf=4*s+ks, acc=ACC[b], first=(s == 0 and ks == 0), blk=b, last=(n >= 156))
            m = n - 160; u = m >> 2; ks = m & 3
            blk = 4 + u // 10; kk = u % 10
            return dict(stage=10 + (u >> 2), unit=u & 3, ks=ks, wf=4*kk+ks, acc=ACC[4] if blk % 2 == 0 else ACC[0],
                        first=(kk == 0 and ks == 0), blk=blk, last=(kk == 9 and ks == 3))
        epi = []
        pubs = []
        stN = opt.get("stN", {0: 206, 1: 206, 2: 206, 3: 206, 4: 206, 5: 247, 6: 288, 7: 327})
        stN = {int(k): v for k, v in stN.items()}
        EP = opt.get("epr", 2)
        sts = []
        def add_epi(blk, acc, n):
            dst = acc + 8
            if blk == 0: dst = 248
            ops = []
            if exact:
                for j in range(16):
                    ops.append(("v", f"v_cvt_pk_bf16_f32 v{acc+j}, 0, v{acc+j}", acc))
            for j in range(8):
                ops.append(("v", f"v_mul_f32 v{acc+j}, v{acc+j}, v{acc+8+j}", acc))
            for d in range(4):
                ops.append(("v", f"v_cvt_pk_bf16_f32 v{dst+d}, v{acc+2*d}, v{acc+2*d+1}", acc))
            ops.insert(0, ("r", f"v_readlane_b32 s{S_HS8+blk}, v{V_TH}, {blk}", acc))
            ops.append(("s", f"buffer_store_dwordx4 {R('v',dst)}, v{V_HS}, {sH}, s{S_HS8+blk} offen {hpol}", blk))
            for o in ops: epi.append((n + 3, o))
        def run_epi(n):
            cnt = EP if n < 200 else EP + 1
            while epi and epi[0][0] <= n and (cnt > 0 or epi[0][1][0] == "s"):
                _, (kind, ins, x) = epi.pop(0)
                if kind == "v":
                    a.after_mfma(x, 13); a(ins); cnt -= 1
                elif kind == "r":
                    a(ins); cnt -= 1
                else:
                    sts.append((stN[x], ins, x))
            while sts and sts[0][0] <= n:
                _, ins, x = sts.pop(0)
                if opt.get("nohst"): continue
                a.vmi(ins, ("hst", x))
                if x >= 3: pubs.append((max(0, x - 3), ("hst", x)))
        def pub_ready():
            return bool(pubs) and a.vm_covered(pubs[0][1])
        def run_pub():
            ks = []
            while pub_ready(): ks.append(pubs.pop(0)[0])
            if ks:
                a(f"s_cmp_lg_u32 s{S_W}, 0")
                a(f"s_cbranch_scc1 L_pub_{ks[0]}")
                for k in ks: a(f"s_atomic_swap s{S_NON}, s[{S_FB}:{S_FB+1}], {128*k}")
                a(f"L_pub_{ks[0]}:")
        def wd_trs(i, ldsoff):
            return [(f"ds_read_b64_tr_b16 {RR(off(wdf(i), nb*4+2*rd), 2)}, v{V_DR+nb} offset:{ldsoff + rd*1024}", ("wd", i, nb)) for nb in range(4) for rd in range(2)]
        trq = []; misc = []
        WG = opt.get("waitgran", 2)
        order = self.p2_plan(5); LAH = self.LAH(5); seen = set()
        hq = 0
        a(dma_group(2)[0]["rl"])
        for n in range(-LA, 320):
            if n >= 0:
                mi = minfo(n)
                if n % WG == 0:
                    needs = [("x", min(319, n + WG - 1))]
                    if n < 160 and mi["unit"] == 0: needs.append(("w", mi["wf"]))
                    a.need(lg=needs)
                acc = mi["acc"]; xf = XF + (n & 7) * 4
                c = "0" if mi["first"] else R("v", acc, 16)
                if opt.get("dbgnomfma") == 1: a.mfma("s_nop 7", acc)
                elif opt.get("dbgnomfma") == 2 and n % 2: a.mfma("s_nop 7", acc)
                else: a.mfma(f"v_mfma_f32_32x32x16_bf16 {R('v',acc,16)}, {R('a',mi['wf']*4)}, {R('v',xf)}, {c}", acc)
                if mi["last"]: add_epi(mi["blk"], acc, n)
                if n == 0: self.stamp(a, 3)
                if n == 159: self.stamp(a, 4)
            nn = n + LA
            s = nn >> 4; gp = nn & 15
            grp = dma_group(s + 2)
            if gp == 0:
                assert not trq
                if s < 20:
                    tags = [("dma", s)]
                    if s >= 10: tags.append(("wdd", s - 10))
                    a.need(vm=tags)
                    a("s_barrier")
                    if s == 0: self.stamp(a, 2)
                    run_pub()
                    self.tr(a, f"B{s}")
                    if s >= 10: trq = wd_trs(s - 10, (s % 4) * 16384)
                else:
                    a.need(vm=("wdd", 10))
                    trq = wd_trs(10, 0)
                if s == 8: misc += wdM
                if s == 2: misc.append(("nonce_ld",))
                if s == 6: misc.append(("nonce_get",))
                if s == 18: misc.append(("poll", [0, 1]))
                if s == 19: misc.append(("poll", [2, 3]))
            h = grp[gp >> 3]
            if h and gp % 8 == 0: a(h["m0"])
            if gp == 4 and grp[1]: a(grp[1]["rl"])
            if gp == 12 and dma_group(s + 3)[0]: a(dma_group(s + 3)[0]["rl"])
            if nn < 320:
                mi = minfo(nn)
                slot = mi["stage"] % 4
                a.lgi(f"ds_read_b128 {R('v', XF + (nn & 7)*4)}, v{V_XR+mi['ks']} offset:{slot*16384 + mi['unit']*4096}", ("x", nn))
                if nn < 160 and mi["unit"] in (0, 2):
                    rd = mi["unit"] >> 1
                    a.lgi(f"ds_read_b64_tr_b16 {R('a', mi['wf']*4+2*rd, 2)}, v{V_WR} offset:{slot*16384 + mi['ks']*2048 + rd*512}", ("w", mi["wf"]))
            if trq and (nn % 2 == 0 or nn >= 320):
                ins, tag = trq.pop(0); a.lgi(ins, tag)
            k = 2
            while misc and k > 0:
                x = misc.pop(0); k -= 1
                if x == ("nonce_ld",): a.vmi(f"buffer_load_dword v{V_NON}, off, {sG}, 0 sc1", "nonce")
                elif x == ("nonce_get",): self.nonce_get(a, "n")
                elif x[0] == "poll": self.poll(a, x[1])
                else: a(x)
            if h and gp % 2 == 1:
                d = a.n - a.last_rl
                if gp % 8 == 1 and d < 5: a(f"s_nop {4-d}")
                ins, tag = h["ins"][(gp & 7) >> 1]; a.vmi(ins, tag)
            if s >= 19 and hq < LAH:
                if gp % 2 == 0: self.h_pre(a, hq, order, "n", seen)
                else: self.h_issue(a, hq, order, hbuf, "n", seen); hq += 1
            run_epi(n)
        self.stamp(a, 5)
        while trq:
            ins, tag = trq.pop(0); a.lgi(ins, tag)
        while hq < LAH:
            self.h_pre(a, hq, order, "n", seen); self.h_issue(a, hq, order, hbuf, "n", seen); hq += 1
        st = dict(q=[], tr=[])
        def extra(q, nb):
            n = 320 + (q * 4 + nb) // 2
            run_epi(n)
            if nb == 0 and pub_ready():
                if pubs[0][0] == 4: a.need(lg=("wd", 11, 3))
                a("s_barrier"); run_pub()
            if q == 5 and nb == 0:
                a.need(vm=("wdd", 11)); st["tr"] = wd_trs(11, 16384)
            if opt.get("nohst") and q == 14 and nb == 0:
                a.need(lg=("wd", 11, 3)); a("s_barrier")
            for (q0, i, lo) in ((6, 12, 2), (22, 13, 3)):
                hh = four("d", 0, 10 + i, lo * 16384, ("wdd", i))
                if q == q0 and nb == 0: a(hh["rl"]); a(hh["m0"])
                if q0 < q <= q0 + 13 and (q - q0) % 4 == 1 and nb == 1:
                    ins, tag = hh["ins"][(q - q0) // 4]; a.vmi(ins, tag)
                if q == q0 + 25 and nb == 0:
                    a.need(vm=("wdd", i)); st["tr"] = wd_trs(i, lo * 16384)
            if st["tr"] and nb in (0, 2):
                ins, tag = st["tr"].pop(0); a.lgi(ins, tag)
        self.p2_main(a, 5, "n", acc2, hbuf, wdf, extra, 20480, S_T0, seen)
        assert not epi and not pubs and not sts

    def prefetch_miss(self, a):
        dl = self.opt.get("delta", 0)
        a(f"""
        s_cmp_ge_u32 s{S_XCD}, 6
        s_cselect_b32 s{T1}, 24, 28
        s_cselect_b32 s{S_SC}, 1, 0
        s_sub_u32 s{T1}, s{S_J}, s{T1}
        s_lshl_b32 s{T1}, s{T1}, 2
        s_add_u32 s{T1}, s{T1}, s{S_W}
        s_lshr_b32 s{T2}, s{T1}, 4
        s_and_b32 s{T1}, s{T1}, 15
        s_lshr_b32 s{T3}, s{S_XCD}, 1
        s_and_b32 s4, s{S_XCD}, 1
        s_mul_i32 s4, s4, {dl}
        s_add_u32 s4, s4, 4
        v_and_b32 v2, 7, v0
        v_add_u32 v3, s4, v2
        v_mul_u32_u24 v4, 52, v3
        v_lshrrev_b32 v4, 8, v4
        v_mul_u32_u24 v4, 5, v4
        v_sub_u32 v3, v3, v4
        v_lshlrev_b32 v3, 7, v3
        v_lshrrev_b32 v1, 3, v0
        v_add_u32 v1, v1, v3
        v_mul_u32_u24 v1, 3456, v1
        v_lshl_add_u32 v1, v2, 7, v1
        v_cmp_eq_u32 vcc, 7, v2
        v_mov_b32 v3, {OOBV}
        s_mul_i32 s4, s{T1}, {8*3456}
        v_cndmask_b32 v1, v1, v3, vcc
        s_mul_i32 s5, s{T3}, 896
        s_add_u32 s4, s4, s5
        s_cmp_eq_u32 s{T2}, 1
        s_cselect_b32 s12, s64, s6
        s_cselect_b32 s13, s65, s7
        buffer_load_dword v254, v1, {sW}, s4 offen
        s_cmp_eq_u32 s{S_SC}, 1
        s_cbranch_scc1 L_pm_done
        s_mov_b32 s12, s64
        s_mov_b32 s13, s65
        buffer_load_dword v254, v1, {sW}, s4 offen
        L_pm_done:
        """)
    def prefetch_even(self, a):
        pf = self.opt["pfe"]
        wpol = self.opt.get("pfwpol", "")
        a(f"""
        s_lshl_b32 s{T1}, s{S_K0}, 2
        s_add_u32 s{T1}, s{T1}, s{S_W}
        s_cmp_ge_u32 s{T1}, 80
        s_cselect_b32 s12, s64, s6
        s_cselect_b32 s13, s65, s7
        s_cselect_b32 s{T2}, 80, 0
        s_sub_u32 s{T2}, s{T1}, s{T2}
        s_mul_i32 s{T2}, s{T2}, 22
        v_add_u32 v1, s{T2}, v0
        v_mov_b32 v3, {OOBV}
        v_cmp_gt_u32 vcc, 1728, v1
        v_cmp_gt_u32 s[4:5], 22, v0
        v_lshlrev_b32 v1, 7, v1
        s_and_b64 vcc, vcc, s[4:5]
        s_mul_i32 s{T2}, s{T1}, 13
        v_cndmask_b32 v1, v3, v1, vcc
        v_add_u32 v2, s{T2}, v0
        v_cmp_gt_u32 vcc, 13, v0
        v_mul_u32_u24 v2, 1280, v2
        s_mov_b32 s4, {pf*221184}
        s_mov_b32 s5, {pf*128}
        v_cndmask_b32 v2, v3, v2, vcc
        L_pf:
        buffer_load_dword v254, v1, {sW}, s4 offen {wpol}
        buffer_load_dword v254, v2, {sX}, s5 offen
        s_add_u32 s4, s4, 221184
        s_add_u32 s5, s5, 128
        s_cmp_lt_u32 s5, 1280
        s_cbranch_scc1 L_pf
        """)
    def prefetch(self, a):
        if self.opt.get("pfm"): return self.prefetch_miss(a)
        if "pfe" in self.opt: return self.prefetch_even(a)
        pf = self.opt.get("pf")
        if pf is None: return
        wpol = self.opt.get("pfwpol", "")
        a(f"""
        s_cmp_ge_u32 s{S_XCD}, 6
        s_cselect_b32 s{T1}, 24, 28
        s_cselect_b32 s{S_SC}, 2, 1
        s_sub_u32 s{T1}, s{S_J}, s{T1}
        s_lshl_b32 s{T1}, s{T1}, 2
        s_add_u32 s{T1}, s{T1}, s{S_W}
        s_lshr_b32 s{T2}, s{T1}, 4
        s_and_b32 s{T1}, s{T1}, 15
        s_bitcmp1_b32 s{S_XCD}, 0
        s_cselect_b32 s12, s64, s6
        s_cselect_b32 s13, s65, s7
        s_lshr_b32 s{T3}, s{S_XCD}, 1
        v_lshrrev_b32 v1, 3, v0
        v_and_b32 v2, 7, v0
        v_mul_u32_u24 v1, 3456, v1
        v_lshl_add_u32 v1, v2, 7, v1
        v_cmp_eq_u32 vcc, 7, v2
        v_mov_b32 v3, {OOBV}
        s_mul_i32 s4, s{T1}, {8*3456}
        v_cndmask_b32 v1, v1, v3, vcc
        s_mul_i32 s5, s{T3}, 896
        s_add_u32 s4, s4, s5
        s_mul_i32 s5, s{T2}, {128*3456}
        s_add_u32 s4, s4, s5
        s_add_u32 s{S_WSO}, s4, {pf*64*3456}
        v_and_b32 v2, 15, v0
        v_mul_u32_u24 v2, 1280, v2
        v_bfe_u32 v4, v0, 4, 1
        v_lshl_add_u32 v2, v4, 7, v2
        v_cmp_le_u32 vcc, 32, v0
        s_and_b32 s4, s{S_XCD}, 1
        s_lshl_b32 s4, s4, 2
        v_cndmask_b32 v2, v2, v3, vcc
        s_add_u32 s4, s4, s{T3}
        s_lshl_b32 s4, s4, 4
        s_add_u32 s4, s4, s{T1}
        s_mul_i32 s4, s4, 20480
        s_lshl_b32 s5, s{T2}, 8
        s_add_u32 s4, s4, s5
        s_add_u32 s{S_XSO}, s4, {pf*128}
        s_mul_i32 s4, s{S_SC}, {128*3456}
        s_lshl_b32 s5, s{S_SC}, 8
        s_lshl_b32 s6, s{T2}, 1
        s_add_u32 s6, s6, {pf}
        s_lshl_b32 s7, s{S_SC}, 1
        L_pf:
        buffer_load_dword v254, v1, {sW}, s{S_WSO} offen {wpol}
        buffer_load_dword v254, v2, {sX}, s{S_XSO} offen
        s_add_u32 s{S_WSO}, s{S_WSO}, s4
        s_add_u32 s{S_XSO}, s{S_XSO}, s5
        s_add_u32 s6, s6, s7
        s_cmp_lt_u32 s6, 10
        s_cbranch_scc1 L_pf
        """)
    def prefetch_wd(self, a):
        if not self.opt.get("pfd"): return
        a(f"""
        s_lshl_b32 s4, s{S_K0}, 2
        s_add_u32 s4, s4, s{S_W}
        s_mul_i32 s4, s4, {108*128}
        v_lshlrev_b32 v1, 7, v0
        v_cmp_le_u32 vcc, 54, v0
        v_mov_b32 v3, {OOBV}
        s_add_u32 s5, s4, {54*128}
        v_cndmask_b32 v1, v1, v3, vcc
        buffer_load_dword v254, v1, {sD}, s4 offen
        buffer_load_dword v254, v1, {sD}, s5 offen
        """)

    def free(self, a):
        a(f"""
        s_lshl_b32 s{T0}, s{S_XCD}, 2
        s_add_u32 s{T0}, s{T0}, s{S_J}
        s_sub_u32 s{T0}, s{T0}, 28
        s_cmp_eq_u32 s{S_XCD}, 6
        s_cselect_b32 s{T0}, s{S_J}, s{T0}
        s_add_u32 s{T1}, s{S_J}, 8
        s_cmp_eq_u32 s{S_XCD}, 7
        s_cselect_b32 s{T0}, s{T1}, s{T0}
        s_mov_b32 s{S_K0}, s{T0}
        s_mul_i32 s{T1}, s{T0}, 26
        s_lshr_b32 s{T1}, s{T1}, 8
        s_mul_i32 s{T2}, s{T1}, 10
        s_sub_u32 s{S_N}, s{T0}, s{T2}
        s_mul_i32 s{S_RB0}, s{T1}, 6
        s_add_u32 s{S_RB0}, s{S_RB0}, 110
        s_add_u32 s{T2}, s{S_N}, 6
        s_cmp_ge_u32 s{T0}, 30
        s_cselect_b32 s{S_N}, s{T2}, s{S_N}
        s_cselect_b32 s{S_RB0}, 105, s{S_RB0}
        s_cselect_b32 s{S_OLAST}, {OOBV}, 0
        s_cmp_ge_u32 s{S_W}, 2
        s_cselect_b32 s{S_OLAST}, s{S_OLAST}, 0
        s_lshl_b32 s{S_MW}, s{S_W}, 15
        v_mov_b32 v{V_TW}, 0
        v_mov_b32 v{V_TH}, 0
        """)
        self.srds(a)
        self.prefetch(a)
        self.srds2(a)
        self.prefetch_wd(a)
        a(f"s_cmp_ge_u32 s{S_K0}, {0 if self.opt.get('nofree') else 34}\ns_cbranch_scc1 L_end")
        self.p2_setup(a, 6, None)
        trL, wdM = self.wd_addr_ops(S_MW)
        for x in trL + wdM: a(x)
        def wdf(i): return ('a', 16 * i)
        def hbuf(q): return ('v', 128 + 4 * (q % 18))
        def acc2(rb, nb): return ('v', 32 + (rb * 4 + nb) * 4)
        def wdg(i):
            a(f"v_readlane_b32 s{S_WSO}, v{V_TW}, {10+i}")
            a(f"s_add_u32 m0, s{S_MW}, {(i%8)*4096}")
            a("s_nop 3")
            for k in range(4):
                a.vmi(f"buffer_load_dwordx4 v{V_WD+k}, {sD}, s{S_WSO} offen offset:{1024*k} lds", ("wdd", i))
        for i in range(4): wdg(i)
        for i in range(14):
            a.need(vm=("wdd", i))
            for nb in range(4):
                for rd in range(2):
                    a.lgi(f"ds_read_b64_tr_b16 {RR(off(wdf(i), nb*4+2*rd), 2)}, v{V_DR+nb} offset:{(i%8)*4096 + rd*1024}", ("wd", i, nb))
            if i >= 3: a.need(lg=("wd", i - 3, 3))
            if i + 4 < 14: wdg(i + 4)
        a.vmi(f"buffer_load_dword v{V_NON}, off, {sG}, 0 sc1", "nonce")
        self.nonce_get(a, "f")
        self.stamp(a, 4)
        self.poll(a, [0, 1, 2, 3])
        order = self.p2_plan(6); seen = set()
        for q in range(self.LAH(6)):
            self.h_pre(a, q, order, "f", seen); self.h_issue(a, q, order, hbuf, "f", seen)
        self.stamp(a, 5)
        self.p2_main(a, 6, "f", acc2, hbuf, wdf, lambda q, nb: None, 32768, S_MW, seen)

    def gen(self):
        a = SBX()
        if self.st: a("s_memrealtime s[96:97]")
        self.stamp(a, 0)
        if self.opt.get("dbgsync"):
            a(f"""
            s_memrealtime s[4:5]
            s_waitcnt lgkmcnt(0)
            s_add_u32 s4, s4, 200
            s_or_b32 s4, s4, 1023
            s_and_b32 s5, s2, 7
            s_mul_i32 s5, s5, {self.opt["dbgsync"] - 1}
            s_add_u32 s4, s4, s5
            L_syn:
            s_memrealtime s[96:97]
            s_waitcnt lgkmcnt(0)
            s_sub_u32 s6, s96, s4
            s_cmp_lt_i32 s6, 0
            s_cbranch_scc1 L_syn
            """)
        if self.opt.get("dbgdelay"):
            a(f"""
            s_memrealtime s[4:5]
            s_waitcnt lgkmcnt(0)
            L_dly:
            s_memrealtime s[6:7]
            s_waitcnt lgkmcnt(0)
            s_sub_u32 s6, s6, s4
            s_cmp_lt_u32 s6, {self.opt["dbgdelay"]}
            s_cbranch_scc1 L_dly
            """)
        a(f"""
        s_load_dwordx4 s[4:7], s[0:1], 0
        s_load_dwordx4 s[64:67], s[0:1], 16
        s_load_dwordx4 s[24:27], s[0:1], 32
        s_load_dwordx2 s[68:69], s[0:1], 48
        s_cmp_ge_u32 s2, 256
        s_cbranch_scc1 L_end
        v_lshrrev_b32 v1, 6, v0
        v_and_b32 v0, 63, v0
        s_and_b32 s{S_XCD}, s2, 7
        v_readfirstlane_b32 s{S_W}, v1
        s_lshr_b32 s{S_J}, s2, 3
        s_cmp_ge_u32 s{S_XCD}, 6
        s_cselect_b32 s{T0}, 24, 28
        s_cmp_ge_u32 s{S_J}, s{T0}
        """)
        if self.opt.get("cw", 0):
            a(f"""
            s_cbranch_scc0 L_normal
            s_getpc_b64 s[8:9]
            s_mov_b32 s10, L_code_end-L_normal
            s_mov_b32 s11, 0x00020000
            v_lshlrev_b32 v2, 13, v1
            v_lshl_add_u32 v2, v0, 7, v2
            buffer_load_dword v254, v2, s[8:11], 0 offen
            s_branch L_free
            L_normal:
            """)
        else:
            a("s_cbranch_scc1 L_free")
        n = SBX(); self.tr(n, "start"); self.normal(n); self.tr(n, "ost"); n.wait_all(); self.tr(n, "end"); self.tr_out(n); n("s_branch L_fin")
        f = SBX(); self.free(f); f.wait_all()
        a.lines += n.lines; a.label("L_free"); a.lines += f.lines
        a.label("L_fin")
        self.stamp(a, 8)
        self.stamps_out(a, 6 if self.st != 3 else 0)
        a("L_end:\ns_endpgm")
        for s in self.slow: a(s)
        a.label("L_code_end")
        return a.text()

class SBX(SB):
    last_rl = -100
    def __call__(self, s):
        for l in s.split("\n"):
            super().__call__(l)
            if l.strip().startswith("v_readlane"): self.last_rl = self.n

def gen_probe2(idx, stat, mult):
    a = SB()
    a(f"""
    s_cmp_ge_u32 s2, 1
    s_cbranch_scc1 L_pr_end
    s_memrealtime s[10:11]
    s_load_dwordx2 s[4:5], s[0:1], 48
    v_lshlrev_b32 v1, 10, v0
    s_waitcnt lgkmcnt(0)
    s_mov_b32 s6, 0x10000000
    s_mov_b32 s7, 0x00020000
    s_mov_b32 s8, {STAMP_OFF + 0x100000}
    """)
    for r in range(3):
        a(f"buffer_load_dword v{2+r}, v1, s[4:7], s8 offen")
        a(f"buffer_load_dword v{5+r}, v1, s[4:7], s8 offen offset:{4*idx}")
        a("s_add_u32 s8, s8, 65536")
    op = {"max": "min", "min": "max", "avg": "add"}[stat]
    a("s_waitcnt vmcnt(0)")
    for r in range(6): a(f"v_sub_u32 v{2+r}, s10, v{2+r}")
    a(f"""
    v_max_u32 v2, v2, v3
    v_max_u32 v2, v2, v4
    v_{op}_u32 v5, v5, v6
    v_{op}_u32 v5, v5, v7
    s_mov_b32 s20, 0
    s_mov_b32 s21, {0xfffffff if op == "min" else 0}
    s_mov_b32 s22, 0
    L_pr_red:
    s_nop 3
    v_readlane_b32 s23, v2, s22
    v_readlane_b32 s24, v5, s22
    s_nop 3
    s_max_u32 s20, s20, s23
    s_{op}_u32 s21, s21, s24
    s_add_u32 s22, s22, 1
    s_cmp_lt_u32 s22, 64
    s_cbranch_scc1 L_pr_red
    """)
    if stat == "avg":
        a("s_mul_i32 s21, s21, 341\ns_lshr_b32 s21, s21, 16")
    a(f"""
    s_sub_u32 s8, s20, s21
    s_min_u32 s8, s8, 4000
    s_mul_i32 s8, s8, {mult}
    s_add_u32 s8, s8, 500
    L_pr_loop:
    s_memrealtime s[12:13]
    s_waitcnt lgkmcnt(0)
    s_sub_u32 s9, s12, s10
    s_cmp_lt_u32 s9, s8
    s_cbranch_scc1 L_pr_loop
    L_pr_end:
    s_endpgm
    """)
    return a.text()

def gen(opt):
    g = G(opt)
    body = g.gen()
    body = "; TRACE " + " ".join(g.trn) + "\n" + body
    if "probe2" in opt:
        nm, stat, mult = opt["probe2"]
        LL = [f"kernel=main_kernel grid=(256,1,1) block=(256,1,1) lds=131072", "kernel=pr_kernel grid=(1,1,1) block=(64,1,1) lds=0"]
        t = header(LL) + kernel_begin("main_kernel") + body
        t += kernel_begin("pr_kernel") + gen_probe2(g.trn.index(nm), stat, mult) + kernel_desc("pr_kernel", vgpr=8, accum=8)
        t += kernel_desc("main_kernel", vgpr=512, accum=256)
        return t
    if "probe" in opt:
        import gen1
        LL = [f"kernel=main_kernel grid=(256,1,1) block=(256,1,1) lds=131072", "kernel=pr_kernel grid=(1,1,1) block=(64,1,1) lds=0"]
        t = header(LL) + kernel_begin("main_kernel") + body
        t += kernel_begin("pr_kernel") + gen1.gen_probe(opt) + kernel_desc("pr_kernel", vgpr=8, accum=8)
        t += kernel_desc("main_kernel", vgpr=512, accum=256)
        return t
    return header(["grid=(256,1,1) block=(256,1,1) lds=131072"]) + kernel_begin(KNAME) + body + kernel_desc(KNAME, vgpr=512, accum=256)

if __name__ == "__main__":
    import json
    opt = json.loads(sys.argv[2]) if len(sys.argv) > 2 else {}
    open(sys.argv[1], "w").write(gen(opt))
```

```python
import sys
from sb import SB
from asmlib import header, kernel_begin, kernel_desc, KNAME
import gen3

XB, WB, HB, OB = 2621440, 2211840, 54*128*1024, 2621440
FLAG_OFF, FLAG_B = 0x800000, 8*27*640
STAMP_OFF = 0x4000000
OOBV = 0x7ff00000

def R(p, a, n=4): return f"{p}[{a}:{a+n-1}]"
def RR(r, n=4): return R(r[0], r[1], n)
def off(r, k): return (r[0], r[1] + k)
def lines(s): return [x.strip() for x in s.split("\n") if x.strip()]

sX, sW, sH, sD, sO, sF, sG = "s[8:11]", "s[12:15]", "s[16:19]", "s[20:23]", "s[24:27]", "s[28:31]", "s[32:35]"
S_W, S_C, S_RG, S_SC, S_K0 = 36, 37, 38, 39, 40
S_RB0, S_N, S_REG = 41, 42, 43
S_MX, S_MW = 44, 45
S_SO = [46, 47]
S_IDLE = 48
S_NON, S_TO, S_OSO, S_J, S_XCD, S_OLAST = 50, 52, 53, 54, 55, 56
S_HL = 57
T0, T1, T2, T3 = 60, 61, 62, 63
S_FB = 64
S_HS8 = 82
S_PO, S_PV = 66, 74
S_FHS = [37, 38, 39, 40, 44, 47, 48, 49, 57, 58, 59, 64, 65, 82]
V_DR, V_XD, V_WD, V_XR, V_WR, V_HS = 4, 8, 12, 16, 20, 21
V_TX, V_TW, V_TH, V_FO, V_F, V_NON, V_HL0, V_HL1 = 22, 23, 24, 25, 26, 29, 30, 31
V_DUM, V_TR = 254, 255

class SBX(SB):
    def __init__(self):
        super().__init__()
        self.rl = {}
        self.vw = {}
    def readlane(self, s, v, lane):
        self(f"v_readlane_b32 s{s}, v{v}, {lane}"); self.rl[s] = self.n
    def pad_sgpr(self, s, states=5):
        d = self.n - self.rl.get(s, -100)
        if d < states: self(f"s_nop {states-d-1}")

class G:
    def __init__(self, opt):
        self.opt = opt
        self.st = opt.get("stamps", 0)
        self.slow = []
        self.trn = []
        self.mf16 = opt.get("mf", 32) == 16
        self.groups = opt.get("groups", [[0,1,2,3],[4,5],[6,7],[8,9,10],[11,12,13]] if opt.get("e1", 4) == 4 else [[0,1,2],[3,4,5],[6,7],[8,9,10],[11,12,13]])
    def tr(self, a, name):
        if not self.opt.get("trace"): return
        i = len(self.trn); p = 90 + 2 * (i % 3)
        if i >= 2: a(f"v_writelane_b32 v{V_TR}, s{90 + 2 * ((i - 2) % 3)}, {i-2}")
        a(f"{'s_memrealtime' if self.opt.get('trace') == 2 else 's_memtime'} s[{p}:{p+1}]")
        self.trn.append(name)
    def tr_out(self, a):
        if not self.opt.get("trace"): return
        n = len(self.trn)
        a("s_waitcnt lgkmcnt(0)")
        for i in (n - 2, n - 1): a(f"v_writelane_b32 v{V_TR}, s{90 + 2 * (i % 3)}, {i}")
        a(f"""
        s_mov_b32 s16, s100
        s_mov_b32 s17, s101
        s_mov_b32 s18, 0x10000000
        s_mov_b32 s19, 0x00020000
        s_lshl_b32 s3, s2, 2
        s_add_u32 s3, s3, s{S_W}
        s_lshl_b32 s3, s3, 8
        s_add_u32 s3, s3, {STAMP_OFF + 0x100000}
        v_lshlrev_b32 v1, 2, v0
        buffer_store_dword v{V_TR}, v1, s[16:19], s3 offen
        """)
    def stamps_out(self, a):
        if not self.st: return
        a(f"""
        s_waitcnt vmcnt(0)
        s_memrealtime s[98:99]
        s_mov_b32 s8, s100
        s_mov_b32 s9, s101
        s_mov_b32 s10, 0x10000000
        s_mov_b32 s11, 0x00020000
        s_lshl_b32 s3, s2, 2
        s_add_u32 s3, s3, s{S_W}
        s_lshl_b32 s3, s3, 6
        s_add_u32 s3, s3, {STAMP_OFF}
        v_mov_b32 v1, s3
        s_waitcnt lgkmcnt(0)
        v_mov_b32 v2, s{S_TO}
        buffer_store_dword v2, v1, s[8:11], 0 offen offset:52
        v_mov_b32 v2, s96
        buffer_store_dword v2, v1, s[8:11], 0 offen offset:56
        v_mov_b32 v2, s98
        buffer_store_dword v2, v1, s[8:11], 0 offen offset:60
        """)
    def p2_setup(self, a, nblk, idle):
        a(f"""
        s_lshr_b32 s{T0}, s{S_RB0}, 1
        s_add_u32 s{T1}, s{S_RB0}, {nblk-1}
        s_lshr_b32 s{T1}, s{T1}, 1
        s_and_b32 s{T2}, s{T0}, 7
        s_mul_i32 s{T2}, s{T2}, 27
        s_add_u32 s{T2}, s{T2}, 26
        s_lshr_b32 s{T2}, s{T2}, 3
        s_lshr_b32 s{T3}, s{S_W}, 1
        s_sub_u32 s{T2}, s{T2}, s{T3}
        v_and_b32 v1, 62, v0
        s_add_u32 s{T3}, s{T2}, 27
        v_sub_u32 v1, s{T3}, v1
        v_subrev_u32 v2, 27, v1
        v_min_u32 v1, v1, v2
        v_mul_u32_u24 v2, 19, v1
        v_lshrrev_b32 v2, 6, v2
        s_lshr_b32 s4, s{T0}, 3
        s_lshr_b32 s5, s{T1}, 3
        s_and_b32 s6, s{T0}, 7
        s_and_b32 s7, s{T1}, 7
        s_cmp_eq_u32 s4, s5
        s_cselect_b32 s{T0}, s7, 7
        s_cselect_b32 s{T1}, s6, 0
        v_and_b32 v3, 1, v0
        v_cmp_eq_u32 vcc, 1, v3
        v_mov_b32 v3, s6
        v_mov_b32 v{V_F}, s{T1}
        v_cndmask_b32 v3, v3, v{V_F}, vcc
        v_sub_u32 v3, v3, v2
        v_and_b32 v3, 7, v3
        v_mov_b32 v{V_FO}, s{T0}
        v_mov_b32 v{V_F}, s7
        v_cndmask_b32 v{V_FO}, v{V_FO}, v{V_F}, vcc
        v_sub_u32 v{V_FO}, v{V_FO}, v2
        v_and_b32 v{V_FO}, 7, v{V_FO}
        v_mov_b32 v2, s4
        v_mov_b32 v{V_F}, s5
        v_cndmask_b32 v2, v2, v{V_F}, vcc
        v_cmp_ge_u32 vcc, v{V_FO}, v3
        v_mul_u32_u24 v2, 27, v2
        v_add_u32 v2, v2, v1
        v_cndmask_b32 v3, 7, v{V_FO}, vcc
        v_max_u32 v3, 3, v3
        v_subrev_u32 v3, 3, v3
        v_mul_u32_u24 v2, 640, v2
        s_and_b32 s4, s{S_W}, 1
        {f"v_lshl_add_u32 v{V_FO}, v3, 7, v2" if idle else f"v_mov_b32 v{V_FO}, v2"}
        s_lshl_b32 s{T2}, s{T2}, 1
        s_add_u32 s{T2}, s{T2}, s4
        s_add_u32 s{T2}, s{T2}, {54+40}
        v_lshlrev_b32 v1, 2, v0
        v_sub_u32 v1, s{T2}, v1
        v_subrev_u32 v2, 54, v1
        v_min_u32 v1, v1, v2
        s_cmp_ge_u32 s{S_W}, 2
        s_cselect_b32 s4, 23, 99
        s_cselect_b32 s{S_OLAST}, {OOBV}, 0
        """)
        if idle:
            a(f"s_cmp_lg_u32 s{S_IDLE}, 0\ns_cselect_b32 s4, 0, s4")
        a(f"""
        v_cmp_le_u32 vcc, s4, v0
        s_mov_b32 s5, 40960
        s_lshl_b32 s6, s{S_N}, 7
        s_lshl_b32 s7, s{S_RB0}, 10
        v_mul_lo_u32 v2, v1, s5
        v_add_u32 v2, s6, v2
        v_lshlrev_b32 v3, 17, v1
        v_add_u32 v3, s7, v3
        v_mov_b32 v1, {WB}
        v_cndmask_b32 v2, v2, v1, vcc
        v_mov_b32 v1, {HB}
        v_cndmask_b32 v3, v3, v1, vcc
        v_cmp_le_u32 vcc, 10, v0
        v_lshlrev_b32 v{V_HL0}, 4, v0
        v_add_u32 v{V_HL1}, 4096, v{V_HL0}
        v_cndmask_b32 v{V_TW}, v{V_TW}, v2, vcc
        v_cndmask_b32 v{V_TH}, v{V_TH}, v3, vcc
        s_mul_i32 s{S_OSO}, s{S_RB0}, 20480
        s_add_u32 s{S_OSO}, s{S_OSO}, s6
        """)
    def wd_addr_ops(self, base):
        D = 8*1280 - 1024
        if not self.mf16:
            L = f"""
            v_lshrrev_b32 v1, 5, v0
            v_lshlrev_b32 v1, 4, v1
            v_bfe_u32 v2, v0, 2, 3
            v_add_u32 v1, v1, v2
            v_lshlrev_b32 v1, 7, v1
            v_lshrrev_b32 v2, 1, v2
            """
            M = f"""
            v_lshrrev_b32 v1, 4, v0
            v_lshlrev_b32 v1, 1, v1
            v_and_b32 v2, 7, v0
            v_xor_b32 v1, v1, v2
            v_lshrrev_b32 v2, 3, v0
            v_mul_u32_u24 v2, 1280, v2
            v_lshl_add_u32 v{V_WD}, v1, 4, v2
            v_add_u32 v{V_WD+1}, {D}, v{V_WD}
            v_add_u32 v{V_WD+2}, {2*D}, v{V_WD}
            v_add_u32 v{V_WD+3}, {3*D}, v{V_WD}
            """
        else:
            L = f"""
            v_lshrrev_b32 v1, 4, v0
            v_bfe_u32 v2, v0, 2, 2
            v_lshl_add_u32 v1, v1, 3, v2
            v_lshlrev_b32 v1, 7, v1
            v_bfe_u32 v2, v0, 3, 2
            """
            M = f"""
            v_bfe_u32 v1, v0, 4, 1
            v_lshlrev_b32 v1, 1, v1
            v_and_b32 v2, 7, v0
            v_xor_b32 v1, v1, v2
            v_lshrrev_b32 v2, 3, v0
            v_mul_u32_u24 v2, 1280, v2
            v_lshl_add_u32 v{V_WD}, v1, 4, v2
            v_xor_b32 v1, 4, v1
            v_lshl_add_u32 v1, v1, 4, v2
            v_add_u32 v{V_WD+1}, {D}, v1
            v_add_u32 v{V_WD+2}, {2*D}, v{V_WD}
            v_add_u32 v{V_WD+3}, {3*D}, v1
            """
        L += f"""
        v_lshlrev_b32 v2, 5, v2
        v_and_b32 v3, 3, v0
        v_lshlrev_b32 v3, 3, v3
        v_add3_u32 v1, v1, v2, v3
        v_add_u32 v{V_DR}, s{base}, v1
        v_xor_b32 v{V_DR+1}, 32, v{V_DR}
        v_xor_b32 v{V_DR+2}, 64, v{V_DR}
        v_xor_b32 v{V_DR+3}, 96, v{V_DR}
        """
        return lines(L), lines(M)
    def wd_trs(self, wdf, i, ldsoff):
        rs = 512 if self.mf16 else 1024
        return [(f"ds_read_b64_tr_b16 {RR(off(wdf(i), nb*4+2*rd), 2)}, v{V_DR+nb} offset:{ldsoff + rd*rs}", ("wd", i, nb)) for nb in range(4) for rd in range(2)]
    def poll_ops(self, a, fl):
        if self.opt.get("nopoll"): return []
        if len(fl) % 2: fl = fl + [fl[-1]]
        ops = [(lambda k=k, l=l: a.readlane(S_PO + k, V_FO, l)) for k, (l, im) in enumerate(fl)]
        def ld(k, im):
            a.pad_sgpr(S_PO + k); a(self.sld(k, im))
        ops += [(lambda k=k, im=im: ld(k, im)) for k, (l, im) in enumerate(fl)]
        return ops
    def sld(self, k, im):
        return f"s_load_dword s{S_PV+k}, s[28:29], s{S_PO+k} " + (f"offset:{im} " if im else "")
    def cmp_ops(self, fl):
        n = (len(fl) + 1) // 2
        L = [f"s_xor_b64 s[{S_PV+2*p}:{S_PV+2*p+1}], s[{S_PV+2*p}:{S_PV+2*p+1}], s[{S_NON}:{S_NON+1}]" for p in range(n)]
        L += [f"s_or_b64 s[{S_PV}:{S_PV+1}], s[{S_PV}:{S_PV+1}], s[{S_PV+2*p}:{S_PV+2*p+1}]" for p in range(1, n)]
        return L
    def check_ops(self, a, fl, uid, sl):
        if self.opt.get("nopoll"): return []
        L = self.cmp_ops(fl)
        ops = [lambda: a.wait_all(vm=False)]
        ops += [(lambda x=x: a(x)) for x in L[:-1]]
        def fin():
            a(L[-1]); a(f"s_cbranch_scc1 L_slow_{uid}"); a(f"L_ok_{uid}:")
        ops.append(fin)
        m = 0
        for l, im in fl: m |= 1 << l
        self.slow.append(f"""
        L_slow_{uid}:
        s_mov_b64 exec, {m:#x}
        buffer_load_dword v{V_F}, v{V_FO}, {sF}, 0 offen offset:{fl[0][1]} sc1
        s_mov_b64 exec, -1
        s_waitcnt vmcnt(0)
        v_cmp_eq_u32 vcc, s{S_NON}, v{V_F}
        s_andn2_b32 s{T0}, {m:#x}, vcc_lo
        s_cbranch_scc0 L_ok_{uid}
        s_cmp_eq_u32 s{S_TO}, 0
        s_cbranch_scc1 L_ok_{uid}
        s_sub_u32 s{S_TO}, s{S_TO}, 1
        s_sleep {sl}
        s_branch L_slow_{uid}
        """)
        return ops
    def nonce_get(self, a, uid):
        a.need(vm="nonce")
        a(f"L_nchk_{uid}:")
        a(f"v_readfirstlane_b32 s{S_NON}, v{V_NON}")
        a(f"s_cmp_eq_u32 s{S_NON}, 0")
        a(f"s_cbranch_scc1 L_nslow_{uid}")
        a(f"L_nok_{uid}:")
        a(f"s_mov_b32 s{S_NON+1}, s{S_NON}")
        self.slow.append(f"""
        L_nslow_{uid}:
        s_cmp_eq_u32 s{S_TO}, 0
        s_cbranch_scc1 L_nok_{uid}
        s_sub_u32 s{S_TO}, s{S_TO}, 1
        buffer_load_dword v{V_NON}, off, {sG}, 0 sc1
        s_waitcnt vmcnt(0)
        s_branch L_nchk_{uid}
        """)
    def plan_normal(self):
        nblk = 5; Gt = 3
        order = [(i, rb) for i in range(14 - Gt) for rb in range(nblk)]
        order += [(i, rb) for rb in range(nblk) for i in range(14 - Gt, 14)]
        first = {}
        for q, (i, rb) in enumerate(order): first.setdefault(i, q)
        checks = [(first[g[0]], [(2 * i + r, 0) for i in g for r in (0, 1)]) for g in self.groups]
        return dict(order=order, checks=checks, rl={v: k for k, v in first.items()}, so=lambda i: S_HL + i % 3)
    def plan_free(self):
        sc = lambda c: (c * 19) >> 6
        lo = 1 if self.opt.get("e1", 4) >= 4 else 0
        def cls(i, rb):
            k = lo
            for u in (0, 1):
                if i == 13 and u == 1: continue
                k = max(k, (((rb >> 1) - sc((3 - 2 * i - u) % 27)) % 8) - 3)
            return k
        order = []; checks = []
        for k in range(lo, 5):
            fr = [(i, rb) for i in range(14) for rb in range(7) if cls(i, rb) == k]
            if k == 4: fr.sort(key=lambda x: (-x[1], x[0]))
            slots = sorted(set(i for i, rb in fr))
            if len(slots) <= 8: checks.append((len(order), [(2 * i, 128 * k) for i in slots]))
            else:
                h = len(slots) // 2
                checks.append((len(order), [(2 * i, 128 * k) for i in slots[:h]]))
                checks.append((len(order) + sum(1 for i, rb in fr if i in slots[:h]), [(2 * i, 128 * k) for i in slots[h:]]))
            order += fr
        return dict(order=order, checks=checks, rl={}, so=lambda i: S_FHS[i])
    def h_load(self, a, q, plan, hbuf):
        i, rb = plan["order"][q]
        v = V_HL0 if rb < 4 else V_HL1
        so = plan["so"](i)
        a.pad_sgpr(so)
        a.vmi(f"buffer_load_dwordx4 {RR(hbuf(q))}, v{v}, {sH}, s{so} offen offset:{1024*(rb%4)} sc1", ("h", q))
    def p2_main(self, a, nblk, uid, plan, acc, hbuf, wdf, extra, REG, sreg):
        order = plan["order"]
        LAH = self.opt.get("lah", 10); PD = self.opt.get("pd", 9)
        NF = len(order)
        lastq = {}
        for q, (i, rb) in enumerate(order): lastq[rb] = q
        sched = {}
        prev = -1
        for ci, (ql, fl) in enumerate(plan["checks"]):
            if ql <= LAH: continue
            qc = ql - LAH - 1
            cops = self.check_ops(a, fl, f"{uid}{ci}", self.opt.get("sleepn", 1))
            pops = self.poll_ops(a, fl) if ci not in plan.get("pre", ()) else []
            nc = (len(cops) + 2) // 3
            for k, o in enumerate(cops): sched.setdefault(qc - nc + 1 + k // 3, []).append(o)
            qp = max(prev + 1, qc - nc + 1 - PD)
            for k, o in enumerate(pops): sched.setdefault(min(qp + k // 4, qc - nc), []).append(o)
            assert not pops or qp <= qc - nc, (ci, qp, qc)
            prev = qc
        VW, VR = 16, 8
        addr_ops = lines(f"""
            v_and_b32 v1, 15, v0
            v_lshrrev_b32 v2, 4, v0
            v_and_b32 v3, 7, v0
            v_xor_b32 v2, v2, v3
            v_lshlrev_b32 v2, 4, v2
            v_lshl_add_u32 v1, v1, 8, v2
            v_add_u32 v{VW}, s{sreg}, v1
            v_xor_b32 v{VW+1}, 64, v{VW}
            v_lshrrev_b32 v1, 3, v0
            v_lshlrev_b32 v2, 1, v3
            v_xor_b32 v2, v2, v1
            v_lshlrev_b32 v2, 4, v2
            s_lshl_b32 s{T1}, s{S_W}, 3
            v_add_u32 v1, s{T1}, v1
            v_lshl_add_u32 v{VR}, v1, 8, v2
            v_xor_b32 v{VR+1}, 16, v{VR}
            v_add_u32 v{VR+2}, {2*REG}, v{VR}
            v_add_u32 v{VR+3}, {2*REG}, v{VR+1}
            v_mul_u32_u24 v1, 1280, v1
            v_lshl_add_u32 v18, v3, 4, v1
            v_add_u32 v19, s{S_OLAST}, v18
            """)
        wq = []; started = set()
        def dsw(r2, n2):
            a.after_mfma(acc(r2, n2), 9)
            a.lgi(f"ds_write_b128 v{VW + (n2 & 1)}, {RR(acc(r2, n2))} offset:{r2*4096 + (n2 >> 1)*128}", "red")
        for q, (i, rb) in enumerate(order):
            if uid == "n" and q % nblk == 0: self.tr(a, f"S{q//nblk}")
            ql = q + LAH
            for nb in range(4):
                if nb == 0: a.need(vm=("h", q), lg=("wd", i, 3))
                ac = acc(rb, nb)
                c = RR(ac) if (rb, nb) in started else "0"
                started.add((rb, nb))
                a.mfma(f"v_mfma_f32_16x16x32_bf16 {RR(ac)}, {RR(off(wdf(i), nb*4))}, {RR(hbuf(q))}, {c}", ac)
                if nb == 0:
                    cur = list(sched.get(q, []))
                    if ql + 1 in plan["rl"]: a.readlane(plan["so"](plan["rl"][ql + 1]), V_TH, 10 + plan["rl"][ql + 1])
                if nb == 1 and ql < NF: self.h_load(a, ql, plan, hbuf)
                if nb != 1:
                    k = {0: (len(cur) + 2) // 3, 2: (len(cur) + 1) // 2, 3: len(cur)}[nb]
                    for o in cur[:k]: o()
                    cur = cur[k:]
                if wq and wq[0][0] <= q * 4 + nb and nb != 1 or (wq and ql >= NF and wq[0][0] <= q * 4 + nb):
                    _, r2, n2 = wq.pop(0); dsw(r2, n2)
                extra(q, nb)
                if addr_ops and q >= min(lastq.values()) - 24 and nb in (0, 2, 3) and q not in sched: a(addr_ops.pop(0))
            if q == lastq[rb]:
                assert not addr_ops
                for n2 in range(4): wq.append((q * 4 + 6 + 3 * n2, rb, n2))
        if uid == "n": self.tr(a, "p2end")
        while wq:
            _, r2, n2 = wq.pop(0); dsw(r2, n2)
        a.wait_all(vm=False)
        if uid == "n": self.tr(a, "redw")
        a("s_barrier")
        if uid == "n": self.tr(a, "redb")
        TMP = 32
        NQ = (nblk + 1) // 2
        opol = self.opt.get("opol", "")
        def rd(qi):
            for pw in range(4):
                for hf in range(2):
                    t = TMP + qi * 32 + pw * 8 + hf * 4
                    a.lgi(f"ds_read_b128 {R('v', t)}, v{VR + hf + 2*(pw >> 1)} offset:{(pw & 1)*REG + qi*8192}", ("rr", qi, pw))
        rd(0); rd(1)
        for qi in range(NQ):
            t = TMP + qi * 32
            a.need(lg=("rr", qi, 1))
            for r in range(0, 8, 2): a(f"v_pk_add_f32 {R('v',t+r,2)}, {R('v',t+r,2)}, {R('v',t+8+r,2)}")
            a.need(lg=("rr", qi, 3))
            if qi + 2 < NQ: rd(qi + 2)
            for r in range(0, 8, 2): a(f"v_pk_add_f32 {R('v',t+16+r,2)}, {R('v',t+16+r,2)}, {R('v',t+24+r,2)}")
            for r in range(0, 8, 2): a(f"v_pk_add_f32 {R('v',t+r,2)}, {R('v',t+r,2)}, {R('v',t+16+r,2)}")
            for d in range(4): a(f"v_cvt_pk_bf16_f32 v{t+8+d}, v{t+2*d}, v{t+2*d+1}")
            a.vmi(f"buffer_store_dwordx4 {R('v',t+8)}, v{19 if qi == NQ - 1 else 18}, {sO}, s{S_OSO} offen {opol}", "ost")
            if qi < NQ - 1: a(f"s_add_u32 s{S_OSO}, s{S_OSO}, {32*1280}")

    def srds(self, a):
        a(f"""
        s_mov_b32 s10, {XB}
        s_mov_b32 s11, 0x00020000
        s_mov_b32 s14, {WB}
        s_mov_b32 s15, 0x00020000
        s_cmp_ge_u32 s{S_W}, 2
        s_waitcnt lgkmcnt(0)
        s_mov_b32 s8, s4
        s_mov_b32 s9, s5
        s_cselect_b32 s12, s64, s6
        s_cselect_b32 s13, s65, s7
        """)
    def srds2(self, a):
        a(f"""
        s_mov_b32 s16, s68
        s_mov_b32 s17, s69
        s_mov_b32 s18, {HB}
        s_mov_b32 s19, 0x00020000
        s_mov_b32 s20, s66
        s_mov_b32 s21, s67
        s_mov_b32 s22, {WB}
        s_mov_b32 s23, 0x00020000
        s_mov_b32 s32, s26
        s_mov_b32 s33, s27
        s_mov_b32 s34, 256
        s_mov_b32 s35, 0x00020000
        s_mov_b32 s26, {OB}
        s_mov_b32 s27, 0x00020000
        s_add_u32 s28, s68, {FLAG_OFF}
        s_addc_u32 s29, s69, 0
        s_mov_b32 s30, {FLAG_B}
        s_mov_b32 s31, 0x00020000
        s_mov_b32 s{S_TO}, 100000
        """)
        if self.st or self.opt.get("trace"): a("s_mov_b32 s100, s68\ns_mov_b32 s101, s69")

    def normal(self, a):
        opt = self.opt; mf16 = self.mf16
        rot = opt.get("rot", 20)
        exact = opt.get("exact", 0)
        a(f"""
        s_lshr_b32 s{T0}, s{S_XCD}, 1
        s_mul_i32 s{T0}, s{T0}, 27
        s_add_u32 s{T0}, s{T0}, s{S_J}
        s_lshr_b32 s{S_C}, s{T0}, 2
        s_and_b32 s{T0}, s{T0}, 3
        s_and_b32 s{S_RG}, s{S_XCD}, 1
        s_lshl_b32 s{S_RG}, s{S_RG}, 2
        s_add_u32 s{S_RG}, s{S_RG}, s{T0}
        s_mul_i32 s{S_SC}, s{S_C}, 19
        s_lshr_b32 s{S_SC}, s{S_SC}, 6
        """)
        GR = 10
        if rot == 20:
            dl = opt.get("delta", 2)
            a(f"""
            s_add_u32 s{S_K0}, s{S_C}, s{T0}
            s_and_b32 s{T0}, s{S_XCD}, 1
            s_mul_i32 s{T0}, s{T0}, {dl}
            s_add_u32 s{S_K0}, s{S_K0}, s{T0}
            s_mul_i32 s{T0}, s{S_K0}, 52
            s_lshr_b32 s{T0}, s{T0}, 8
            s_mul_i32 s{T0}, s{T0}, 5
            s_sub_u32 s{S_K0}, s{S_K0}, s{T0}
            s_lshl_b32 s{S_K0}, s{S_K0}, 1
            """)
        elif rot == 1:
            a(f"""
            s_mul_i32 s{T0}, s{T0}, 5
            s_lshr_b32 s{T0}, s{T0}, 1
            s_add_u32 s{S_K0}, s{S_C}, s{T0}
            s_mul_i32 s{T0}, s{S_K0}, 26
            s_lshr_b32 s{T0}, s{T0}, 8
            s_mul_i32 s{T0}, s{T0}, 10
            s_sub_u32 s{S_K0}, s{S_K0}, s{T0}
            """)
        else:
            a(f"s_mov_b32 s{S_K0}, 0")
        DX, DW = 8*1280-1024, 8*3456-1024
        a(f"""
        v_lshrrev_b32 v2, 3, v0
        v_and_b32 v3, 7, v0
        v_lshrrev_b32 v4, 4, v0
        v_xor_b32 v5, v4, v3
        v_mul_u32_u24 v6, 1280, v2
        v_lshl_add_u32 v{V_XD}, v5, 4, v6
        v_xor_b32 v5, 4, v5
        v_lshl_add_u32 v5, v5, 4, v6
        v_add_u32 v{V_XD+1}, {DX}, v5
        v_add_u32 v{V_XD+2}, {2*DX}, v{V_XD}
        v_add_u32 v{V_XD+3}, {3*DX}, v5
        v_and_b32 v5, 1, v4
        v_mul_u32_u24 v6, 3456, v2
        """)
        if not mf16:
            a(f"""
            s_and_b32 s{T0}, s{S_W}, 2
            v_add_u32 v5, s{T0}, v5
            v_lshlrev_b32 v5, 1, v5
            v_xor_b32 v5, v5, v3
            v_lshl_add_u32 v{V_WD}, v5, 4, v6
            v_add_u32 v{V_WD+1}, {DW}, v{V_WD}
            v_add_u32 v{V_WD+2}, {2*DW}, v{V_WD}
            v_add_u32 v{V_WD+3}, {3*DW}, v{V_WD}
            """)
        else:
            a(f"""
            v_lshlrev_b32 v5, 1, v5
            v_xor_b32 v5, v5, v3
            v_lshl_add_u32 v{V_WD}, v5, 4, v6
            v_xor_b32 v5, 4, v5
            v_lshl_add_u32 v5, v5, 4, v6
            v_add_u32 v{V_WD+1}, {DW}, v5
            v_add_u32 v{V_WD+2}, {2*DW}, v{V_WD}
            v_add_u32 v{V_WD+3}, {3*DW}, v5
            """)
        a(f"""
        s_lshl_b32 s{T1}, s{S_RG}, 3
        s_add_u32 s{T0}, s{S_SC}, s{S_W}
        s_and_b32 s{T0}, s{T0}, 7
        s_add_u32 s{T0}, s{T0}, s{T1}
        s_mul_i32 s{T0}, s{T0}, 40960
        s_lshl_b32 s{T2}, s{S_K0}, 7
        s_add_u32 s{S_SO[1]}, s{T0}, s{T2}
        s_and_b32 s{T0}, s{S_W}, 1
        s_mul_i32 s{T0}, s{T0}, 110592
        s_lshl_b32 s{T2}, s{S_C}, 7
        s_add_u32 s{T3}, s{T0}, s{T2}
        s_mul_i32 s{T2}, s{S_K0}, 221184
        s_add_u32 s{S_SO[0]}, s{T3}, s{T2}
        s_lshl_b32 s{S_MX}, s{S_W}, 12
        s_add_u32 s{S_MW}, s{S_MX}, 65536
        """)
        self.srds(a)
        def four(kind, half, lane, ldsoff, tag):
            srd, vb, m0, tabv = {"x": (sX, V_XD, S_MX, V_TX), "w": (sW, V_WD, S_MW, V_TW), "d": (sD, V_WD, S_MW, V_TW)}[kind]
            so = S_SO[half]
            return dict(rl=(so, tabv, lane), m0=f"s_add_u32 m0, s{m0}, {ldsoff}", so=so,
                        ins=[(f"buffer_load_dwordx4 v{vb+k}, {srd}, s{so} offen offset:{1024*k} lds", tag) for k in range(4)])
        def dma_group(g):
            o = (g % 4) * 16384
            if g < 10: return [four("w", 0, g, o, ("dma", g)), four("x", 1, g, o, ("dma", g))]
            if g < 20: return [four("x", 0, g, o, ("dma", g)), four("d", 1, g, o, ("wdd", g - 10))]
            if g == 20: return [four("d", 0, 20, 0, ("wdd", 10)), four("d", 1, 21, 16384, ("wdd", 11))]
            return [None, None]
        def issue_now(h, rl=True):
            if rl: a.readlane(*h["rl"])
            a(h["m0"]); a("s_nop 0"); a.pad_sgpr(h["so"])
            for ins, tag in h["ins"]: a.vmi(ins, tag)
        self.tr(a, "srd")
        for h in dma_group(0): issue_now(h, False)
        self.tr(a, "dma0")
        self.srds2(a)
        a(f"""
        s_memrealtime s[4:5]
        s_or_b32 s6, s2, s{S_W}
        v_or_b32 v1, s6, v0
        v_cmp_eq_u32 vcc, 0, v1
        v_mov_b32 v2, {OOBV}
        s_waitcnt lgkmcnt(0)
        s_or_b32 s4, s4, 1
        v_cndmask_b32 v1, v2, v1, vcc
        v_mov_b32 v3, s4
        """)
        a.vmi(f"buffer_store_dword v3, v1, {sG}, 0 offen sc1", "nst")
        a(f"""
        s_mul_i32 s4, s{S_RG}, 27
        s_add_u32 s4, s4, s{S_C}
        s_mul_i32 s4, s4, 640
        s_add_u32 s{S_FB}, s28, s4
        s_addc_u32 s{S_FB+1}, s29, 0
        """)
        a(f"""
        v_subrev_u32 v1, 10, v0
        v_lshlrev_b32 v1, 2, v1
        v_add_u32 v1, s{S_W}, v1
        v_and_b32 v1, 0xff, v1
        v_mul_u32_u24 v2, 26, v1
        v_lshrrev_b32 v2, 8, v2
        v_mul_u32_u24 v3, 10, v2
        v_sub_u32 v1, v1, v3
        v_add_u32 v2, 4, v2
        v_cmp_gt_u32 vcc, 10, v0
        v_mov_b32 v3, s{S_W}
        s_mov_b32 s4, 40960
        v_cndmask_b32 v1, v1, v0, vcc
        v_cndmask_b32 v2, v2, v3, vcc
        v_add_u32 v1, s{S_K0}, v1
        v_subrev_u32 v3, 10, v1
        v_min_u32 v1, v1, v3
        v_add_u32 v2, s{S_SC}, v2
        v_and_b32 v2, 7, v2
        v_add_u32 v2, s{T1}, v2
        v_mul_lo_u32 v2, v2, s4
        v_lshl_add_u32 v{V_TX}, v1, 7, v2
        s_mov_b32 s4, 221184
        v_mul_lo_u32 v2, v1, s4
        v_add_u32 v{V_TW}, s{T3}, v2
        s_lshr_b32 s4, s{S_W}, 1
        s_lshl_b32 s5, s{S_C}, 1
        s_add_u32 s4, s4, s5
        s_lshl_b32 s4, s4, 7
        s_lshl_b32 s5, s{S_RG}, 4
        s_add_u32 s4, s4, s5
        v_add_u32 v1, s{S_SC}, v0
        v_and_b32 v1, 7, v1
        v_lshl_add_u32 v1, v1, 1, s4
        v_lshlrev_b32 v{V_TH}, 10, v1
        v_lshrrev_b32 v3, 5, v0
        v_bfe_u32 v4, v0, 1, 3
        """)
        if not mf16:
            a(f"""
            v_and_b32 v2, 31, v0
            v_xor_b32 v4, v4, v3
            v_lshlrev_b32 v4, 4, v4
            v_lshl_add_u32 v{V_XR}, v2, 7, v4
            v_xor_b32 v{V_XR+1}, 32, v{V_XR}
            v_xor_b32 v{V_XR+2}, 64, v{V_XR}
            v_xor_b32 v{V_XR+3}, 96, v{V_XR}
            v_bfe_u32 v4, v0, 4, 1
            v_bfe_u32 v5, v0, 2, 2
            v_lshl_add_u32 v6, v3, 3, v5
            v_lshlrev_b32 v6, 7, v6
            v_lshl_add_u32 v6, v4, 13, v6
            """)
        else:
            a(f"""
            v_and_b32 v2, 15, v0
            v_lshrrev_b32 v6, 4, v0
            v_xor_b32 v4, v4, v6
            v_lshlrev_b32 v4, 4, v4
            v_lshl_add_u32 v{V_XR}, v2, 7, v4
            v_xor_b32 v{V_XR+1}, 64, v{V_XR}
            v_bfe_u32 v4, v0, 4, 1
            v_bfe_u32 v5, v0, 2, 2
            v_lshl_add_u32 v6, v6, 3, v5
            v_lshlrev_b32 v6, 7, v6
            """)
        a(f"""
        v_bfe_u32 v7, v0, 3, 2
        v_xor_b32 v7, s{S_W}, v7
        v_lshl_add_u32 v6, v7, 5, v6
        v_and_b32 v7, 3, v0
        v_lshl_add_u32 v6, v7, 3, v6
        v_add_u32 v{V_WR}, 65536, v6
        s_and_b32 s4, s{S_W}, 1
        s_lshl_b32 s4, s4, 1
        v_add_u32 v6, s4, v3
        v_lshlrev_b32 v6, 8, v6
        v_lshl_add_u32 v6, v4, 10, v6
        v_and_b32 v7, 15, v0
        v_lshl_add_u32 v{V_HS}, v7, 4, v6
        s_mul_i32 s4, s{S_J}, 52
        s_lshr_b32 s4, s4, 8
        s_mul_i32 s5, s4, 5
        s_sub_u32 s6, s{S_J}, s5
        s_cmp_ge_u32 s{S_J}, 25
        s_cselect_b32 s{S_IDLE}, 1, 0
        s_cselect_b32 s5, 0, s5
        s_and_b32 s7, s{S_XCD}, 1
        s_mul_i32 s7, s7, 5
        s_add_u32 s{S_N}, s6, s7
        s_lshr_b32 s7, s{S_XCD}, 1
        s_lshl_b32 s7, s7, 5
        s_add_u32 s7, s7, 7
        s_add_u32 s{S_RB0}, s5, s7
        s_mul_i32 s{S_REG}, s{S_W}, 20480
        """)
        self.p2_setup(a, 5, True)
        trL, wdM = self.wd_addr_ops(S_MW)
        for x in trL: a(x)
        self.tr(a, "setup")
        for h in dma_group(1): issue_now(h)
        self.tr(a, "dma1")
        if opt.get("touch", 0):
            a(f"""
            s_mov_b64 exec, 0
            s_cmp_eq_u32 s{S_W}, 1
            s_cbranch_scc1 L_t2
            s_cmp_eq_u32 s{S_W}, 2
            s_cbranch_scc1 L_t3
            s_cmp_eq_u32 s{S_W}, 3
            s_cbranch_scc1 L_t4
            s_branch L_t1
            """)
            a.raw("@@SLOW@@")
            a.raw(".p2align 12")
            a("L_base:\ns_mov_b64 exec, -1")

        A0, A4 = 32, 48
        ACC = [A0, 64, 80, 96, A4]
        XF, LA = 112, 7
        def wdf(i):
            if i < 6: return ('a', 160 + 16 * i)
            if i < 11: return ('v', 144 + 16 * (i - 6))
            return ('v', 64 + 16 * (i - 11))
        HB_ = [('v', 224 + 4 * k) for k in range(6)] + [('a', 4 * k) for k in range(9)]
        def hbuf(q): return HB_[q % 15]
        def acc2(rb, nb): return ('a', 40 + (rb * 4 + nb) * 4)
        def minfo(n):
            if n < 160:
                s = n >> 4
                if not mf16: sub = (n >> 2) & 3; b = n & 3
                else: sub = ((n >> 3) & 1) * 2 + (n & 1); b = (n >> 1) & 3
                kk = s; blk = b; acc = ACC[b]; unit = b
            else:
                m = n - 160; u = m >> 2; sub = m & 3
                blk = 4 + u // 10; kk = u % 10; s = 10 + (u >> 2); unit = u & 3
                acc = ACC[4] if blk % 2 == 0 else ACC[0]
            return dict(stage=s, unit=unit, sub=sub, kk=kk, blk=blk, acc=acc, last=(kk == 9 and sub == 3))
        def mfmas(n):
            mi = minfo(n); acc = mi["acc"]; xf = R("v", XF + (n & 7) * 4)
            if not mf16:
                c = "0" if (mi["kk"] == 0 and mi["sub"] == 0) else R("v", acc, 16)
                return [(f"v_mfma_f32_32x32x16_bf16 {R('v',acc,16)}, {R('a',(mi['kk']*4+mi['sub'])*4)}, {xf}, {c}", acc)]
            ks2, h = mi["sub"] >> 1, mi["sub"] & 1
            out = []
            for m in range(2):
                ac = acc + m * 8 + h * 4
                c = "0" if (mi["kk"] == 0 and ks2 == 0) else R("v", ac)
                out.append((f"v_mfma_f32_16x16x32_bf16 {R('v',ac)}, {R('a',(mi['kk']*2+ks2)*8+m*4)}, {xf}, {c}", acc))
            return out
        def xread(nn):
            mi = minfo(nn); o = (mi["stage"] % 4) * 16384 + mi["unit"] * 4096
            if not mf16: v = V_XR + mi["sub"]
            else: v = V_XR + (mi["sub"] >> 1); o += (mi["sub"] & 1) * 2048
            return f"ds_read_b128 {R('v', XF + (nn & 7)*4)}, v{v} offset:{o}"
        def wreads(s):
            o = (s % 4) * 16384; L = []
            for e in range(8):
                if not mf16:
                    ks, rd = e >> 1, e & 1
                    L.append((f"ds_read_b64_tr_b16 {R('a', (s*4+ks)*4+2*rd, 2)}, v{V_WR} offset:{o + ks*2048 + rd*512}", ("w", 16*s + 4*ks)))
                else:
                    ks2, m, rd = e >> 2, (e >> 1) & 1, e & 1
                    L.append((f"ds_read_b64_tr_b16 {R('a', (s*2+ks2)*8+m*4+2*rd, 2)}, v{V_WR} offset:{o + m*8192 + ks2*4096 + rd*512}", ("w", 16*s + 8*ks2)))
            return L
        HZ = 9 if mf16 else 13
        epi = []; sts = []; pubs = []
        stN = {int(k): v for k, v in opt.get("stN", {0: 0, 1: 0, 2: 0, 3: 0, 4: 0 if opt.get("e1", 4) == 4 else 248, 5: 248, 6: 0, 7: 0}).items()}
        e1 = opt.get("e1", 4)
        def epi_ops(blk, acc):
            dst = 248 if blk == 0 else (64 if blk == 4 and stN[4] > 230 else acc + 8)
            ops = [("r", (S_HS8 + blk, V_TH, blk), acc)]
            if exact:
                for j in range(16): ops.append(("v", f"v_cvt_pk_bf16_f32 v{acc+j}, 0, v{acc+j}", acc))
            for j in range(8): ops.append(("v", f"v_mul_f32 v{acc+j}, v{acc+j}, v{acc+8+j}", acc))
            for d in ((0, 2, 1, 3) if mf16 else range(4)): ops.append(("v", f"v_cvt_pk_bf16_f32 v{dst+d}, v{acc+2*d}, v{acc+2*d+1}", acc))
            if mf16:
                ops.append(("p", f"v_permlane16_swap_b32 v{dst}, v{dst+2}", acc))
                ops.append(("p", f"v_permlane16_swap_b32 v{dst+1}, v{dst+3}", acc))
            ops.append(("s", f"buffer_store_dwordx4 {R('v',dst)}, v{V_HS}, {sH}, s{S_HS8+blk} offen sc1", blk))
            return ops
        lastv = [0]
        def emit_epi(b, o):
            kind, ins, x = o
            if kind == "v": b.after_mfma(x, HZ); b(ins); lastv[0] = b.n
            elif kind == "r": b.readlane(*ins)
            elif kind == "p":
                d = b.n - lastv[0]
                if d < 2: b(f"s_nop {1-d}")
                b(ins)
        def run_epi(n, cap):
            used = 0
            while epi and epi[0][0] <= n and (used < cap or epi[0][1][0] == "s"):
                o = epi.pop(0)[1]
                if o[0] == "s": sts.append(o)
                else: emit_epi(a, o); used += 1
            return used
        def run_sts(n):
            while sts and stN[sts[0][2]] <= n and (sts[0][2] > e1 or sts[-1][2] >= e1) and not (sts[0][2] == 4 and stN[4] > 230 and sts[-1][2] < 5):
                _, ins, x = sts.pop(0)
                if opt.get("nohst"): continue
                a.vmi(ins, ("hst", x))
                if x >= 3: pubs.append((max(0, x - 3), ("hst", x)))
        def pub_ready(): return bool(pubs) and a.vm_covered(pubs[0][1])
        def pub_emit(b, ks, uid):
            b(f"s_cmp_lg_u32 s{S_W}, 0")
            b(f"s_cbranch_scc1 L_pub_{uid}{ks[0]}")
            for k in ks: b(f"s_atomic_swap s{S_NON}, s[{S_FB}:{S_FB+1}], {128*k}")
            b(f"L_pub_{uid}{ks[0]}:")
        def run_pub():
            ks = []
            while pub_ready(): ks.append(pubs.pop(0)[0])
            if ks: pub_emit(a, ks, "n")
        trq = []; misc = []
        plan = self.plan_normal(); LAH = opt.get("lah", 10)
        assert plan["checks"][1][0] > LAH
        p0 = self.poll_ops(a, plan["checks"][0][1]); nh = len(p0) // 2
        hq = 0
        a.readlane(*dma_group(2)[0]["rl"])
        CAP = opt.get("cap", 2 if mf16 else 5)
        EPR = opt.get("epr", 1.6) * (2 if exact else 1) / (2 if mf16 else 1); credit = [0.0]
        for n in range(-LA, 320):
            nn = n + LA; s = nn >> 4; gp = nn & 15
            grp = dma_group(s + 2); h = grp[gp >> 3]
            g1 = []; g2 = []
            def add(g, cost, fn): g.append((cost, fn))
            if gp == 0:
                def bar(s=s):
                    nonlocal trq
                    assert not trq
                    if s < 20:
                        tags = [("dma", s)] + ([("wdd", s - 10)] if s >= 10 else [])
                        a.need(vm=tags); a("s_barrier"); run_pub(); self.tr(a, f"B{s}")
                        trq = wreads(s) if s < 10 else self.wd_trs(wdf, s - 10, (s % 4) * 16384)
                    else:
                        a.need(vm=("wdd", 10)); trq = self.wd_trs(wdf, 10, 0)
                add(g1, 2, bar)
                if s == 8: misc += wdM
                if s == 2: misc.append(("nonce_ld",))
                if s == 6: misc.append(("nonce_get",))
            if nn < 320: add(g1, 1, lambda nn=nn: a.lgi(xread(nn), ("x", nn)))
            def trpop():
                if trq:
                    ins, tag = trq.pop(0); a.lgi(ins, tag)
            if s < 10 and mf16:
                if gp in (0, 2, 4, 6, 8, 10): add(g2, 1, trpop)
                if gp in (1, 3): add(g1, 1, trpop)
            elif gp % 2 == 0 or nn >= 320: add(g2, 1, trpop)
            if h and gp % 8 == 0: add(g2 if gp == 0 else g1, 1, lambda h=h: a(h["m0"]))
            if gp == 4 and grp[1]: add(g1, 1, lambda g=grp[1]: a.readlane(*g["rl"]))
            if gp == 12 and dma_group(s + 3)[0]: add(g1, 1, lambda g=dma_group(s + 3)[0]: a.readlane(*g["rl"]))
            if h and gp % 2 == 1:
                def dma(h=h, gp=gp):
                    a.pad_sgpr(h["so"]); ins, tag = h["ins"][(gp & 7) >> 1]
                    assert tag[0] != "wdd" or not any(isinstance(x, str) for x in misc)
                    a.vmi(ins, tag)
                add(g2, 2, dma)
            if nn == 303:
                def chk0():
                    for o in self.check_ops(a, plan["checks"][0][1], "n0", 1): o()
                g1.insert(0, (3, chk0))
            if nn == opt.get("pa", 274): misc += [("fn", o) for o in p0[:nh + nh // 2]]
            if nn == opt.get("pb", 286): misc += [("fn", o) for o in p0[nh + nh // 2:]]
            if nn == 316 and plan["checks"][1][0] - LAH < 9:
                plan["pre"] = (1,); misc += [("fn", o) for o in self.poll_ops(a, plan["checks"][1][1])]
            if s >= 19 and hq < LAH:
                if gp % 2 == 0:
                    if hq in plan["rl"]: add(g1, 1, lambda q=hq: a.readlane(plan["so"](plan["rl"][q]), V_TH, 10 + plan["rl"][q]))
                else:
                    add(g2, 2, lambda q=hq: self.h_load(a, q, plan, hbuf)); hq += 1
            waitnext = (n + 1) % 2 == 0 and 0 <= n + 1 < 320
            def run_gap(g, extra_cost, allow):
                c = extra_cost
                for cost, fn in g: fn(); c += cost
                while misc and c < allow + 1:
                    x = misc.pop(0); c += 1
                    if x == ("nonce_ld",): a.vmi(f"buffer_load_dword v{V_NON}, off, {sG}, 0 sc1", "nonce")
                    elif x == ("nonce_get",): self.nonce_get(a, "n")
                    elif x[0] == "fn": x[1]()
                    else: a(x)
                credit[0] += EPR
                u = run_epi(n, max(int(credit[0]) if c <= allow else 0, allow - c))
                credit[0] = max(0.0, credit[0] - u) if epi and epi[0][0] <= n else 0.0
            ms = mfmas(n) if n >= 0 else []
            if n in (200, 240, 280):
                ac = minfo(n)["acc"]; pb = minfo(n)["blk"] - 2
                assert not any(o[0] != "s" and o[2] == ac for _, o in epi), n
                assert n == 200 or (n == 240 and stN[4] > 230) or not any(o[2] == pb for o in sts + [o for _, o in epi if o[0] == "s"]), n
            if n >= 0 and n % 2 == 0:
                needs = [("x", n + 1)]
                if any(t == ("w", n) for t in a.lg): needs.append(("w", n))
                a.need(lg=needs)
            if not mf16:
                for ins, k in ms: a.mfma(ins, k)
                if n >= 0 and minfo(n)["last"]:
                    for o in epi_ops(minfo(n)["blk"], minfo(n)["acc"]): epi.append((n + 3, o))
                run_gap(g1 + g2, 1 if waitnext else 0, CAP)
            else:
                if ms: a.mfma(*ms[0])
                run_gap(g1, 0, CAP)
                if ms: a.mfma(*ms[1])
                if n >= 0 and minfo(n)["last"]:
                    for o in epi_ops(minfo(n)["blk"], minfo(n)["acc"]): epi.append((n + 2, o))
                run_gap(g2, 1 if waitnext else 0, CAP)
            run_sts(n)
        while trq:
            ins, tag = trq.pop(0); a.lgi(ins, tag)
        assert hq == LAH, hq
        assert not misc
        if LAH in plan["rl"]: a.readlane(plan["so"](plan["rl"][LAH]), V_TH, 10 + plan["rl"][LAH])
        a(f"s_cmp_lg_u32 s{S_IDLE}, 0\ns_cbranch_scc1 L_idle")
        b = SBX(); b.label("L_idle"); b("s_nop 7\ns_nop 7"); b.mfma_w[A0] = -100
        assert not sts and len(pubs) <= 1
        for _, o in epi:
            if o[0] == "s": b(o[1])
            else: emit_epi(b, o)
        b("s_waitcnt vmcnt(0)\ns_barrier")
        pub_emit(b, [3, 4], "i")
        b("s_branch L_fin")
        self.slow.append("\n".join(b.lines))
        st = dict(tr=[])
        def extra(q, nb):
            n = 320 + (q * 4 + nb) // 2
            if nb in (0, 2, 3): run_epi(n, 2)
            run_sts(n)
            if nb == 0 and pub_ready():
                if pubs[0][0] == 4: a.need(lg=("wd", 11, 3))
                a("s_barrier"); run_pub()
            if opt.get("nohst") and q == 14 and nb == 0:
                a.need(lg=("wd", 11, 3)); a("s_barrier")
            if q == 3 and nb == 3:
                a.need(vm=("wdd", 11)); st["tr"] = self.wd_trs(wdf, 11, 16384)
            for (q0, i, lo) in ((6, 12, 2), (22, 13, 3)):
                hh = four("d", 0, 10 + i, lo * 16384, ("wdd", i))
                if q == q0 and nb == 3: a.readlane(*hh["rl"]); a(hh["m0"])
                if q0 < q <= q0 + 13 and (q - q0) % 4 == 1 and nb == 2:
                    a.pad_sgpr(hh["so"]); ins, tag = hh["ins"][(q - q0) // 4]; a.vmi(ins, tag)
                if q == q0 + 25 and nb == 0:
                    a.need(vm=("wdd", i)); st["tr"] = self.wd_trs(wdf, i, lo * 16384)
            if st["tr"] and nb in (0, 3):
                ins, tag = st["tr"].pop(0); a.lgi(ins, tag)
        self.p2_main(a, 5, "n", plan, acc2, hbuf, wdf, extra, 20480, S_REG)
        assert not epi and not pubs and not sts

    def free(self, a):
        a(f"""
        s_sub_u32 s{S_J}, s{S_J}, 27
        s_and_b32 s{T0}, s{S_XCD}, 1
        s_mul_i32 s{T0}, s{T0}, 5
        s_add_u32 s{S_N}, s{T0}, s{S_J}
        s_lshr_b32 s{T0}, s{S_XCD}, 1
        s_lshl_b32 s{S_RB0}, s{T0}, 5
        s_lshl_b32 s{S_MW}, s{S_W}, 15
        v_mov_b32 v{V_TW}, 0
        v_mov_b32 v{V_TH}, 0
        """)
        self.srds(a); self.srds2(a)
        self.p2_setup(a, 7, False)
        trL, wdM = self.wd_addr_ops(S_MW)
        for x in wdM: a(x)
        def wdf(i): return ('a', 16 * i)
        def hbuf(q): return ('v', 144 + 4 * (q % 18))
        def acc2(rb, nb): return ('v', 32 + (rb * 4 + nb) * 4)
        def wdg(i):
            a.readlane(S_SO[0], V_TW, 10 + i)
            a(f"s_add_u32 m0, s{S_MW}, {(i%8)*4096}")
            a.pad_sgpr(S_SO[0])
            for k in range(4):
                a.vmi(f"buffer_load_dwordx4 v{V_WD+k}, {sD}, s{S_SO[0]} offen offset:{1024*k} lds", ("wdd", i))
        wdg(0); wdg(1)
        for x in trL: a(x)
        wdg(2); wdg(3)
        for i in range(14):
            a.need(vm=("wdd", i))
            for ins, tag in self.wd_trs(wdf, i, (i % 8) * 4096): a.lgi(ins, tag)
            if i >= 3: a.need(lg=("wd", i - 3, 3))
            if i + 4 < 14: wdg(i + 4)
            if i == 10 and self.opt.get("pfx", 1):
                a(f"""
                s_and_b32 s4, s{S_XCD}, 1
                s_lshl_b32 s4, s4, 2
                s_add_u32 s4, s4, s{S_W}
                s_mul_i32 s4, s4, {8*40960}
                s_lshl_b32 s5, s{S_J}, 13
                s_add_u32 s4, s4, s5
                s_and_b32 s5, s{S_XCD}, 6
                v_lshlrev_b32 v1, 7, v0
                """)
                for e in range(3):
                    a(f"s_add_u32 s6, s5, {5+e}\ns_and_b32 s6, s6, 7\ns_mul_i32 s6, s6, 40960\ns_add_u32 s6, s6, s4")
                    a.vmi(f"buffer_load_dword v{V_DUM}, v1, {sX}, s6 offen", "pfx")
        a.vmi(f"buffer_load_dword v{V_NON}, off, {sG}, 0 sc1", "nonce")
        self.nonce_get(a, "f")
        plan = self.plan_free(); LAH = self.opt.get("lah", 10)
        for i in range(14): a.readlane(S_FHS[i], V_TH, 10 + i)
        assert plan["checks"][0][0] == 0 and plan["checks"][1][0] > LAH
        for o in self.poll_ops(a, plan["checks"][0][1]): o()
        for o in self.check_ops(a, plan["checks"][0][1], "f0", self.opt.get("sleepf", 4)): o()
        for q in range(LAH): self.h_load(a, q, plan, hbuf)
        self.p2_main(a, 7, "f", plan, acc2, hbuf, wdf, lambda q, nb: None, 32768, S_MW)

    def gen(self):
        a = SBX()
        if self.st: a("s_memrealtime s[96:97]")
        if self.opt.get("dbgsync"):
            a(f"""
            s_memrealtime s[4:5]
            s_waitcnt lgkmcnt(0)
            s_add_u32 s4, s4, 200
            s_or_b32 s4, s4, 1023
            L_syn:
            s_memrealtime s[96:97]
            s_waitcnt lgkmcnt(0)
            s_sub_u32 s6, s96, s4
            s_cmp_lt_i32 s6, 0
            s_cbranch_scc1 L_syn
            """)
        a(f"""
        s_load_dwordx4 s[4:7], s[0:1], 0
        s_load_dwordx4 s[64:67], s[0:1], 16
        s_load_dwordx4 s[24:27], s[0:1], 32
        s_load_dwordx2 s[68:69], s[0:1], 48
        s_cmp_ge_u32 s2, 256
        s_cbranch_scc1 L_end
        v_lshrrev_b32 v1, 6, v0
        v_and_b32 v0, 63, v0
        s_and_b32 s{S_XCD}, s2, 7
        v_readfirstlane_b32 s{S_W}, v1
        s_lshr_b32 s{S_J}, s2, 3
        s_cmp_ge_u32 s{S_J}, 27
        """)
        if self.opt.get("cw", 1):
            a(f"""
            s_cbranch_scc0 L_normal
            s_getpc_b64 s[8:9]
            s_mov_b32 s10, L_code_end-L_normal
            s_mov_b32 s11, 0x00020000
            v_lshlrev_b32 v2, 13, v1
            v_lshl_add_u32 v2, v0, 7, v2
            buffer_load_dword v{V_DUM}, v2, s[8:11], 0 offen
            s_branch L_free
            L_normal:
            """)
        else:
            a("s_cbranch_scc1 L_free")
        n = SBX(); self.tr(n, "start"); self.normal(n); self.tr(n, "ost")
        if self.opt.get("trace"): n.wait_all(); self.tr(n, "end"); self.tr_out(n)
        n("s_branch L_fin" if self.st else "s_endpgm")
        f = SBX(); self.free(f)
        a.lines += n.lines; a.label("L_free"); a.lines += f.lines
        a.label("L_fin")
        self.stamps_out(a)
        a("L_end:\ns_endpgm")
        sl = SBX()
        for s in self.slow: sl(s)
        if self.opt.get("touch", 0):
            i = a.lines.index("@@SLOW@@"); a.lines[i:i+1] = sl.lines
        else: a.lines += sl.lines
        a.label("L_code_end")
        if self.opt.get("touch", 0): self.add_touch(a)
        return a.text()
    def add_touch(self, a):
        import subprocess, re
        i0 = a.lines.index("L_base:"); i1 = a.lines.index("L_free:")
        tmp = list(a.lines) + [f"L_t{k}:" for k in range(1, 9)] + ["s_endpgm"]
        src = '.amdgcn_target "amdgcn-amd-amdhsa--gfx950"\n.text\n' + "\n".join(tmp) + "\n"
        open("_t.s", "w").write(src)
        subprocess.run("clang -x assembler -target amdgcn-amd-amdhsa -mcpu=gfx950 -c _t.s -o _t.o", shell=True, check=True)
        d = subprocess.run("llvm-objdump -d --mcpu=gfx950 _t.o", shell=True, capture_output=True, text=True).stdout.split("\n")
        j = [k for k, l in enumerate(d) if l.endswith("<L_base>:")][0]
        addrs = [int(re.search(r"// ([0-9A-F]+):", l).group(1), 16) for l in d[j:] if "// " in l]
        base = addrs[0]; assert base % 4096 == 0
        out = []; n = 0; k = 1; pos = []
        for l in a.lines[i0:i1]:
            t = l.strip()
            isins = t and not t.endswith(":") and not t.startswith(";")
            if isins:
                ad = addrs[n] - base + 4 * (k - 1)
                if ad >= 4096 * k + self.opt.get("toff", 0) and t.startswith("v_mfma"):
                    out.append(f"L_t{k}:"); out.append(f"    s_cbranch_execz @T{k}@"); k += 1
                n += 1
            out.append(l)
        nt = k - 1
        out = [re.sub(r"@T(\d+)@", lambda m: f"L_t{int(m.group(1))+4}" if int(m.group(1)) + 4 <= nt else "L_base", x) for x in out]
        for q in range(nt + 1, 5): out.insert(0, f"L_t{q}:")
        a.lines[i0:i1] = out

def gen(opt):
    g = G(opt)
    body = g.gen()
    body = "; TRACE " + " ".join(g.trn) + "\n" + body
    if "probe2" in opt:
        nm, stat, mult = opt["probe2"]
        LL = [f"kernel=main_kernel grid=(256,1,1) block=(256,1,1) lds=131072", "kernel=pr_kernel grid=(1,1,1) block=(64,1,1) lds=0"]
        t = header(LL) + kernel_begin("main_kernel") + body
        t += kernel_begin("pr_kernel") + gen3.gen_probe2(g.trn.index(nm), stat, mult) + kernel_desc("pr_kernel", vgpr=8, accum=8)
        t += kernel_desc("main_kernel", vgpr=512, accum=256)
        return t
    return header(["grid=(256,1,1) block=(256,1,1) lds=131072"]) + kernel_begin(KNAME) + body + kernel_desc(KNAME, vgpr=512, accum=256)

if __name__ == "__main__":
    import json
    opt = json.loads(sys.argv[2]) if len(sys.argv) > 2 else {}
    open(sys.argv[1], "w").write(gen(opt))
```

```python
import sys
from sb import SB
from asmlib import header, kernel_begin, kernel_desc, KNAME
import gen3

XB, WB, HB, OB = 2621440, 2211840, 54*128*1024, 2621440
FLAG_OFF, FLAG_B = 0x800000, 8*27*640
STAMP_OFF = 0x4000000
OOBV = 0x7ff00000

def R(p, a, n=4): return f"{p}[{a}:{a+n-1}]"
def RR(r, n=4): return R(r[0], r[1], n)
def off(r, k): return (r[0], r[1] + k)
def lines(s): return [x.strip() for x in s.split("\n") if x.strip()]

sX, sW, sH, sD, sO, sF, sG = "s[8:11]", "s[12:15]", "s[16:19]", "s[20:23]", "s[24:27]", "s[28:31]", "s[32:35]"
S_W, S_C, S_RG, S_SC, S_K0 = 36, 37, 38, 39, 40
S_RB0, S_N, S_REG = 41, 42, 43
S_MX, S_MW = 44, 45
S_SO = [46, 47]
S_TI = 48
S_NON, S_TO, S_OSO, S_J, S_XCD, S_OLAST = 50, 52, 53, 54, 55, 56
T0, T1, T2, T3 = 60, 61, 62, 63
S_FB = 64
S_F2, S_F13 = 70, 72
S_PV = 74
S_HS8 = 82
S_HSL = [37, 38, 39, 40, 41, 42, 49, 57, 58, 59, 66, 67, 68, 69]
S_WDO, S_WDS = 54, 55
V_DR, V_XD, V_WD, V_XR, V_WR, V_HS = 4, 8, 12, 16, 20, 21
V_TX, V_TW, V_TH, V_FO, V_F, V_NON, V_HL0, V_HL1 = 22, 23, 24, 25, 26, 29, 30, 31
V_DUM, V_TR = 254, 255

class SBX(SB):
    def __init__(self):
        super().__init__()
        self.rl = {}
        self.vw = {}
    def readlane(self, s, v, lane):
        self(f"v_readlane_b32 s{s}, v{v}, {lane}"); self.rl[s] = self.n
    def pad_sgpr(self, s, states=5):
        d = self.n - self.rl.get(s, -100)
        if d < states: self(f"s_nop {states-d-1}")

class G:
    def __init__(self, opt):
        self.opt = opt
        self.st = opt.get("stamps", 0)
        self.slow = []
        self.trn = []
        self.mf16 = opt.get("mf", 32) == 16
        self.LV = opt.get("lv", [0, 0, 0, 0, 1, 1, 2, 3])
    def tr(self, a, name):
        if not self.opt.get("trace"): return
        i = len(self.trn); p = 90 + 2 * (i % 3)
        if i >= 2: a(f"v_writelane_b32 v{V_TR}, s{90 + 2 * ((i - 2) % 3)}, {i-2}")
        a(f"{'s_memrealtime' if self.opt.get('trace') == 2 else 's_memtime'} s[{p}:{p+1}]")
        self.trn.append(name)
    def tr_out(self, a):
        if not self.opt.get("trace"): return
        n = len(self.trn)
        a("s_waitcnt lgkmcnt(0)")
        for i in (n - 2, n - 1): a(f"v_writelane_b32 v{V_TR}, s{90 + 2 * (i % 3)}, {i}")
        a(f"""
        s_mov_b32 s16, s100
        s_mov_b32 s17, s101
        s_mov_b32 s18, 0x10000000
        s_mov_b32 s19, 0x00020000
        s_lshl_b32 s3, s2, 2
        s_add_u32 s3, s3, s{S_W}
        s_lshl_b32 s3, s3, 8
        s_add_u32 s3, s3, {STAMP_OFF + 0x100000}
        v_lshlrev_b32 v1, 2, v0
        buffer_store_dword v{V_TR}, v1, s[16:19], s3 offen
        """)
    def stamps_out(self, a):
        if not self.st: return
        a(f"""
        s_waitcnt vmcnt(0)
        s_memrealtime s[98:99]
        s_mov_b32 s8, s100
        s_mov_b32 s9, s101
        s_mov_b32 s10, 0x10000000
        s_mov_b32 s11, 0x00020000
        s_lshl_b32 s3, s2, 2
        s_add_u32 s3, s3, s{S_W}
        s_lshl_b32 s3, s3, 6
        s_add_u32 s3, s3, {STAMP_OFF}
        v_mov_b32 v1, s3
        s_waitcnt lgkmcnt(0)
        v_mov_b32 v2, s90
        buffer_store_dword v2, v1, s[8:11], 0 offen offset:40
        v_mov_b32 v2, s92
        buffer_store_dword v2, v1, s[8:11], 0 offen offset:44
        v_mov_b32 v2, s94
        buffer_store_dword v2, v1, s[8:11], 0 offen offset:48
        v_mov_b32 v2, s{S_TO}
        buffer_store_dword v2, v1, s[8:11], 0 offen offset:52
        v_mov_b32 v2, s96
        buffer_store_dword v2, v1, s[8:11], 0 offen offset:56
        v_mov_b32 v2, s98
        buffer_store_dword v2, v1, s[8:11], 0 offen offset:60
        """)
    def p2_setup(self, a, idle):
        a(f"""
        s_and_b32 s4, s{S_XCD}, 6
        s_mul_i32 s4, s4, {27*640}
        s_add_u32 s{S_F13}, s28, s4
        s_addc_u32 s{S_F13+1}, s29, 0
        s_lshr_b32 s5, s{S_W}, 1
        s_mul_i32 s6, s5, 640
        s_add_u32 s{S_F2}, s{S_F13}, s6
        s_addc_u32 s{S_F2+1}, s{S_F13+1}, 0
        v_and_b32 v1, 15, v0
        v_lshl_add_u32 v1, v1, 1, s5
        v_min_u32 v1, 26, v1
        v_bfe_u32 v2, v0, 4, 1
        v_mul_u32_u24 v2, 27, v2
        v_add_u32 v1, v1, v2
        v_mul_u32_u24 v1, 640, v1
        v_add_u32 v{V_FO}, s4, v1
        v_lshlrev_b32 v{V_HL0}, 4, v0
        v_add_u32 v{V_HL1}, 4096, v{V_HL0}
        s_cmp_ge_u32 s{S_W}, 2
        s_cselect_b32 s{S_OLAST}, {OOBV}, 0
        s_lshl_b32 s6, s{S_N}, 7
        s_mul_i32 s{S_OSO}, s{S_RB0}, 20480
        s_add_u32 s{S_OSO}, s{S_OSO}, s6
        s_mul_i32 s4, s{S_W}, 40960
        s_add_u32 s{S_WDO}, s4, s6
        s_mov_b32 s{S_WDS}, 163840
        s_lshl_b32 s4, s{S_W}, 7
        s_add_u32 s4, s4, s{S_RB0}
        s_lshl_b32 s4, s4, 10
        s_mov_b32 s5, 524288
        """)
        if idle:
            a(f"""
            s_cmp_eq_u32 s{S_TI}, 5
            s_cselect_b32 s{S_WDO}, {WB}, s{S_WDO}
            s_cselect_b32 s{S_WDS}, 0, s{S_WDS}
            s_cselect_b32 s4, {HB}, s4
            s_cselect_b32 s5, 0, s5
            """)
        a(f"s_mov_b32 s{S_HSL[0]}, s4")
        for i in range(1, 14): a(f"s_add_u32 s{S_HSL[i]}, s{S_HSL[i-1]}, s5")
        a(f"s_min_u32 s{S_HSL[13]}, s{S_HSL[13]}, {HB}")
    def wd_addr_ops(self, base):
        D = 8*1280 - 1024
        if not self.mf16:
            L = f"""
            v_lshrrev_b32 v1, 5, v0
            v_lshlrev_b32 v1, 4, v1
            v_bfe_u32 v2, v0, 2, 3
            v_add_u32 v1, v1, v2
            v_lshlrev_b32 v1, 7, v1
            v_lshrrev_b32 v2, 1, v2
            """
            M = f"""
            v_lshrrev_b32 v1, 4, v0
            v_lshlrev_b32 v1, 1, v1
            v_and_b32 v2, 7, v0
            v_xor_b32 v1, v1, v2
            v_lshrrev_b32 v2, 3, v0
            v_mul_u32_u24 v2, 1280, v2
            v_lshl_add_u32 v{V_WD}, v1, 4, v2
            v_add_u32 v{V_WD+1}, {D}, v{V_WD}
            v_add_u32 v{V_WD+2}, {2*D}, v{V_WD}
            v_add_u32 v{V_WD+3}, {3*D}, v{V_WD}
            """
        else:
            L = f"""
            v_lshrrev_b32 v1, 4, v0
            v_bfe_u32 v2, v0, 2, 2
            v_lshl_add_u32 v1, v1, 3, v2
            v_lshlrev_b32 v1, 7, v1
            v_bfe_u32 v2, v0, 3, 2
            """
            M = f"""
            v_bfe_u32 v1, v0, 4, 1
            v_lshlrev_b32 v1, 1, v1
            v_and_b32 v2, 7, v0
            v_xor_b32 v1, v1, v2
            v_lshrrev_b32 v2, 3, v0
            v_mul_u32_u24 v2, 1280, v2
            v_lshl_add_u32 v{V_WD}, v1, 4, v2
            v_xor_b32 v1, 4, v1
            v_lshl_add_u32 v1, v1, 4, v2
            v_add_u32 v{V_WD+1}, {D}, v1
            v_add_u32 v{V_WD+2}, {2*D}, v{V_WD}
            v_add_u32 v{V_WD+3}, {3*D}, v1
            """
        L += f"""
        v_lshlrev_b32 v2, 5, v2
        v_and_b32 v3, 3, v0
        v_lshlrev_b32 v3, 3, v3
        v_add3_u32 v1, v1, v2, v3
        v_add_u32 v{V_DR}, s{base}, v1
        v_xor_b32 v{V_DR+1}, 32, v{V_DR}
        v_xor_b32 v{V_DR+2}, 64, v{V_DR}
        v_xor_b32 v{V_DR+3}, 96, v{V_DR}
        """
        return lines(L), lines(M)
    def wd_trs(self, wdf, i, ldsoff):
        rs = 512 if self.mf16 else 1024
        return [(f"ds_read_b64_tr_b16 {RR(off(wdf(i), nb*4+2*rd), 2)}, v{V_DR+nb} offset:{ldsoff + rd*rs}", ("wd", i, nb)) for nb in range(4) for rd in range(2)]
    def poll_ops(self, a, fl):
        if self.opt.get("nopoll"): return []
        if len(fl) % 2: fl = fl + [fl[-1]]
        L = []
        for k, (g, i, lv) in enumerate(fl):
            b = S_F13 if i == 13 else S_F2
            L.append(f"s_load_dword s{S_PV+k}, s[{b}:{b+1}], {(g*27 + 2*i)*640 + lv*128}")
        return [(lambda x=x: a(x)) for x in L]
    def cmp_ops(self, fl):
        n = (len(fl) + 1) // 2
        L = [f"s_xor_b64 s[{S_PV+2*p}:{S_PV+2*p+1}], s[{S_PV+2*p}:{S_PV+2*p+1}], s[{S_NON}:{S_NON+1}]" for p in range(n)]
        L += [f"s_or_b64 s[{S_PV}:{S_PV+1}], s[{S_PV}:{S_PV+1}], s[{S_PV+2*p}:{S_PV+2*p+1}]" for p in range(1, n)]
        return L
    def check_ops(self, a, fl, uid, sl):
        if self.opt.get("nopoll"): return []
        L = self.cmp_ops(fl)
        ops = [lambda: a.wait_all(vm=False)]
        ops += [(lambda x=x: a(x)) for x in L[:-1]]
        def fin():
            a(L[-1]); a(f"s_cbranch_scc1 L_slow_{uid}"); a(f"L_ok_{uid}:")
        ops.append(fin)
        m = 0
        for g, i, lv in fl: m |= 1 << (16 * g + i)
        assert len(set(lv for g, i, lv in fl)) == 1
        self.slow.append(f"""
        L_slow_{uid}:
        s_mov_b64 exec, {m:#x}
        buffer_load_dword v{V_F}, v{V_FO}, {sF}, 0 offen offset:{fl[0][2]*128} sc1
        s_mov_b64 exec, -1
        s_waitcnt vmcnt(0)
        v_cmp_eq_u32 vcc, s{S_NON}, v{V_F}
        s_andn2_b32 s{T0}, {m:#x}, vcc_lo
        s_cbranch_scc0 L_ok_{uid}
        s_cmp_eq_u32 s{S_TO}, 0
        s_cbranch_scc1 L_ok_{uid}
        s_sub_u32 s{S_TO}, s{S_TO}, 1
        s_sleep {sl}
        s_branch L_slow_{uid}
        """)
        return ops
    def nonce_get(self, a, uid):
        a.need(vm="nonce")
        a(f"L_nchk_{uid}:")
        a(f"v_readfirstlane_b32 s{S_NON}, v{V_NON}")
        a(f"s_cmp_eq_u32 s{S_NON}, 0")
        a(f"s_cbranch_scc1 L_nslow_{uid}")
        a(f"L_nok_{uid}:")
        a(f"s_mov_b32 s{S_NON+1}, s{S_NON}")
        self.slow.append(f"""
        L_nslow_{uid}:
        s_cmp_eq_u32 s{S_TO}, 0
        s_cbranch_scc1 L_nok_{uid}
        s_sub_u32 s{S_TO}, s{S_TO}, 1
        buffer_load_dword v{V_NON}, off, {sG}, 0 sc1
        s_waitcnt vmcnt(0)
        s_branch L_nchk_{uid}
        """)
    def plan(self, rho0, nblk, avail, first_batch, batch=8):
        sc = lambda c: (c * 19) >> 6
        NL = max(self.LV) + 1
        def cls(i, rb):
            b = ((rho0 + rb) >> 1) & 7
            return max(self.LV[(b - sc(2 * i + u)) % 8] for u in (0, 1) if 2 * i + u < 27)
        grp = lambda rb: (rho0 + rb) >> 4
        fr = [(i, rb) for i in range(14) for rb in range(nblk)]
        tail = [f for f in fr if cls(*f) == NL - 1]
        rest = sorted([f for f in fr if f not in tail], key=lambda f: (cls(*f), f[0], f[1]))
        for rb in range(nblk):
            while sum(1 for f in tail if f[1] == rb) < 3:
                c = max([f for f in rest if f[1] == rb], key=lambda f: (avail.get(f[0], 0), cls(*f), f[0]))
                rest.remove(c); tail.append(c)
        cnt = {}
        for f in rest: cnt[(grp(f[1]), f[0], cls(*f))] = cnt.get((grp(f[1]), f[0], cls(*f)), 0) + 1
        rest.sort(key=lambda f: (cls(*f), -cnt[(grp(f[1]), f[0], cls(*f))], f[0], f[1]))
        order = []
        while rest:
            c = next((f for f in rest if avail.get(f[0], 0) <= len(order)), None)
            assert c is not None
            rest.remove(c); order.append(c)
        tail.sort(key=lambda f: (f[1], cls(*f), f[0]))
        order += tail
        for q, f in enumerate(order): assert avail.get(f[0], 0) <= q, (q, f)
        checks = []; have = {}
        q = 0
        while q < len(order):
            i, rb = order[q]; lv = cls(i, rb)
            if have.get((grp(rb), i), -1) >= lv: q += 1; continue
            mx = first_batch if not checks else batch
            fl = []
            for (i2, r2) in order[q:]:
                k = (grp(r2), i2)
                if cls(i2, r2) == lv and have.get(k, -1) < lv and (k[0], k[1], lv) not in fl:
                    if len(fl) == mx: break
                    fl.append((k[0], k[1], lv))
            for g, i2, l2 in fl: have[(g, i2)] = l2
            checks.append((q, fl))
        return dict(order=order, checks=checks)
    def h_load(self, a, q, plan, hbuf):
        i, rb = plan["order"][q]
        v = V_HL0 if rb < 4 else V_HL1
        so = S_HSL[i]
        a.vmi(f"buffer_load_dwordx4 {RR(hbuf(q))}, v{v}, {sH}, s{so} offen offset:{1024*(rb%4)} sc1", ("h", q))
    def p2_main(self, a, nblk, uid, plan, acc, hbuf, wdf, extra, REG, sreg):
        order = plan["order"]
        LAH = self.opt.get("lah", 10); PD = self.opt.get("pd", 9)
        NF = len(order)
        lastq = {}
        for q, (i, rb) in enumerate(order): lastq[rb] = q
        sched = {}
        MING = self.opt.get("ming", 7)
        cks = [(ci, ql, fl) for ci, (ql, fl) in enumerate(plan["checks"]) if ci > 0]
        nxt = 10**9; place = {}
        for ci, ql, fl in reversed(cks):
            nc = (len(self.cmp_ops(fl)) + 1 + 2) // 3
            qc = min(ql - LAH - 1, nxt - 1)
            place[ci] = (qc, nc)
            nxt = qc - nc + 1 - MING - (len(fl) + 3) // 4
        prev = -1
        for ci, ql, fl in cks:
            qc, nc = place[ci]
            cops = self.check_ops(a, fl, f"{uid}c{ci}", self.opt.get("sleepn", 1))
            pops = self.poll_ops(a, fl)
            qp = max(prev + 1, qc - nc + 1 - PD)
            assert qp + (len(pops) + 3) // 4 <= qc - nc + 1, (uid, ci, qp, qc)
            for k, o in enumerate(cops): sched.setdefault(qc - nc + 1 + k // 3, []).append(o)
            for k, o in enumerate(pops): sched.setdefault(qp + k // 4, []).append(o)
            prev = qc
            if self.opt.get("verbose"): print(uid, "check", ci, "need@", ql, "poll@", qp, "chk@", qc, fl)
        VW, VR = 16, 8
        addr_ops = lines(f"""
            v_and_b32 v1, 15, v0
            v_lshrrev_b32 v2, 4, v0
            v_and_b32 v3, 7, v0
            v_xor_b32 v2, v2, v3
            v_lshlrev_b32 v2, 4, v2
            v_lshl_add_u32 v1, v1, 8, v2
            v_add_u32 v{VW}, s{sreg}, v1
            v_xor_b32 v{VW+1}, 64, v{VW}
            v_lshrrev_b32 v1, 3, v0
            v_lshlrev_b32 v2, 1, v3
            v_xor_b32 v2, v2, v1
            v_lshlrev_b32 v2, 4, v2
            s_lshl_b32 s{T1}, s{S_W}, 3
            v_add_u32 v1, s{T1}, v1
            v_lshl_add_u32 v{VR}, v1, 8, v2
            v_xor_b32 v{VR+1}, 16, v{VR}
            v_add_u32 v{VR+2}, {2*REG}, v{VR}
            v_add_u32 v{VR+3}, {2*REG}, v{VR+1}
            v_mul_u32_u24 v1, 1280, v1
            v_lshl_add_u32 v18, v3, 4, v1
            v_add_u32 v19, s{S_OLAST}, v18
            """)
        wq = []; started = set()
        def dsw(r2, n2):
            a.after_mfma(acc(r2, n2), 9)
            a.lgi(f"ds_write_b128 v{VW + (n2 & 1)}, {RR(acc(r2, n2))} offset:{r2*4096 + (n2 >> 1)*128}", "red")
        for q, (i, rb) in enumerate(order):
            if uid != "f" and q % nblk == 0: self.tr(a, f"S{q//nblk}")
            ql = q + LAH
            for nb in range(4):
                if nb == 0: a.need(vm=("h", q), lg=("wd", i, 3))
                ac = acc(rb, nb)
                c = RR(ac) if (rb, nb) in started else "0"
                started.add((rb, nb))
                a.mfma(f"v_mfma_f32_16x16x32_bf16 {RR(ac)}, {RR(off(wdf(i), nb*4))}, {RR(hbuf(q))}, {c}", ac)
                if nb == 0:
                    cur = list(sched.get(q, []))
                if nb == 1 and ql < NF: self.h_load(a, ql, plan, hbuf)
                if nb != 1:
                    k = {0: (len(cur) + 2) // 3, 2: (len(cur) + 1) // 2, 3: len(cur)}[nb]
                    for o in cur[:k]: o()
                    cur = cur[k:]
                if wq and wq[0][0] <= q * 4 + nb and nb != 1 or (wq and ql >= NF and wq[0][0] <= q * 4 + nb):
                    _, r2, n2 = wq.pop(0); dsw(r2, n2)
                extra(q, nb)
                if addr_ops and q >= min(lastq.values()) - 24 and nb in (0, 2, 3) and q not in sched: a(addr_ops.pop(0))
            if q == lastq[rb]:
                assert not addr_ops
                for n2 in range(4): wq.append((q * 4 + 6 + 3 * n2, rb, n2))
        if uid != "f": self.tr(a, "p2end")
        while wq:
            _, r2, n2 = wq.pop(0); dsw(r2, n2)
        a.wait_all(vm=False)
        if uid != "f": self.tr(a, "redw")
        a("s_barrier")
        if uid != "f": self.tr(a, "redb")
        TMP = 32
        NQ = (nblk + 1) // 2
        opol = self.opt.get("opol", "")
        def rd(qi):
            for pw in range(4):
                for hf in range(2):
                    t = TMP + qi * 32 + pw * 8 + hf * 4
                    a.lgi(f"ds_read_b128 {R('v', t)}, v{VR + hf + 2*(pw >> 1)} offset:{(pw & 1)*REG + qi*8192}", ("rr", qi, pw))
        rd(0); rd(1)
        for qi in range(NQ):
            t = TMP + qi * 32
            a.need(lg=("rr", qi, 1))
            for r in range(0, 8, 2): a(f"v_pk_add_f32 {R('v',t+r,2)}, {R('v',t+r,2)}, {R('v',t+8+r,2)}")
            a.need(lg=("rr", qi, 3))
            if qi + 2 < NQ: rd(qi + 2)
            for r in range(0, 8, 2): a(f"v_pk_add_f32 {R('v',t+16+r,2)}, {R('v',t+16+r,2)}, {R('v',t+24+r,2)}")
            for r in range(0, 8, 2): a(f"v_pk_add_f32 {R('v',t+r,2)}, {R('v',t+r,2)}, {R('v',t+16+r,2)}")
            for d in range(4): a(f"v_cvt_pk_bf16_f32 v{t+8+d}, v{t+2*d}, v{t+2*d+1}")
            a.vmi(f"buffer_store_dwordx4 {R('v',t+8)}, v{19 if qi == NQ - 1 else 18}, {sO}, s{S_OSO} offen {opol}", "ost")
            if qi < NQ - 1: a(f"s_add_u32 s{S_OSO}, s{S_OSO}, {32*1280}")

    def srds(self, a):
        a(f"""
        s_mov_b32 s10, {XB}
        s_mov_b32 s11, 0x00020000
        s_mov_b32 s14, {WB}
        s_mov_b32 s15, 0x00020000
        s_cmp_ge_u32 s{S_W}, 2
        s_waitcnt lgkmcnt(0)
        s_mov_b32 s8, s4
        s_mov_b32 s9, s5
        s_cselect_b32 s12, s64, s6
        s_cselect_b32 s13, s65, s7
        """)
    def srds2(self, a):
        a(f"""
        s_mov_b32 s16, s68
        s_mov_b32 s17, s69
        s_mov_b32 s18, {HB}
        s_mov_b32 s19, 0x00020000
        s_mov_b32 s20, s66
        s_mov_b32 s21, s67
        s_mov_b32 s22, {WB}
        s_mov_b32 s23, 0x00020000
        s_mov_b32 s32, s26
        s_mov_b32 s33, s27
        s_mov_b32 s34, 256
        s_mov_b32 s35, 0x00020000
        s_mov_b32 s26, {OB}
        s_mov_b32 s27, 0x00020000
        s_add_u32 s28, s68, {FLAG_OFF}
        s_addc_u32 s29, s69, 0
        s_mov_b32 s30, {FLAG_B}
        s_mov_b32 s31, 0x00020000
        s_mov_b32 s{S_TO}, 100000
        """)
        if self.st or self.opt.get("trace"): a("s_mov_b32 s100, s68\ns_mov_b32 s101, s69")

    def normal(self, a, ti):
        opt = self.opt; mf16 = self.mf16; U = f'n{ti}'
        rot = opt.get("rot", 20)
        exact = opt.get("exact", 0)
        a(f"""
        s_lshr_b32 s{T0}, s{S_XCD}, 1
        s_mul_i32 s{T0}, s{T0}, 27
        s_add_u32 s{T0}, s{T0}, s{S_J}
        s_lshr_b32 s{S_C}, s{T0}, 2
        s_and_b32 s{T0}, s{T0}, 3
        s_and_b32 s{S_RG}, s{S_XCD}, 1
        s_lshl_b32 s{S_RG}, s{S_RG}, 2
        s_add_u32 s{S_RG}, s{S_RG}, s{T0}
        s_mul_i32 s{S_SC}, s{S_C}, 19
        s_lshr_b32 s{S_SC}, s{S_SC}, 6
        """)
        GR = 10
        if rot == 20:
            dl = opt.get("delta", 2)
            a(f"""
            s_add_u32 s{S_K0}, s{S_C}, s{T0}
            s_and_b32 s{T0}, s{S_XCD}, 1
            s_mul_i32 s{T0}, s{T0}, {dl}
            s_add_u32 s{S_K0}, s{S_K0}, s{T0}
            s_mul_i32 s{T0}, s{S_K0}, 52
            s_lshr_b32 s{T0}, s{T0}, 8
            s_mul_i32 s{T0}, s{T0}, 5
            s_sub_u32 s{S_K0}, s{S_K0}, s{T0}
            s_lshl_b32 s{S_K0}, s{S_K0}, 1
            """)
        elif rot == 1:
            a(f"""
            s_mul_i32 s{T0}, s{T0}, 5
            s_lshr_b32 s{T0}, s{T0}, 1
            s_add_u32 s{S_K0}, s{S_C}, s{T0}
            s_mul_i32 s{T0}, s{S_K0}, 26
            s_lshr_b32 s{T0}, s{T0}, 8
            s_mul_i32 s{T0}, s{T0}, 10
            s_sub_u32 s{S_K0}, s{S_K0}, s{T0}
            """)
        else:
            a(f"s_mov_b32 s{S_K0}, 0")
        DX, DW = 8*1280-1024, 8*3456-1024
        a(f"""
        v_lshrrev_b32 v2, 3, v0
        v_and_b32 v3, 7, v0
        v_lshrrev_b32 v4, 4, v0
        v_xor_b32 v5, v4, v3
        v_mul_u32_u24 v6, 1280, v2
        v_lshl_add_u32 v{V_XD}, v5, 4, v6
        v_xor_b32 v5, 4, v5
        v_lshl_add_u32 v5, v5, 4, v6
        v_add_u32 v{V_XD+1}, {DX}, v5
        v_add_u32 v{V_XD+2}, {2*DX}, v{V_XD}
        v_add_u32 v{V_XD+3}, {3*DX}, v5
        v_and_b32 v5, 1, v4
        v_mul_u32_u24 v6, 3456, v2
        """)
        if not mf16:
            a(f"""
            s_and_b32 s{T0}, s{S_W}, 2
            v_add_u32 v5, s{T0}, v5
            v_lshlrev_b32 v5, 1, v5
            v_xor_b32 v5, v5, v3
            v_lshl_add_u32 v{V_WD}, v5, 4, v6
            v_add_u32 v{V_WD+1}, {DW}, v{V_WD}
            v_add_u32 v{V_WD+2}, {2*DW}, v{V_WD}
            v_add_u32 v{V_WD+3}, {3*DW}, v{V_WD}
            """)
        else:
            a(f"""
            v_lshlrev_b32 v5, 1, v5
            v_xor_b32 v5, v5, v3
            v_lshl_add_u32 v{V_WD}, v5, 4, v6
            v_xor_b32 v5, 4, v5
            v_lshl_add_u32 v5, v5, 4, v6
            v_add_u32 v{V_WD+1}, {DW}, v5
            v_add_u32 v{V_WD+2}, {2*DW}, v{V_WD}
            v_add_u32 v{V_WD+3}, {3*DW}, v5
            """)
        a(f"""
        s_lshl_b32 s{T1}, s{S_RG}, 3
        s_add_u32 s{T0}, s{S_SC}, s{S_W}
        s_and_b32 s{T0}, s{T0}, 7
        s_add_u32 s{T0}, s{T0}, s{T1}
        s_mul_i32 s{T0}, s{T0}, 40960
        s_lshl_b32 s{T2}, s{S_K0}, 7
        s_add_u32 s{S_SO[1]}, s{T0}, s{T2}
        s_and_b32 s{T0}, s{S_W}, 1
        s_mul_i32 s{T0}, s{T0}, 110592
        s_lshl_b32 s{T2}, s{S_C}, 7
        s_add_u32 s{T3}, s{T0}, s{T2}
        s_mul_i32 s{T2}, s{S_K0}, 221184
        s_add_u32 s{S_SO[0]}, s{T3}, s{T2}
        s_lshl_b32 s{S_MX}, s{S_W}, 12
        s_add_u32 s{S_MW}, s{S_MX}, 65536
        """)
        self.srds(a)
        def four(kind, half, lane, ldsoff, tag):
            srd, vb, m0, tabv = {"x": (sX, V_XD, S_MX, V_TX), "w": (sW, V_WD, S_MW, V_TW), "d": (sD, V_WD, S_MW, None)}[kind]
            so = S_SO[half]
            if kind == "d":
                def rl():
                    a(f"s_min_u32 s{so}, s{S_WDO}, {WB}" if lane == 23 else f"s_mov_b32 s{so}, s{S_WDO}")
                    if lane < 23: a(f"s_add_u32 s{S_WDO}, s{S_WDO}, s{S_WDS}")
            else:
                def rl(): a.readlane(so, tabv, lane)
            return dict(rl=rl, m0=f"s_add_u32 m0, s{m0}, {ldsoff}", so=so,
                        ins=[(f"buffer_load_dwordx4 v{vb+k}, {srd}, s{so} offen offset:{1024*k} lds", tag) for k in range(4)])
        def dma_group(g):
            o = (g % 4) * 16384
            if g < 10: return [four("w", 0, g, o, ("dma", g)), four("x", 1, g, o, ("dma", g))]
            if g < 20: return [four("x", 0, g, o, ("dma", g)), four("d", 1, g, o, ("wdd", g - 10))]
            if g == 20: return [four("d", 0, 20, 0, ("wdd", 10)), four("d", 1, 21, 16384, ("wdd", 11))]
            return [None, None]
        def issue_now(h, rl=True):
            if rl: h["rl"]()
            a(h["m0"]); a("s_nop 0"); a.pad_sgpr(h["so"])
            for ins, tag in h["ins"]: a.vmi(ins, tag)
        self.tr(a, "srd")
        for h in dma_group(0): issue_now(h, False)
        self.tr(a, "dma0")
        self.srds2(a)
        a(f"""
        s_memrealtime s[4:5]
        s_or_b32 s6, s2, s{S_W}
        v_or_b32 v1, s6, v0
        v_cmp_eq_u32 vcc, 0, v1
        v_mov_b32 v2, {OOBV}
        s_waitcnt lgkmcnt(0)
        s_or_b32 s4, s4, 1
        v_cndmask_b32 v1, v2, v1, vcc
        v_mov_b32 v3, s4
        """)
        a.vmi(f"buffer_store_dword v3, v1, {sG}, 0 offen sc1", "nst")
        a(f"""
        s_mul_i32 s4, s{S_RG}, 27
        s_add_u32 s4, s4, s{S_C}
        s_mul_i32 s4, s4, 640
        s_add_u32 s{S_FB}, s28, s4
        s_addc_u32 s{S_FB+1}, s29, 0
        """)
        if opt.get("pretouch", 1):
            a(f"s_lshl_b32 s5, s{S_W}, 7\ns_add_u32 s4, s4, s5")
            a.vmi(f"buffer_load_dword v{V_DUM}, off, {sF}, s4 sc1", "pt")
        a(f"""
        v_subrev_u32 v1, 10, v0
        v_lshlrev_b32 v1, 2, v1
        v_add_u32 v1, s{S_W}, v1
        v_and_b32 v1, 0xff, v1
        v_mul_u32_u24 v2, 26, v1
        v_lshrrev_b32 v2, 8, v2
        v_mul_u32_u24 v3, 10, v2
        v_sub_u32 v1, v1, v3
        v_add_u32 v2, 4, v2
        v_cmp_gt_u32 vcc, 10, v0
        v_mov_b32 v3, s{S_W}
        s_mov_b32 s4, 40960
        v_cndmask_b32 v1, v1, v0, vcc
        v_cndmask_b32 v2, v2, v3, vcc
        v_add_u32 v1, s{S_K0}, v1
        v_subrev_u32 v3, 10, v1
        v_min_u32 v1, v1, v3
        v_add_u32 v2, s{S_SC}, v2
        v_and_b32 v2, 7, v2
        v_add_u32 v2, s{T1}, v2
        v_mul_lo_u32 v2, v2, s4
        v_lshl_add_u32 v{V_TX}, v1, 7, v2
        s_mov_b32 s4, 221184
        v_mul_lo_u32 v2, v1, s4
        v_add_u32 v{V_TW}, s{T3}, v2
        s_lshr_b32 s4, s{S_W}, 1
        s_lshl_b32 s5, s{S_C}, 1
        s_add_u32 s4, s4, s5
        s_lshl_b32 s4, s4, 7
        s_lshl_b32 s5, s{S_RG}, 4
        s_add_u32 s4, s4, s5
        v_add_u32 v1, s{S_SC}, v0
        v_and_b32 v1, 7, v1
        v_lshl_add_u32 v1, v1, 1, s4
        v_lshlrev_b32 v{V_TH}, 10, v1
        v_lshrrev_b32 v3, 5, v0
        v_bfe_u32 v4, v0, 1, 3
        """)
        if not mf16:
            a(f"""
            v_and_b32 v2, 31, v0
            v_xor_b32 v4, v4, v3
            v_lshlrev_b32 v4, 4, v4
            v_lshl_add_u32 v{V_XR}, v2, 7, v4
            v_xor_b32 v{V_XR+1}, 32, v{V_XR}
            v_xor_b32 v{V_XR+2}, 64, v{V_XR}
            v_xor_b32 v{V_XR+3}, 96, v{V_XR}
            v_bfe_u32 v4, v0, 4, 1
            v_bfe_u32 v5, v0, 2, 2
            v_lshl_add_u32 v6, v3, 3, v5
            v_lshlrev_b32 v6, 7, v6
            v_lshl_add_u32 v6, v4, 13, v6
            """)
        else:
            a(f"""
            v_and_b32 v2, 15, v0
            v_lshrrev_b32 v6, 4, v0
            v_xor_b32 v4, v4, v6
            v_lshlrev_b32 v4, 4, v4
            v_lshl_add_u32 v{V_XR}, v2, 7, v4
            v_xor_b32 v{V_XR+1}, 64, v{V_XR}
            v_bfe_u32 v4, v0, 4, 1
            v_bfe_u32 v5, v0, 2, 2
            v_lshl_add_u32 v6, v6, 3, v5
            v_lshlrev_b32 v6, 7, v6
            """)
        a(f"""
        v_bfe_u32 v7, v0, 3, 2
        v_xor_b32 v7, s{S_W}, v7
        v_lshl_add_u32 v6, v7, 5, v6
        v_and_b32 v7, 3, v0
        v_lshl_add_u32 v6, v7, 3, v6
        v_add_u32 v{V_WR}, 65536, v6
        s_and_b32 s4, s{S_W}, 1
        s_lshl_b32 s4, s4, 1
        v_add_u32 v6, s4, v3
        v_lshlrev_b32 v6, 8, v6
        v_lshl_add_u32 v6, v4, 10, v6
        v_and_b32 v7, 15, v0
        v_lshl_add_u32 v{V_HS}, v7, 4, v6
        s_mul_i32 s4, s{S_J}, 52
        s_lshr_b32 s4, s4, 8
        s_mul_i32 s5, s4, 5
        s_sub_u32 s6, s{S_J}, s5
        s_mov_b32 s{S_TI}, s4
        s_and_b32 s7, s{S_XCD}, 1
        s_mul_i32 s7, s7, 5
        s_add_u32 s{S_N}, s6, s7
        s_lshr_b32 s7, s{S_XCD}, 1
        s_lshl_b32 s7, s7, 5
        s_cmp_ge_u32 s4, 3
        s_cselect_b32 s6, 7, 0
        s_add_u32 s7, s7, s6
        s_add_u32 s{S_RB0}, s5, s7
        s_mul_i32 s{S_REG}, s{S_W}, 20480
        """)
        self.p2_setup(a, True)
        trL, wdM = self.wd_addr_ops(S_MW)
        for x in trL: a(x)
        self.tr(a, "setup")
        for h in dma_group(1): issue_now(h)
        self.tr(a, "dma1")
        a("s_mov_b64 exec, 0")
        a(f"s_cmp_eq_u32 s{S_W}, 0\ns_cbranch_scc1 L_tc1\ns_cmp_eq_u32 s{S_W}, 1\ns_cbranch_scc1 L_tc2")
        a(f"s_lshl_b32 s4, s{S_TI}, 1\ns_add_u32 s4, s4, s{S_W}")
        for t in range(1, 5):
            for k in range(2): a(f"s_cmp_eq_u32 s4, {2*t+2+k}\ns_cbranch_scc1 L_tv{t}_{k}")
        a(f"s_cmp_eq_u32 s{S_W}, 2\ns_cbranch_scc1 L_tv0_0\ns_branch L_tv0_1")
        a.raw("@@SLOW@@")
        a.raw(".p2align 12")
        a("L_base:\ns_mov_b64 exec, -1")

        A0, A4 = 32, 48
        ACC = [A0, 64, 80, 96, A4]
        XF, LA = 112, 7
        def wdf(i):
            if i < 6: return ('a', 160 + 16 * i)
            if i < 11: return ('v', 144 + 16 * (i - 6))
            return ('v', 64 + 16 * (i - 11))
        HB_ = [('v', 224 + 4 * k) for k in range(6)] + [('a', 4 * k) for k in range(9)]
        def hbuf(q): return HB_[q % 15]
        def acc2(rb, nb): return ('a', 40 + (rb * 4 + nb) * 4)
        def minfo(n):
            if n < 160:
                s = n >> 4
                if not mf16: sub = (n >> 2) & 3; b = n & 3
                else: sub = ((n >> 3) & 1) * 2 + (n & 1); b = (n >> 1) & 3
                kk = s; blk = b; acc = ACC[b]; unit = b
            else:
                m = n - 160; u = m >> 2; sub = m & 3
                blk = 4 + u // 10; kk = u % 10; s = 10 + (u >> 2); unit = u & 3
                acc = ACC[4] if blk % 2 == 0 else ACC[0]
            return dict(stage=s, unit=unit, sub=sub, kk=kk, blk=blk, acc=acc, last=(kk == 9 and sub == 3))
        def mfmas(n):
            mi = minfo(n); acc = mi["acc"]; xf = R("v", XF + (n & 7) * 4)
            if not mf16:
                c = "0" if (mi["kk"] == 0 and mi["sub"] == 0) else R("v", acc, 16)
                return [(f"v_mfma_f32_32x32x16_bf16 {R('v',acc,16)}, {R('a',(mi['kk']*4+mi['sub'])*4)}, {xf}, {c}", acc)]
            ks2, h = mi["sub"] >> 1, mi["sub"] & 1
            out = []
            for m in ((1, 0) if (opt.get("snake") and n % 2) else (0, 1)):
                ac = acc + m * 8 + h * 4
                c = "0" if (mi["kk"] == 0 and ks2 == 0) else R("v", ac)
                out.append((f"v_mfma_f32_16x16x32_bf16 {R('v',ac)}, {R('a',(mi['kk']*2+ks2)*8+m*4)}, {xf}, {c}", acc))
            return out
        def xread(nn):
            mi = minfo(nn); o = (mi["stage"] % 4) * 16384 + mi["unit"] * 4096
            if not mf16: v = V_XR + mi["sub"]
            else: v = V_XR + (mi["sub"] >> 1); o += (mi["sub"] & 1) * 2048
            return f"ds_read_b128 {R('v', XF + (nn & 7)*4)}, v{v} offset:{o}"
        def wreads(s):
            o = (s % 4) * 16384; L = []
            for e in range(8):
                if not mf16:
                    ks, rd = e >> 1, e & 1
                    L.append((f"ds_read_b64_tr_b16 {R('a', (s*4+ks)*4+2*rd, 2)}, v{V_WR} offset:{o + ks*2048 + rd*512}", ("w", 16*s + 4*ks)))
                else:
                    ks2, m, rd = e >> 2, (e >> 1) & 1, e & 1
                    L.append((f"ds_read_b64_tr_b16 {R('a', (s*2+ks2)*8+m*4+2*rd, 2)}, v{V_WR} offset:{o + m*8192 + ks2*4096 + rd*512}", ("w", 16*s + 8*ks2)))
            return L
        HZ = 9 if mf16 else 13
        epi = []; sts = []; pubs = []
        LV = self.LV
        lastof = {lv: max(b for b in range(8) if LV[b] == lv) for lv in set(LV)}
        HOLD = {0: 248, 4: 64, 5: 68}
        def epi_ops(blk, acc):
            dst = HOLD[blk] if (blk in HOLD and lastof[LV[blk]] > blk) else acc + 8
            ops = [("r", (S_HS8 + blk, V_TH, blk), acc)]
            if exact:
                for j in range(16): ops.append(("v", f"v_cvt_pk_bf16_f32 v{acc+j}, 0, v{acc+j}", acc))
            for j in range(8): ops.append(("v", f"v_mul_f32 v{acc+j}, v{acc+j}, v{acc+8+j}", acc))
            for d in ((0, 2, 1, 3) if mf16 else range(4)): ops.append(("v", f"v_cvt_pk_bf16_f32 v{dst+d}, v{acc+2*d}, v{acc+2*d+1}", acc))
            if mf16:
                ops.append(("p", f"v_permlane16_swap_b32 v{dst}, v{dst+2}", acc))
                ops.append(("p", f"v_permlane16_swap_b32 v{dst+1}, v{dst+3}", acc))
            ops.append(("s", f"buffer_store_dwordx4 {R('v',dst)}, v{V_HS}, {sH}, s{S_HS8+blk} offen sc1", blk))
            return ops
        lastv = [0]
        def emit_epi(b, o):
            kind, ins, x = o
            if kind == "v": b.after_mfma(x, HZ); b(ins); lastv[0] = b.n
            elif kind == "r": b.readlane(*ins)
            elif kind == "p":
                d = b.n - lastv[0]
                if d < 2: b(f"s_nop {1-d}")
                b(ins)
        def run_epi(n, cap):
            used = 0
            while epi and epi[0][0] <= n and (used < cap or epi[0][1][0] == "s"):
                o = epi.pop(0)[1]
                if o[0] == "s": sts.append(o)
                else: emit_epi(a, o); used += 1
            return used
        def run_sts(n):
            while sts and sts[-1][2] >= lastof[LV[sts[0][2]]]:
                _, ins, x = sts.pop(0)
                if opt.get("nohst"): continue
                a.vmi(ins, ("hst", x))
                if x == lastof[LV[x]]: pubs.append((LV[x], ("hst", x)))
        def pub_ready(): return bool(pubs) and a.vm_covered(pubs[0][1])
        def pub_emit(b, ks, uid):
            b(f"s_cmp_lg_u32 s{S_W}, 0")
            b(f"s_cbranch_scc1 L_pub_{uid}{ks[0]}")
            for k in ks: b(f"s_atomic_swap s{S_NON}, s[{S_FB}:{S_FB+1}], {128*k}")
            b(f"L_pub_{uid}{ks[0]}:")
        def run_pub():
            ks = []
            while pub_ready(): ks.append(pubs.pop(0)[0])
            if ks: pub_emit(a, ks, U if forked[0] else "n")
        trq = []; misc = []
        W12, W13 = opt.get("w12", 6), opt.get("w13", 20)
        WSP = opt.get("wsp", 3)
        plan = self.plan(5 * ti + (7 if ti >= 3 else 0), 5, {11: 9, 12: W12 + 3 * WSP + 17, 13: W13 + 3 * WSP + 17}, opt.get("fb", 12), 12); LAH = opt.get("lah", 10)
        p0 = self.poll_ops(a, plan["checks"][0][1]); PP = opt.get("pp", [270, 280, 290]); nh = (len(p0) + len(PP) - 1) // len(PP)
        forked = [False]
        hq = 0
        dma_group(2)[0]["rl"]()
        CAP = opt.get("cap", 2 if mf16 else 5)
        EPR = opt.get("epr", 1.6) * (2 if exact else 1) / (2 if mf16 else 1); credit = [0.0]
        for n in range(-LA, 320):
            nn = n + LA; s = nn >> 4; gp = nn & 15
            grp = dma_group(s + 2); h = grp[gp >> 3]
            g1 = []; g2 = []
            if nn == PP[0]:
                for t in range(1, 5): a(f"s_cmp_eq_u32 s{S_TI}, {t}\ns_cbranch_scc1 L_var{t}")
                a("s_branch L_var0")
                a.raw("@@FORK@@"); forked[0] = True
            def add(g, cost, fn): g.append((cost, fn))
            if gp == 0:
                def bar(s=s):
                    nonlocal trq
                    assert not trq
                    if s < 20:
                        tags = [("dma", s)] + ([("wdd", s - 10)] if s >= 10 else [])
                        a.need(vm=tags); a("s_barrier"); run_pub(); self.tr(a, f"B{s}")
                        trq = wreads(s) if s < 10 else self.wd_trs(wdf, s - 10, (s % 4) * 16384)
                    else:
                        a.need(vm=("wdd", 10)); trq = self.wd_trs(wdf, 10, 0)
                add(g1, 2, bar)
                if s == 8: misc += wdM
                if s == 2: misc.append(("nonce_ld",))
                if s == 6: misc.append(("nonce_get",))
            if nn < 320: add(g1, 1, lambda nn=nn: a.lgi(xread(nn), ("x", nn)))
            def trpop():
                if trq:
                    ins, tag = trq.pop(0); a.lgi(ins, tag)
            if s < 10 and mf16:
                if gp in (0, 2, 4, 6, 8, 10): add(g2, 1, trpop)
                if gp in (1, 3): add(g1, 1, trpop)
            elif gp % 2 == 0 or nn >= 320: add(g2, 1, trpop)
            if h and gp % 8 == 0: add(g2 if gp == 0 else g1, 1, lambda h=h: a(h["m0"]))
            if gp == 4 and grp[1]: add(g1, 1, grp[1]["rl"])
            if gp == 12 and dma_group(s + 3)[0]: add(g1, 1, dma_group(s + 3)[0]["rl"])
            if h and gp % 2 == 1:
                def dma(h=h, gp=gp):
                    a.pad_sgpr(h["so"]); ins, tag = h["ins"][(gp & 7) >> 1]
                    assert tag[0] != "wdd" or not any(isinstance(x, str) for x in misc)
                    a.vmi(ins, tag)
                add(g2, 2, dma)
            if nn == 303:
                def chk0():
                    for o in self.check_ops(a, plan["checks"][0][1], U + "c0", 1): o()
                g1.insert(0, (3, chk0))
            if nn in PP:
                k = PP.index(nn); misc += [("fn", o) for o in p0[k * nh:(k + 1) * nh]]
            if s >= 19 and hq < LAH and gp % 2 == 1:
                add(g2, 2, lambda q=hq: self.h_load(a, q, plan, hbuf)); hq += 1
            waitnext = (n + 1) % 2 == 0 and 0 <= n + 1 < 320
            def run_gap(g, extra_cost, allow):
                c = extra_cost
                for cost, fn in g: fn(); c += cost
                while misc and c < allow + 1:
                    x = misc.pop(0); c += 1
                    if x == ("nonce_ld",): a.vmi(f"buffer_load_dword v{V_NON}, off, {sG}, 0 sc1", "nonce")
                    elif x == ("nonce_get",): self.nonce_get(a, "n")
                    elif x[0] == "fn": x[1]()
                    else: a(x)
                credit[0] += EPR
                u = run_epi(n, max(int(credit[0]) if c <= allow else 0, allow - c))
                credit[0] = max(0.0, credit[0] - u) if epi and epi[0][0] <= n else 0.0
            ms = mfmas(n) if n >= 0 else []
            if n in (200, 240, 280):
                ac = minfo(n)["acc"]; pb = minfo(n)["blk"] - 2
                assert not any(o[0] != "s" and o[2] == ac for _, o in epi), n
                assert n == 200 or lastof[LV[pb]] > pb or not any(o[2] == pb for o in sts + [o for _, o in epi if o[0] == "s"]), n
            if n >= 0 and n % 2 == 0:
                needs = [("x", n + 1)]
                if any(t == ("w", n) for t in a.lg): needs.append(("w", n))
                a.need(lg=needs)
            if not mf16:
                for ins, k in ms: a.mfma(ins, k)
                if n >= 0 and minfo(n)["last"]:
                    for o in epi_ops(minfo(n)["blk"], minfo(n)["acc"]): epi.append((n + 3, o))
                run_gap(g1 + g2, 1 if waitnext else 0, CAP)
            else:
                if ms: a.mfma(*ms[0])
                run_gap(g1, 0, CAP)
                if ms: a.mfma(*ms[1])
                if n >= 0 and minfo(n)["last"]:
                    for o in epi_ops(minfo(n)["blk"], minfo(n)["acc"]): epi.append((n + 2, o))
                run_gap(g2, 1 if waitnext else 0, CAP)
            run_sts(n)
            if "dbgslow" in opt:
                lo, hi, ev, k = opt["dbgslow"]
                if lo <= n < hi and n % ev == 0: a(f"s_nop {k}")
        while trq:
            ins, tag = trq.pop(0); a.lgi(ins, tag)
        assert hq == LAH, hq
        assert not misc
        if ti == 0:
            a(f"s_cmp_eq_u32 s{S_TI}, 5\ns_cbranch_scc1 L_idle")
            b = SBX(); b.label("L_idle"); b("s_nop 7\ns_nop 7"); b.mfma_w[A0] = -100
            for o in sts: b(o[1])
            for _, o in epi:
                if o[0] == "s": b(o[1])
                else: emit_epi(b, o)
            b("s_waitcnt vmcnt(0)\ns_barrier")
            pub_emit(b, sorted(set([p[0] for p in pubs] + [LV[7]])), "i")
            b("s_branch L_fin")
            self.slow.append("\n".join(b.lines))
        st = dict(tr=[])
        def extra(q, nb):
            n = 320 + (q * 4 + nb) // 2
            if nb in (0, 2, 3): run_epi(n, 2)
            run_sts(n)
            if nb == 0 and pub_ready():
                if pubs[0][0] == LV[7]: a.need(lg=("wd", 11, 3))
                a("s_barrier"); run_pub()
            if opt.get("nohst") and q == 14 and nb == 0:
                a.need(lg=("wd", 11, 3)); a("s_barrier")
            if q == 3 and nb == 3:
                a.need(vm=("wdd", 11)); st["tr"] = self.wd_trs(wdf, 11, 16384)
            for (q0, i, lo) in ((W12, 12, 2), (W13, 13, 3)):
                hh = four("d", 0, 10 + i, lo * 16384, ("wdd", i))
                if q == q0 and nb == 3: hh["rl"](); a(hh["m0"])
                if q0 < q <= q0 + 1 + 3 * WSP and (q - q0 - 1) % WSP == 0 and nb == 2:
                    ins, tag = hh["ins"][(q - q0 - 1) // WSP]; a.vmi(ins, tag)
                if q == q0 + 3 * WSP + 12 and nb == 0:
                    a.need(vm=("wdd", i)); st["tr"] = self.wd_trs(wdf, i, lo * 16384)
            if st["tr"] and nb in (0, 3):
                ins, tag = st["tr"].pop(0); a.lgi(ins, tag)
        self.p2_main(a, 5, U, plan, acc2, hbuf, wdf, extra, 20480, S_REG)
        assert not epi and not pubs and not sts

    def free(self, a):
        a(f"""
        s_sub_u32 s{S_J}, s{S_J}, 27
        s_and_b32 s{T0}, s{S_XCD}, 1
        s_mul_i32 s{T0}, s{T0}, 5
        s_add_u32 s{S_N}, s{T0}, s{S_J}
        s_lshr_b32 s{T0}, s{S_XCD}, 1
        s_lshl_b32 s{S_RB0}, s{T0}, 5
        s_add_u32 s{S_RB0}, s{S_RB0}, 15
        s_lshl_b32 s{S_MW}, s{S_W}, 15
        s_and_b32 s{S_HS8}, s{S_XCD}, 1
        s_lshl_b32 s{S_HS8}, s{S_HS8}, 2
        s_add_u32 s{S_HS8}, s{S_HS8}, s{S_W}
        s_mul_i32 s{S_HS8}, s{S_HS8}, {8*40960}
        s_lshl_b32 s{S_HS8+1}, s{S_J}, 13
        s_add_u32 s{S_HS8}, s{S_HS8}, s{S_HS8+1}
        s_and_b32 s{S_HS8+1}, s{S_XCD}, 6
        """)
        self.srds(a); self.srds2(a)
        if self.opt.get("pfd", 0):
            a(f"""
            s_lshl_b32 s4, s{T0}, 2
            s_add_u32 s4, s4, s{S_W}
            s_mul_i32 s4, s4, {108*1280}
            s_lshl_b32 s5, s{S_N}, 7
            s_add_u32 s4, s4, s5
            v_mul_u32_u24 v1, 1280, v0
            v_cmp_le_u32 vcc, 54, v0
            v_mov_b32 v3, {OOBV}
            s_add_u32 s5, s4, {54*1280}
            v_cndmask_b32 v1, v1, v3, vcc
            buffer_load_dword v{V_DUM}, v1, {sD}, s4 offen
            buffer_load_dword v{V_DUM}, v1, {sD}, s5 offen
            """)
        self.p2_setup(a, False)
        trL, wdM = self.wd_addr_ops(S_MW)
        for x in wdM: a(x)
        def wdf(i): return ('a', 16 * i)
        def hbuf(q): return ('v', 144 + 4 * (q % 18))
        def acc2(rb, nb): return ('v', 32 + (rb * 4 + nb) * 4)
        def wdg(i):
            a(f"s_add_u32 m0, s{S_MW}, {(i%8)*4096}")
            a(f"s_min_u32 s{S_SO[0]}, s{S_WDO}, {WB}")
            a(f"s_add_u32 s{S_WDO}, s{S_WDO}, s{S_WDS}")
            for k in range(4):
                a.vmi(f"buffer_load_dwordx4 v{V_WD+k}, {sD}, s{S_SO[0]} offen offset:{1024*k} lds", ("wdd", i))
        wdg(0); wdg(1)
        for x in trL: a(x)
        wdg(2); wdg(3)
        for i in range(14):
            a.need(vm=("wdd", i))
            for ins, tag in self.wd_trs(wdf, i, (i % 8) * 4096): a.lgi(ins, tag)
            if i >= 3: a.need(lg=("wd", i - 3, 3))
            if i + 4 < 14: wdg(i + 4)
            px = self.opt.get("pfx", [2, 5, 8])
            if px and i in px:
                e = px.index(i)
                a(f"v_lshlrev_b32 v1, 7, v0\ns_add_u32 s6, s{S_HS8+1}, {5+e}\ns_and_b32 s6, s6, 7\ns_mul_i32 s6, s6, 40960\ns_add_u32 s6, s6, s{S_HS8}")
                a.vmi(f"buffer_load_dword v{V_DUM}, v1, {sX}, s6 offen", "pfx")
        if self.st: a("s_memrealtime s[90:91]")
        a.vmi(f"buffer_load_dword v{V_NON}, off, {sG}, 0 sc1", "nonce")
        self.nonce_get(a, "f")
        if self.st: a("s_memrealtime s[92:93]")
        plan = self.plan(15, 7, {}, 8, 12); LAH = self.opt.get("lah", 10)
        for o in self.poll_ops(a, plan["checks"][0][1]): o()
        for o in self.check_ops(a, plan["checks"][0][1], "fc0", self.opt.get("sleepf", 4)): o()
        if self.st: a("s_memrealtime s[94:95]")
        for q in range(LAH): self.h_load(a, q, plan, hbuf)
        self.p2_main(a, 7, "f", plan, acc2, hbuf, wdf, lambda q, nb: None, 32768, S_MW)

    def gen(self):
        a = SBX()
        if self.st: a("s_memrealtime s[96:97]")
        if self.opt.get("dbgsync"):
            a(f"""
            s_memrealtime s[4:5]
            s_waitcnt lgkmcnt(0)
            s_add_u32 s4, s4, 200
            s_or_b32 s4, s4, 1023
            L_syn:
            s_memrealtime s[96:97]
            s_waitcnt lgkmcnt(0)
            s_sub_u32 s6, s96, s4
            s_cmp_lt_i32 s6, 0
            s_cbranch_scc1 L_syn
            """)
        a(f"""
        s_load_dwordx4 s[4:7], s[0:1], 0
        s_load_dwordx4 s[64:67], s[0:1], 16
        s_load_dwordx4 s[24:27], s[0:1], 32
        s_load_dwordx2 s[68:69], s[0:1], 48
        s_cmp_ge_u32 s2, 256
        s_cbranch_scc1 L_end
        v_lshrrev_b32 v1, 6, v0
        v_and_b32 v0, 63, v0
        s_and_b32 s{S_XCD}, s2, 7
        v_readfirstlane_b32 s{S_W}, v1
        s_lshr_b32 s{S_J}, s2, 3
        s_cmp_ge_u32 s{S_J}, 27
        """)
        if self.opt.get("cw", 1):
            a(f"""
            s_cbranch_scc0 L_normal
            s_getpc_b64 s[8:9]
            s_mov_b32 s10, L_code_end-L_normal
            s_mov_b32 s11, 0x00020000
            s_sub_u32 s3, s{S_J}, 27
            s_lshl_b32 s3, s3, 15
            v_lshl_add_u32 v2, v1, 13, s3
            v_lshl_add_u32 v2, v0, 7, v2
            buffer_load_dword v{V_DUM}, v2, s[8:11], 0 offen
            s_branch L_free
            L_normal:
            """)
        else:
            a("s_cbranch_scc1 L_free")
        common = None; variants = []; slow_common = None
        for ti in range(5):
            self.trn = []; ns = len(self.slow)
            n = SBX(); self.tr(n, "start"); self.normal(n, ti); self.tr(n, "ost")
            if self.opt.get("trace"): n.wait_all(); self.tr(n, "end"); self.tr_out(n)
            n("s_branch L_fin" if self.st else "s_endpgm")
            k = n.lines.index("@@FORK@@")
            if common is None: common = n.lines[:k]
            else:
                assert common == n.lines[:k]
                self.slow[ns:] = [x for x in self.slow[ns:] if "L_nslow_n:" not in x]
            own = [x for x in self.slow[ns:] if f"L_slow_n{ti}" in x]
            self.slow[ns:] = [x for x in self.slow[ns:] if x not in own]
            for x in own: n(x)
            variants.append(n.lines[k + 1:])
        f = SBX(); self.free(f)
        e = SBX(); e.label("L_fin"); self.stamps_out(e); e("L_end:\ns_endpgm")
        for x in self.slow: e(x)
        k = common.index("@@SLOW@@"); common[k:k+1] = e.lines
        k = common.index("L_base:")
        a.lines += common[:k] + self.touch(common[k:], ["L_tc1", "L_tc2"], 1)
        for ti, v in enumerate(variants):
            a.lines += [".p2align 12", f"L_var{ti}:"] + self.touch(v, [f"L_tv{ti}_0", f"L_tv{ti}_1"], 0)
        a.label("L_free"); a.lines += f.lines
        a("s_branch L_fin" if self.st else "s_endpgm")
        a.label("L_code_end")
        return a.text()
    def touch(self, L, names, k0):
        import subprocess, re
        ext = set(re.findall(r"\b(L_\w+)", "\n".join(L))) - set(x.strip()[:-1] for x in L if x.strip().endswith(":"))
        src = '.amdgcn_target "amdgcn-amd-amdhsa--gfx950"\n.text\n' + "\n".join(L) + "\n" + "".join(x + ":\n" for x in ext) + "s_endpgm\n"
        open("_t.s", "w").write(src)
        subprocess.run("clang -x assembler -target amdgcn-amd-amdhsa -mcpu=gfx950 -c _t.s -o _t.o", shell=True, check=True)
        d = subprocess.run("llvm-objdump -d --mcpu=gfx950 _t.o", shell=True, capture_output=True, text=True).stdout.split("\n")
        addrs = [int(re.search(r"// ([0-9A-F]+):", l).group(1), 16) for l in d if "// " in l]
        assert addrs[-1] + 4 * len(names) <= 4096 * (k0 + len(names)), ("section too long", addrs[-1])
        out = []; n = 0; k = 0
        for l in L:
            t = l.strip()
            if t and not t.endswith(":") and not t.startswith(";"):
                if k < len(names) and addrs[n] + 4 * k >= 4096 * (k + k0) and (t.startswith("v_mfma") or n == 0):
                    out += [names[k] + ":", "    s_cbranch_execz L_base"]; k += 1
                n += 1
            out.append(l)
        assert k == len(names), k
        return out

def gen(opt):
    g = G(opt)
    body = g.gen()
    body = "; TRACE " + " ".join(g.trn) + "\n" + body
    if "probe2" in opt:
        nm, stat, mult = opt["probe2"]
        LL = [f"kernel=main_kernel grid=(256,1,1) block=(256,1,1) lds=131072", "kernel=pr_kernel grid=(1,1,1) block=(64,1,1) lds=0"]
        t = header(LL) + kernel_begin("main_kernel") + body
        t += kernel_begin("pr_kernel") + gen3.gen_probe2(g.trn.index(nm), stat, mult) + kernel_desc("pr_kernel", vgpr=8, accum=8)
        t += kernel_desc("main_kernel", vgpr=512, accum=256)
        return t
    return header(["grid=(256,1,1) block=(256,1,1) lds=131072"]) + kernel_begin(KNAME) + body + kernel_desc(KNAME, vgpr=512, accum=256)

if __name__ == "__main__":
    import json
    opt = json.loads(sys.argv[2]) if len(sys.argv) > 2 else {}
    open(sys.argv[1], "w").write(gen(opt))
```

```python
import sys
from sb import SB
from asmlib import header, kernel_begin, kernel_desc, KNAME
import gen3

XB, WB, HB, OB = 2621440, 2211840, 54*128*1024, 2621440
FLAG_OFF, FLAG_B = 0x800000, 8*27*640
STAMP_OFF = 0x4000000
OOBV = 0x7ff00000

def R(p, a, n=4): return f"{p}[{a}:{a+n-1}]"
def RR(r, n=4): return R(r[0], r[1], n)
def off(r, k): return (r[0], r[1] + k)
def lines(s): return [x.strip() for x in s.split("\n") if x.strip()]

sX, sW, sH, sD, sO, sF, sG = "s[8:11]", "s[12:15]", "s[16:19]", "s[20:23]", "s[24:27]", "s[28:31]", "s[32:35]"
S_W, S_C, S_RG, S_SC, S_K0 = 36, 37, 38, 39, 40
S_RB0, S_N, S_REG = 41, 42, 43
S_MX, S_MW = 44, 45
S_SO = [46, 47]
S_TI = 48
S_NON, S_TO, S_OSO, S_J, S_XCD, S_OLAST = 50, 52, 53, 54, 55, 56
T0, T1, T2, T3 = 60, 61, 62, 63
S_FB = 64
S_F2, S_F13 = 70, 72
S_PV = 74
S_HS8 = 82
S_HSL = [37, 38, 39, 40, 41, 42, 49, 57, 58, 59, 66, 67, 68, 69]
S_WDO, S_WDS = 54, 55
V_DR, V_XD, V_WD, V_XR, V_WR, V_HS = 4, 8, 12, 16, 20, 21
V_TX, V_TW, V_TH, V_FO, V_F, V_NON, V_HL0, V_HL1 = 22, 23, 24, 25, 26, 29, 30, 31
V_DUM, V_TR = 254, 255
V_WDD, V_DR2 = 232, 236
V_G = [30, 31, 27, 28]
S_SOE = 3

class SBX(SB):
    def __init__(self):
        super().__init__()
        self.rl = {}
        self.vw = {}
    def readlane(self, s, v, lane):
        self(f"v_readlane_b32 s{s}, v{v}, {lane}"); self.rl[s] = self.n
    def vmi(self, s, tag=None):
        if s.rstrip().endswith(" lds") and " m0," in self.lines[-1]: self("s_nop 0")
        super().vmi(s, tag)
    def pad_sgpr(self, s, states=5):
        d = self.n - self.rl.get(s, -100)
        if d < states: self(f"s_nop {states-d-1}")

class G:
    def __init__(self, opt):
        self.opt = opt
        self.st = opt.get("stamps", 0)
        self.slow = []
        self.trn = []
        self.mf16 = opt.get("mf", 32) == 16
        self.LV = opt.get("lv", [0, 0, 0, 0, 1, 1, 2, 3])
        self.uni = opt.get("uni", 0)
    def sc(self, c): return 2 * ((c * 37) >> 8) if self.uni else (c * 19) >> 6
    def tr(self, a, name):
        if not self.opt.get("trace"): return
        i = len(self.trn); p = 90 + 2 * (i % 3)
        if i >= 2: a(f"v_writelane_b32 v{V_TR}, s{90 + 2 * ((i - 2) % 3)}, {i-2}")
        a(f"{'s_memrealtime' if self.opt.get('trace') == 2 else 's_memtime'} s[{p}:{p+1}]")
        self.trn.append(name)
    def tr_out(self, a):
        if not self.opt.get("trace"): return
        n = len(self.trn)
        a("s_waitcnt lgkmcnt(0)")
        for i in (n - 2, n - 1): a(f"v_writelane_b32 v{V_TR}, s{90 + 2 * (i % 3)}, {i}")
        a(f"""
        s_mov_b32 s16, s100
        s_mov_b32 s17, s101
        s_mov_b32 s18, 0x10000000
        s_mov_b32 s19, 0x00020000
        s_lshl_b32 s3, s2, 2
        s_add_u32 s3, s3, s{S_W}
        s_lshl_b32 s3, s3, 8
        s_add_u32 s3, s3, {STAMP_OFF + 0x100000}
        v_lshlrev_b32 v1, 2, v0
        buffer_store_dword v{V_TR}, v1, s[16:19], s3 offen
        """)
    def stamps_out(self, a):
        if not self.st: return
        a(f"""
        {"s_nop 0" if self.st == 4 else "s_waitcnt vmcnt(0)"}
        s_memrealtime s[98:99]
        s_mov_b32 s8, s100
        s_mov_b32 s9, s101
        s_mov_b32 s10, 0x10000000
        s_mov_b32 s11, 0x00020000
        s_lshl_b32 s3, s2, 2
        s_add_u32 s3, s3, s{S_W}
        s_lshl_b32 s3, s3, 6
        s_add_u32 s3, s3, {STAMP_OFF}
        v_mov_b32 v1, s3
        s_waitcnt lgkmcnt(0)
        v_mov_b32 v2, s90
        buffer_store_dword v2, v1, s[8:11], 0 offen offset:40
        v_mov_b32 v2, s92
        buffer_store_dword v2, v1, s[8:11], 0 offen offset:44
        v_mov_b32 v2, s94
        buffer_store_dword v2, v1, s[8:11], 0 offen offset:48
        v_mov_b32 v2, s{S_TO}
        buffer_store_dword v2, v1, s[8:11], 0 offen offset:52
        v_mov_b32 v2, s96
        buffer_store_dword v2, v1, s[8:11], 0 offen offset:56
        v_mov_b32 v2, s98
        buffer_store_dword v2, v1, s[8:11], 0 offen offset:60
        """)
    def p2_setup(self, a, idle):
        a(f"""
        s_and_b32 s4, s{S_XCD}, 6
        s_mul_i32 s4, s4, {27*640}
        s_mov_b32 s7, 27
        s_mov_b32 s{T0}, 4096
        """)
        if idle:
            a(f"""
            s_cmp_eq_u32 s{S_TI}, 5
            s_cselect_b32 s4, 0, s4
            s_cselect_b32 s7, 54, s7
            s_cselect_b32 s{T0}, 32768, s{T0}
            """)
        a(f"""
        s_add_u32 s{S_F13}, s28, s4
        s_addc_u32 s{S_F13+1}, s29, 0
        s_lshr_b32 s5, s{S_W}, 1
        s_mul_i32 s6, s5, 640
        s_add_u32 s{S_F2}, s{S_F13}, s6
        s_addc_u32 s{S_F2+1}, s{S_F13+1}, 0
        v_and_b32 v1, 15, v0
        v_lshl_add_u32 v1, v1, 1, s5
        v_min_u32 v1, 26, v1
        v_lshrrev_b32 v2, 4, v0
        v_mul_u32_u24 v2, s7, v2
        v_add_u32 v1, v1, v2
        v_mul_u32_u24 v1, 640, v1
        v_add_u32 v{V_FO}, s4, v1
        v_lshlrev_b32 v{V_HL0}, 4, v0
        v_add_u32 v{V_HL1}, s{T0}, v{V_HL0}
        v_add_u32 v{V_G[2]}, s{T0}, v{V_HL1}
        v_add_u32 v{V_G[3]}, s{T0}, v{V_G[2]}
        s_lshl_b32 s6, s{S_N}, 7
        s_mul_i32 s{S_OSO}, s{S_RB0}, 20480
        s_add_u32 s{S_OSO}, s{S_OSO}, s6
        s_mul_i32 s4, s{S_W}, 40960
        s_add_u32 s{S_WDO}, s4, s6
        s_mov_b32 s{S_WDS}, 163840
        s_lshl_b32 s4, s{S_W}, 7
        s_add_u32 s4, s4, s{S_RB0}
        s_lshl_b32 s4, s4, 10
        s_mov_b32 s5, 524288
        """)
        if idle:
            a(f"""
            s_cmp_eq_u32 s{S_TI}, 6
            s_cselect_b32 s{S_WDO}, {WB}, s{S_WDO}
            s_cselect_b32 s{S_WDS}, 0, s{S_WDS}
            s_cselect_b32 s4, {HB}, s4
            s_cselect_b32 s5, 0, s5
            """)
        a(f"s_mov_b32 s{S_HSL[0]}, s4")
        for i in range(1, 14): a(f"s_add_u32 s{S_HSL[i]}, s{S_HSL[i-1]}, s5")
        a(f"s_min_u32 s{S_HSL[13]}, s{S_HSL[13]}, {HB}")
    def wd_addr_ops(self, base, V_WD=V_WD):
        D = 8*1280 - 1024
        if not self.mf16:
            L = f"""
            v_lshrrev_b32 v1, 5, v0
            v_lshlrev_b32 v1, 4, v1
            v_bfe_u32 v2, v0, 2, 3
            v_add_u32 v1, v1, v2
            v_lshlrev_b32 v1, 7, v1
            v_lshrrev_b32 v2, 1, v2
            """
            M = f"""
            v_lshrrev_b32 v1, 4, v0
            v_lshlrev_b32 v1, 1, v1
            v_and_b32 v2, 7, v0
            v_xor_b32 v1, v1, v2
            v_lshrrev_b32 v2, 3, v0
            v_mul_u32_u24 v2, 1280, v2
            v_lshl_add_u32 v{V_WD}, v1, 4, v2
            v_add_u32 v{V_WD+1}, {D}, v{V_WD}
            v_add_u32 v{V_WD+2}, {2*D}, v{V_WD}
            v_add_u32 v{V_WD+3}, {3*D}, v{V_WD}
            """
        else:
            L = f"""
            v_lshrrev_b32 v1, 4, v0
            v_bfe_u32 v2, v0, 2, 2
            v_lshl_add_u32 v1, v1, 3, v2
            v_lshlrev_b32 v1, 7, v1
            v_bfe_u32 v2, v0, 3, 2
            """
            M = f"""
            v_bfe_u32 v1, v0, 4, 1
            v_lshlrev_b32 v1, 1, v1
            v_and_b32 v2, 7, v0
            v_xor_b32 v1, v1, v2
            v_lshrrev_b32 v2, 3, v0
            v_mul_u32_u24 v2, 1280, v2
            v_lshl_add_u32 v{V_WD}, v1, 4, v2
            v_xor_b32 v1, 4, v1
            v_lshl_add_u32 v1, v1, 4, v2
            v_add_u32 v{V_WD+1}, {D}, v1
            v_add_u32 v{V_WD+2}, {2*D}, v{V_WD}
            v_add_u32 v{V_WD+3}, {3*D}, v1
            """
        L += f"""
        v_lshlrev_b32 v2, 5, v2
        v_and_b32 v3, 3, v0
        v_lshlrev_b32 v3, 3, v3
        v_add3_u32 v1, v1, v2, v3
        v_add_u32 v{V_DR}, s{base}, v1
        v_xor_b32 v{V_DR+1}, 32, v{V_DR}
        v_xor_b32 v{V_DR+2}, 64, v{V_DR}
        v_xor_b32 v{V_DR+3}, 96, v{V_DR}
        """
        return lines(L), lines(M)
    def wd_trs(self, wdf, i, ldsoff, V_DR=V_DR):
        rs = 512 if self.mf16 else 1024
        return [(f"ds_read_b64_tr_b16 {RR(off(wdf(i), nb*4+2*rd), 2)}, v{V_DR+nb} offset:{ldsoff + rd*rs}", ("wd", i, nb)) for nb in range(4) for rd in range(2)]
    def poll_ops(self, a, fl, gm=27):
        if self.opt.get("nopoll"): return []
        if len(fl) % 2: fl = fl + [fl[-1]]
        L = []
        for k, (g, i, lv) in enumerate(fl):
            b = S_F13 if i == 13 else S_F2
            L.append(f"s_load_dword s{S_PV+k}, s[{b}:{b+1}], {(g*gm + 2*i)*640 + lv*128}")
        return [(lambda x=x: a(x)) for x in L]
    def cmp_ops(self, fl):
        n = (len(fl) + 1) // 2
        L = [f"s_xor_b64 s[{S_PV+2*p}:{S_PV+2*p+1}], s[{S_PV+2*p}:{S_PV+2*p+1}], s[{S_NON}:{S_NON+1}]" for p in range(n)]
        L += [f"s_or_b64 s[{S_PV}:{S_PV+1}], s[{S_PV}:{S_PV+1}], s[{S_PV+2*p}:{S_PV+2*p+1}]" for p in range(1, n)]
        return L
    def check_ops(self, a, fl, uid, sl):
        if self.opt.get("nopoll"): return []
        L = self.cmp_ops(fl)
        ops = [lambda: a.wait_all(vm=False)]
        ops += [(lambda x=x: a(x)) for x in L[:-1]]
        def fin():
            a(L[-1]); a(f"s_cbranch_scc1 L_slow_{uid}"); a(f"L_ok_{uid}:")
        ops.append(fin)
        m = 0
        for g, i, lv in fl: m |= 1 << (16 * g + i)
        assert len(set(lv for g, i, lv in fl)) == 1
        self.slow.append(f"""
        L_slow_{uid}:
        s_mov_b32 s{T2}, {m & 0xffffffff:#x}
        s_mov_b32 s{T3}, {m >> 32:#x}
        s_mov_b64 exec, s[{T2}:{T3}]
        buffer_load_dword v{V_F}, v{V_FO}, {sF}, 0 offen offset:{fl[0][2]*128} sc1
        s_mov_b64 exec, -1
        s_waitcnt vmcnt(0)
        v_cmp_eq_u32 vcc, s{S_NON}, v{V_F}
        s_andn2_b64 s[{T2}:{T3}], s[{T2}:{T3}], vcc
        s_cbranch_scc0 L_ok_{uid}
        s_cmp_eq_u32 s{S_TO}, 0
        s_cbranch_scc1 L_ok_{uid}
        s_sub_u32 s{S_TO}, s{S_TO}, 1
        s_sleep {sl}
        s_branch L_slow_{uid}
        """)
        return ops
    def nonce_get(self, a, uid):
        a.need(vm="nonce")
        a(f"L_nchk_{uid}:")
        a(f"v_readfirstlane_b32 s{S_NON}, v{V_NON}")
        a(f"s_cmp_eq_u32 s{S_NON}, 0")
        a(f"s_cbranch_scc1 L_nslow_{uid}")
        a(f"L_nok_{uid}:")
        a(f"s_mov_b32 s{S_NON+1}, s{S_NON}")
        self.slow.append(f"""
        L_nslow_{uid}:
        s_cmp_eq_u32 s{S_TO}, 0
        s_cbranch_scc1 L_nok_{uid}
        s_sub_u32 s{S_TO}, s{S_TO}, 1
        buffer_load_dword v{V_NON}, off, {sG}, 0 sc1
        s_waitcnt vmcnt(0)
        s_branch L_nchk_{uid}
        """)
    def plan(self, rho0, nblk, avail, first_batch, batch=8, vrot=None, gather=False):
        sc = self.sc
        NL = max(self.LV) + 1
        def cls(i, rb):
            b = ((rho0 + (0 if gather else rb)) >> 1) & 7
            return max(self.LV[(b - sc(2 * i + u)) % 8] for u in (0, 1) if 2 * i + u < 27)
        grp = lambda rb: rb if gather else (rho0 + rb) >> 4
        fr = [(i, rb) for i in range(14) for rb in range(nblk)]
        tail = [f for f in fr if cls(*f) == NL - 1]
        rest = sorted([f for f in fr if f not in tail], key=lambda f: (cls(*f), f[0], f[1]))
        for rb in range(nblk):
            while sum(1 for f in tail if f[1] == rb) < 3:
                c = max([f for f in rest if f[1] == rb], key=lambda f: (avail.get(f[0], 0), cls(*f), f[0]))
                rest.remove(c); tail.append(c)
        CH = self.opt.get("p2ch", 2)
        cnt = {}
        for f in rest: cnt[(grp(f[1]), f[0], cls(*f))] = cnt.get((grp(f[1]), f[0], cls(*f)), 0) + 1
        rest.sort(key=lambda f: (cls(*f), -cnt[(grp(f[1]), f[0], cls(*f))], f[0], f[1]))
        groups = []; npos = 0
        while rest:
            c = next((f for f in rest if avail.get(f[0], 0) <= npos), None)
            assert c is not None
            g = [c]
            for f in rest:
                if len(g) < CH and f not in g and f[1] == c[1] and cls(*f) <= cls(*c) and avail.get(f[0], 0) <= npos: g.append(f)
            for f in g: rest.remove(f)
            groups.append(g); npos += len(g)
        if vrot:
            v, nv = vrot; out = []
            for lv in range(NL):
                L = [g for g in groups if cls(*g[0]) == lv]
                k = (len(L) * v) // nv
                out += L[k:] + L[:k]
            groups = out
        for rb in sorted(range(nblk), key=lambda r: max(cls(*f) for f in tail if f[1] == r)):
            t = sorted([f for f in tail if f[1] == rb], key=lambda f: (cls(*f), f[0]))
            if CH == 1: groups += [[f] for f in t]
            else:
                while t:
                    k = 3 if len(t) == 3 else 2
                    groups.append(t[:k]); t = t[k:]
        order = [f for g in groups for f in g]
        gstart = {}; q = 0
        for g in groups:
            for f in g: assert avail.get(f[0], 0) <= q, (q, f)
            gstart[q] = len(g); q += len(g)
        checks = []; have = {}
        q = 0
        while q < len(order):
            i, rb = order[q]; lv = cls(i, rb)
            if have.get((grp(rb), i), -1) >= lv: q += 1; continue
            mx = first_batch if not checks else batch
            fl = []
            for (i2, r2) in order[q:]:
                k = (grp(r2), i2)
                if cls(i2, r2) == lv and have.get(k, -1) < lv and (k[0], k[1], lv) not in fl:
                    if len(fl) == mx: break
                    fl.append((k[0], k[1], lv))
            for g, i2, l2 in fl: have[(g, i2)] = l2
            checks.append((q, fl))
        return dict(order=order, checks=checks, gstart=gstart, gather=gather, gm=54 if gather else 27)
    def h_load(self, a, q, plan, hbuf):
        i, rb = plan["order"][q]
        v = V_HL0 if rb < 4 else V_HL1
        o = 1024 * (rb % 4)
        if plan["gather"]: v, o = V_G[rb], 0
        a.vmi(f"buffer_load_dwordx4 {RR(hbuf(q))}, v{v}, {sH}, s{S_HSL[i]} offen offset:{o} sc1", ("h", q))
    def p2_main(self, a, nblk, uid, plan, acc, hbuf, wdf, extra, REG, sreg):
        order = plan["order"]
        LAH = self.opt.get("lah", 10); PD = self.opt.get("pd", 9)
        NF = len(order)
        lastq = {}
        for q, (i, rb) in enumerate(order): lastq[rb] = q
        sched = {}
        MING = self.opt.get("ming", 7)
        cks = [(ci, ql, fl) for ci, (ql, fl) in enumerate(plan["checks"]) if ci > 0]
        if plan["gather"]:
            prev = -1
            for ci, ql, fl in cks:
                qc = max(ql - LAH - 1, 0)
                assert ql - LAH - 1 >= 0
                pops = self.poll_ops(a, fl, plan["gm"]); cops = self.check_ops(a, fl, f"{uid}c{ci}", 1)
                qp = min(max(prev + 1, qc - PD), qc)
                for k, o in enumerate(pops): sched.setdefault(min(qp + k // 6, qc), []).append(o)
                sched.setdefault(qc, []).extend(cops)
                prev = qc
            cks = []
        nxt = 10**9; place = {}
        for ci, ql, fl in reversed(cks):
            nc = (len(self.cmp_ops(fl)) + 1 + 2) // 3
            qc = min(ql - LAH - 1, nxt - 1)
            place[ci] = (qc, nc)
            nxt = qc - nc + 1 - MING - (len(fl) + 3) // 4
        prev = -1
        for ci, ql, fl in cks:
            qc, nc = place[ci]
            cops = self.check_ops(a, fl, f"{uid}c{ci}", self.opt.get("sleepn", 1))
            pops = self.poll_ops(a, fl)
            qp = max(prev + 1, qc - nc + 1 - PD)
            assert qp + (len(pops) + 3) // 4 <= qc - nc + 1, (uid, ci, qp, qc)
            for k, o in enumerate(cops): sched.setdefault(qc - nc + 1 + k // 3, []).append(o)
            for k, o in enumerate(pops): sched.setdefault(qp + k // 4, []).append(o)
            prev = qc
            if self.opt.get("verbose"): print(uid, "check", ci, "need@", ql, "poll@", qp, "chk@", qc, fl)
        VW, VR = 16, 8
        addr_ops = lines(f"""
            v_and_b32 v1, 15, v0
            v_lshrrev_b32 v2, 4, v0
            v_and_b32 v3, 7, v0
            v_xor_b32 v2, v2, v3
            v_lshlrev_b32 v2, 4, v2
            v_lshl_add_u32 v1, v1, 8, v2
            v_add_u32 v{VW}, s{sreg}, v1
            v_xor_b32 v{VW+1}, 64, v{VW}
            v_lshrrev_b32 v1, 3, v0
            v_lshlrev_b32 v2, 1, v3
            v_xor_b32 v2, v2, v1
            v_lshlrev_b32 v2, 4, v2
            s_lshl_b32 s{T1}, s{S_W}, 3
            v_add_u32 v1, s{T1}, v1
            v_lshl_add_u32 v{VR}, v1, 8, v2
            v_xor_b32 v{VR+1}, 16, v{VR}
            v_add_u32 v{VR+2}, {2*REG}, v{VR}
            v_add_u32 v{VR+3}, {2*REG}, v{VR+1}
            """)
        if plan["gather"]:
            addr_ops += lines(f"""
            s_lshr_b32 s{T1}, s{S_W}, 1
            s_mul_i32 s{T1}, s{T1}, 496
            v_add_u32 v1, s{T1}, v1
            """)
        addr_ops += lines(f"""
            v_mul_u32_u24 v1, 1280, v1
            v_lshl_add_u32 v18, v3, 4, v1
            """)
        if nblk % 2:
            addr_ops += lines(f"""
            s_lshl_b32 s{T1}, s{S_W}, 2
            v_lshrrev_b32 v1, 4, v0
            v_add_u32 v1, s{T1}, v1
            v_and_b32 v2, 15, v0
            v_and_b32 v3, 7, v1
            v_xor_b32 v3, v3, v2
            v_lshlrev_b32 v3, 4, v3
            v_lshl_add_u32 v12, v1, 8, v3
            v_add_u32 v13, {2*REG}, v12
            v_mul_u32_u24 v1, 1280, v1
            v_lshl_add_u32 v19, v2, 3, v1
            """)
        wq = []; started = set()
        def dsw(r2, n2):
            a.after_mfma(acc(r2, n2), 9)
            a.lgi(f"ds_write_b128 v{VW + (n2 & 1)}, {RR(acc(r2, n2))} offset:{r2*4096 + (n2 >> 1)*128}", "red")
        for q, (i, rb) in enumerate(order):
            if uid[0] != "f" and q % nblk == 0: self.tr(a, f"S{q//nblk}")
            ql = q + LAH
            for nb in range(4):
                if nb == 0 and q in plan["gstart"]:
                    gl = plan["gstart"][q]; gq = q
                    a.need(vm=("h", q + gl - 1), lg=[("wd", order[q + k][0], 3) for k in range(gl)])
                m = (q - gq) * 4 + nb
                q2, nb2 = gq + m % gl, m // gl
                ac = acc(rb, nb2)
                c = RR(ac) if (rb, nb2) in started else "0"
                started.add((rb, nb2))
                a.mfma(f"v_mfma_f32_16x16x32_bf16 {RR(ac)}, {RR(off(wdf(order[q2][0]), nb2*4))}, {RR(hbuf(q2))}, {c}", ac)
                if gq + gl - 1 == lastq[rb] and m % gl == gl - 1:
                    assert not addr_ops
                    wq.append((q * 4 + nb + 5, rb, nb2))
                if nb == 0:
                    cur = list(sched.get(q, []))
                if nb == 1 and ql < NF: self.h_load(a, ql, plan, hbuf)
                if nb != 1:
                    k = {0: (len(cur) + 2) // 3, 2: (len(cur) + 1) // 2, 3: len(cur)}[nb]
                    for o in cur[:k]: o()
                    cur = cur[k:]
                if wq and wq[0][0] <= q * 4 + nb and nb != 1 or (wq and ql >= NF and wq[0][0] <= q * 4 + nb):
                    _, r2, n2 = wq.pop(0); dsw(r2, n2)
                extra(q, nb)
                if addr_ops and q >= min(lastq.values()) - 40 and nb in (0, 2, 3) and q not in sched: a(addr_ops.pop(0))
        if uid[0] != "f": self.tr(a, "p2end")
        while wq:
            _, r2, n2 = wq.pop(0); dsw(r2, n2)
        a.wait_all(vm=False)
        if uid[0] != "f": self.tr(a, "redw")
        a("s_barrier")
        if uid[0] != "f": self.tr(a, "redb")
        TMP = 32
        NQ = (nblk + 1) // 2
        opol = self.opt.get("opol", "nt")
        def rd(qi):
            for pw in range(4):
                if qi == NQ - 1 and nblk % 2:
                    a.lgi(f"ds_read_b128 {R('v', TMP + qi * 32 + pw * 4)}, v{12 + (pw >> 1)} offset:{(pw & 1)*REG + qi*8192}", ("rr", qi, pw)); continue
                for hf in range(2):
                    t = TMP + qi * 32 + pw * 8 + hf * 4
                    a.lgi(f"ds_read_b128 {R('v', t)}, v{VR + hf + 2*(pw >> 1)} offset:{(pw & 1)*REG + qi*8192}", ("rr", qi, pw))
        rd(0); rd(1)
        for qi in range(NQ):
            t = TMP + qi * 32
            W = 4 if (qi == NQ - 1 and nblk % 2) else 8
            a.need(lg=("rr", qi, 1))
            for r in range(0, W, 2): a(f"v_pk_add_f32 {R('v',t+r,2)}, {R('v',t+r,2)}, {R('v',t+W+r,2)}")
            a.need(lg=("rr", qi, 3))
            if qi + 2 < NQ: rd(qi + 2)
            for r in range(0, W, 2): a(f"v_pk_add_f32 {R('v',t+2*W+r,2)}, {R('v',t+2*W+r,2)}, {R('v',t+3*W+r,2)}")
            for r in range(0, W, 2): a(f"v_pk_add_f32 {R('v',t+r,2)}, {R('v',t+r,2)}, {R('v',t+2*W+r,2)}")
            for d in range(W // 2): a(f"v_cvt_pk_bf16_f32 v{t+W+d}, v{t+2*d}, v{t+2*d+1}")
            if W == 8: a.vmi(f"buffer_store_dwordx4 {R('v',t+8)}, v18, {sO}, s{S_OSO} offen {opol}", "ost")
            else: a.vmi(f"buffer_store_dwordx2 {R('v',t+4,2)}, v19, {sO}, s{S_OSO} offen {opol}", "ost")
            if qi < NQ - 1: a(f"s_add_u32 s{S_OSO}, s{S_OSO}, {(1024 if plan['gather'] else 32)*1280}")

    def srds(self, a):
        a(f"""
        s_mov_b32 s10, {XB}
        s_mov_b32 s11, 0x00020000
        s_mov_b32 s14, {WB}
        s_mov_b32 s15, 0x00020000
        s_cmp_ge_u32 s{S_W}, 2
        s_waitcnt lgkmcnt(0)
        s_mov_b32 s8, s4
        s_mov_b32 s9, s5
        s_cselect_b32 s12, s64, s6
        s_cselect_b32 s13, s65, s7
        """)
    def srds2(self, a):
        a(f"""
        s_mov_b32 s16, s68
        s_mov_b32 s17, s69
        s_mov_b32 s18, {HB}
        s_mov_b32 s19, 0x00020000
        s_mov_b32 s20, s66
        s_mov_b32 s21, s67
        s_mov_b32 s22, {WB}
        s_mov_b32 s23, 0x00020000
        s_mov_b32 s32, s26
        s_mov_b32 s33, s27
        s_mov_b32 s34, 256
        s_mov_b32 s35, 0x00020000
        s_mov_b32 s26, {OB}
        s_mov_b32 s27, 0x00020000
        s_add_u32 s28, s68, {FLAG_OFF}
        s_addc_u32 s29, s69, 0
        s_mov_b32 s30, {FLAG_B}
        s_mov_b32 s31, 0x00020000
        s_mov_b32 s{S_TO}, 100000
        """)
        if self.st or self.opt.get("trace"): a("s_mov_b32 s100, s68\ns_mov_b32 s101, s69")

    def normal(self, a, ti):
        opt = self.opt; mf16 = self.mf16; U = f'n{ti}'
        rot = opt.get("rot", 20)
        exact = opt.get("exact", 0)
        a(f"""
        s_lshr_b32 s{T0}, s{S_XCD}, 1
        s_mul_i32 s{T0}, s{T0}, 27
        s_add_u32 s{T0}, s{T0}, s{S_J}
        s_lshr_b32 s{S_C}, s{T0}, 2
        s_and_b32 s{T0}, s{T0}, 3
        s_and_b32 s{S_RG}, s{S_XCD}, 1
        s_lshl_b32 s{S_RG}, s{S_RG}, 2
        s_add_u32 s{S_RG}, s{S_RG}, s{T0}
        s_mul_i32 s{S_SC}, s{S_C}, {37 if self.uni else 19}
        s_lshr_b32 s{S_SC}, s{S_SC}, {8 if self.uni else 6}
        """)
        if self.uni: a(f"s_lshl_b32 s{S_SC}, s{S_SC}, 1")
        GR = 10
        if rot == 20:
            dl = opt.get("delta", 2)
            a(f"""
            s_add_u32 s{S_K0}, s{S_C}, s{T0}
            s_and_b32 s{T0}, s{S_XCD}, 1
            s_mul_i32 s{T0}, s{T0}, {dl}
            s_add_u32 s{S_K0}, s{S_K0}, s{T0}
            s_mul_i32 s{T0}, s{S_K0}, 52
            s_lshr_b32 s{T0}, s{T0}, 8
            s_mul_i32 s{T0}, s{T0}, 5
            s_sub_u32 s{S_K0}, s{S_K0}, s{T0}
            s_lshl_b32 s{S_K0}, s{S_K0}, 1
            """)
        elif rot == 8:
            GR = 8
            a(f"""
            s_add_u32 s{S_K0}, s{S_C}, s{T0}
            s_and_b32 s{S_K0}, s{S_K0}, 3
            s_lshl_b32 s{S_K0}, s{S_K0}, 1
            """)
        elif rot == 1:
            a(f"""
            s_mul_i32 s{T0}, s{T0}, 5
            s_lshr_b32 s{T0}, s{T0}, 1
            s_add_u32 s{S_K0}, s{S_C}, s{T0}
            s_mul_i32 s{T0}, s{S_K0}, 26
            s_lshr_b32 s{T0}, s{T0}, 8
            s_mul_i32 s{T0}, s{T0}, 10
            s_sub_u32 s{S_K0}, s{S_K0}, s{T0}
            """)
        else:
            a(f"s_mov_b32 s{S_K0}, 0")
        DX, DW = 8*1280-1024, 8*3456-1024
        a(f"""
        v_lshrrev_b32 v2, 3, v0
        v_and_b32 v3, 7, v0
        v_lshrrev_b32 v4, 4, v0
        v_xor_b32 v5, v4, v3
        v_mul_u32_u24 v6, 1280, v2
        v_lshl_add_u32 v{V_XD}, v5, 4, v6
        v_xor_b32 v5, 4, v5
        v_lshl_add_u32 v5, v5, 4, v6
        v_add_u32 v{V_XD+1}, {DX}, v5
        v_add_u32 v{V_XD+2}, {2*DX}, v{V_XD}
        v_add_u32 v{V_XD+3}, {3*DX}, v5
        v_and_b32 v5, 1, v4
        v_mul_u32_u24 v6, 3456, v2
        """)
        if not mf16:
            a(f"""
            s_and_b32 s{T0}, s{S_W}, 2
            v_add_u32 v5, s{T0}, v5
            v_lshlrev_b32 v5, 1, v5
            v_xor_b32 v5, v5, v3
            v_lshl_add_u32 v{V_WD}, v5, 4, v6
            v_add_u32 v{V_WD+1}, {DW}, v{V_WD}
            v_add_u32 v{V_WD+2}, {2*DW}, v{V_WD}
            v_add_u32 v{V_WD+3}, {3*DW}, v{V_WD}
            """)
        else:
            a(f"""
            v_lshlrev_b32 v5, 1, v5
            v_xor_b32 v5, v5, v3
            v_lshl_add_u32 v{V_WD}, v5, 4, v6
            v_xor_b32 v5, 4, v5
            v_lshl_add_u32 v5, v5, 4, v6
            v_add_u32 v{V_WD+1}, {DW}, v5
            v_add_u32 v{V_WD+2}, {2*DW}, v{V_WD}
            v_add_u32 v{V_WD+3}, {3*DW}, v5
            """)
        a(f"""
        s_lshl_b32 s{T1}, s{S_RG}, 3
        s_add_u32 s{T0}, s{S_SC}, s{S_W}
        s_and_b32 s{T0}, s{T0}, 7
        s_add_u32 s{T0}, s{T0}, s{T1}
        s_mul_i32 s{T0}, s{T0}, 40960
        s_lshl_b32 s{T2}, s{S_K0}, 7
        s_add_u32 s{S_SO[1]}, s{T0}, s{T2}
        s_and_b32 s{T0}, s{S_W}, 1
        s_mul_i32 s{T0}, s{T0}, 110592
        s_lshl_b32 s{T2}, s{S_C}, 7
        s_add_u32 s{T3}, s{T0}, s{T2}
        s_mul_i32 s{T2}, s{S_K0}, 221184
        s_add_u32 s{S_SO[0]}, s{T3}, s{T2}
        s_lshl_b32 s{S_MX}, s{S_W}, 12
        s_add_u32 s{S_MW}, s{S_MX}, 65536
        """)
        self.srds(a)
        EX = opt.get("ex", 1); NE = opt.get("ne", 2); SKIP = opt.get("skip", [])
        WS = {}; k = NE
        for g in range(10, 22):
            if g not in SKIP: WS[g] = k; k += 1
        assert k == 14, k
        def four(kind, half, lane, ldsoff, tag):
            srd, vb, m0, tabv = {"x": (sX, V_XD, S_MX, V_TX), "w": (sW, V_WD, S_MW, V_TW), "d": (sD, V_WDD, S_MW, None)}[kind]
            so = S_SO[half] if half < 2 else S_SOE
            if kind == "d":
                def rl():
                    a(f"s_min_u32 s{so}, s{S_WDO}, {WB}" if lane == 23 else f"s_mov_b32 s{so}, s{S_WDO}")
                    if lane < 23: a(f"s_add_u32 s{S_WDO}, s{S_WDO}, s{S_WDS}")
            else:
                def rl(): a.readlane(so, tabv, lane)
            return dict(rl=rl, m0=f"s_add_u32 m0, s{m0}, {ldsoff}", so=so,
                        ins=[(f"buffer_load_dwordx4 v{vb+k}, {srd}, s{so} offen offset:{1024*k} lds", tag) for k in range(4)])
        def dma_group(g):
            o = (g % 4) * 16384
            if g < 10: return [four("w", 0, g, o, ("dma", g)), four("x", 1, g, o, ("dma", g))]
            if g < 20: return [four("x", 0, g, o, ("dma", g)), four("d", 1, 10 + WS[g], o, ("wdd", WS[g])) if g in WS else None]
            if g == 20: return [four("d", 0, 10 + WS[20], 0, ("wdd", WS[20])) if 20 in WS else None, four("d", 1, 10 + WS[21], 16384, ("wdd", WS[21])) if 21 in WS else None]
            return [None, None]
        def issue_now(h, rl=True):
            if rl: h["rl"]()
            a(h["m0"]); a("s_nop 0"); a.pad_sgpr(h["so"])
            for ins, tag in h["ins"]: a.vmi(ins, tag)
        self.tr(a, "srd")
        for h in dma_group(0): issue_now(h, False)
        self.tr(a, "dma0")
        self.srds2(a)
        a(f"""
        s_memrealtime s[4:5]
        s_or_b32 s6, s2, s{S_W}
        v_or_b32 v1, s6, v0
        v_cmp_eq_u32 vcc, 0, v1
        v_mov_b32 v2, {OOBV}
        s_waitcnt lgkmcnt(0)
        s_or_b32 s4, s4, 1
        v_cndmask_b32 v1, v2, v1, vcc
        v_mov_b32 v3, s4
        """)
        a.vmi(f"buffer_store_dword v3, v1, {sG}, 0 offen sc1", "nst")
        a(f"""
        s_mul_i32 s4, s{S_RG}, 27
        s_add_u32 s4, s4, s{S_C}
        s_mul_i32 s4, s4, 640
        s_add_u32 s{S_FB}, s28, s4
        s_addc_u32 s{S_FB+1}, s29, 0
        """)
        if opt.get("pretouch", 1):
            a(f"s_lshl_b32 s5, s{S_W}, 7\ns_add_u32 s4, s4, s5")
            a.vmi(f"buffer_load_dword v{V_DUM}, off, {sF}, s4 sc1", "pt")
        a(f"""
        v_subrev_u32 v1, 10, v0
        v_lshlrev_b32 v1, 2, v1
        v_add_u32 v1, s{S_W}, v1
        v_and_b32 v1, 0xff, v1
        v_mul_u32_u24 v2, 26, v1
        v_lshrrev_b32 v2, 8, v2
        v_mul_u32_u24 v3, 10, v2
        v_sub_u32 v1, v1, v3
        v_add_u32 v2, 4, v2
        v_cmp_gt_u32 vcc, 10, v0
        v_mov_b32 v3, s{S_W}
        s_mov_b32 s4, 40960
        v_cndmask_b32 v1, v1, v0, vcc
        v_cndmask_b32 v2, v2, v3, vcc
        v_cmp_gt_u32 vcc, {GR}, v1
        v_add_u32 v4, s{S_K0}, v1
        v_subrev_u32 v3, {GR}, v4
        v_min_u32 v4, v4, v3
        v_cndmask_b32 v1, v1, v4, vcc
        v_add_u32 v2, s{S_SC}, v2
        v_and_b32 v2, 7, v2
        v_add_u32 v2, s{T1}, v2
        v_mul_lo_u32 v2, v2, s4
        v_lshl_add_u32 v{V_TX}, v1, 7, v2
        s_mov_b32 s4, 221184
        v_mul_lo_u32 v2, v1, s4
        v_add_u32 v{V_TW}, s{T3}, v2
        s_lshr_b32 s4, s{S_W}, 1
        s_lshl_b32 s5, s{S_C}, 1
        s_add_u32 s4, s4, s5
        s_lshl_b32 s4, s4, 7
        s_lshl_b32 s5, s{S_RG}, 4
        s_add_u32 s4, s4, s5
        v_add_u32 v1, s{S_SC}, v0
        v_and_b32 v1, 7, v1
        v_lshl_add_u32 v1, v1, 1, s4
        v_lshlrev_b32 v{V_TH}, 10, v1
        v_lshrrev_b32 v3, 5, v0
        v_bfe_u32 v4, v0, 1, 3
        """)
        if not mf16:
            a(f"""
            v_and_b32 v2, 31, v0
            v_xor_b32 v4, v4, v3
            v_lshlrev_b32 v4, 4, v4
            v_lshl_add_u32 v{V_XR}, v2, 7, v4
            v_xor_b32 v{V_XR+1}, 32, v{V_XR}
            v_xor_b32 v{V_XR+2}, 64, v{V_XR}
            v_xor_b32 v{V_XR+3}, 96, v{V_XR}
            v_bfe_u32 v4, v0, 4, 1
            v_bfe_u32 v5, v0, 2, 2
            v_lshl_add_u32 v6, v3, 3, v5
            v_lshlrev_b32 v6, 7, v6
            v_lshl_add_u32 v6, v4, 13, v6
            """)
        else:
            a(f"""
            v_and_b32 v2, 15, v0
            v_lshrrev_b32 v6, 4, v0
            v_xor_b32 v4, v4, v6
            v_lshlrev_b32 v4, 4, v4
            v_lshl_add_u32 v{V_XR}, v2, 7, v4
            v_xor_b32 v{V_XR+1}, 64, v{V_XR}
            v_bfe_u32 v4, v0, 4, 1
            v_bfe_u32 v5, v0, 2, 2
            v_lshl_add_u32 v6, v6, 3, v5
            v_lshlrev_b32 v6, 7, v6
            """)
        a(f"""
        v_bfe_u32 v7, v0, 3, 2
        v_xor_b32 v7, s{S_W}, v7
        v_lshl_add_u32 v6, v7, 5, v6
        v_and_b32 v7, 3, v0
        v_lshl_add_u32 v6, v7, 3, v6
        v_add_u32 v{V_WR}, 65536, v6
        s_and_b32 s4, s{S_W}, 1
        s_lshl_b32 s4, s4, 1
        v_add_u32 v6, s4, v3
        v_lshlrev_b32 v6, 8, v6
        v_lshl_add_u32 v6, v4, 10, v6
        v_and_b32 v7, 15, v0
        v_lshl_add_u32 v{V_HS}, v7, 4, v6
        """)
        if opt.get("roleperm", 1):
            a(f"""
            s_cmp_ge_u32 s{S_XCD}, 2
            s_cselect_b32 s4, 26, 0
            s_cmp_ge_u32 s{S_XCD}, 6
            s_cselect_b32 s4, 25, s4
            s_add_u32 s{S_J}, s{S_J}, s4
            s_cmp_ge_u32 s{S_J}, 27
            s_cselect_b32 s4, 27, 0
            s_sub_u32 s{S_J}, s{S_J}, s4
            """)
        a(f"""
        s_mul_i32 s4, s{S_J}, 52
        s_lshr_b32 s4, s4, 8
        s_mul_i32 s5, s4, 5
        s_sub_u32 s6, s{S_J}, s5
        s_mov_b32 s{S_TI}, s4
        s_and_b32 s7, s{S_XCD}, 1
        s_mul_i32 s7, s7, 5
        s_add_u32 s{S_N}, s6, s7
        s_lshr_b32 s7, s{S_XCD}, 1
        s_lshl_b32 s7, s7, 5
        s_cmp_ge_u32 s4, 3
        s_cselect_b32 s6, 7, 0
        s_add_u32 s7, s7, s6
        s_add_u32 s{S_RB0}, s5, s7
        s_mul_i32 s{S_REG}, s{S_W}, 20480
        s_and_b32 s5, s{S_XCD}, 6
        s_add_u32 s6, s{S_N}, s5
        s_add_u32 s5, s5, s{S_J}
        s_cmp_eq_u32 s4, 5
        s_cselect_b32 s{S_N}, s6, s{S_N}
        s_cselect_b32 s{S_RB0}, 15, s{S_RB0}
        s_cselect_b32 s5, s5, 0
        s_cmp_ge_u32 s5, 30
        s_cselect_b32 s{S_TI}, 6, s{S_TI}
        """)
        self.p2_setup(a, True)
        trL, wdM = self.wd_addr_ops(S_MW, V_WDD)
        for x in trL + wdM: a(x)
        for k in range(4): a(f"v_add_u32 v{V_DR2+k}, 65536, v{V_DR+k}")
        self.tr(a, "setup")
        for h in dma_group(1): issue_now(h)
        self.tr(a, "dma1")
        a("s_mov_b64 exec, 0")
        a(f"s_cmp_eq_u32 s{S_W}, 0\ns_cbranch_scc1 L_tc1\ns_cmp_eq_u32 s{S_W}, 1\ns_cbranch_scc1 L_tc2")
        a(f"s_lshl_b32 s4, s{S_TI}, 1\ns_add_u32 s4, s4, s{S_W}")
        for t in range(1, 6):
            for k in range(2): a(f"s_cmp_eq_u32 s4, {2*t+2+k}\ns_cbranch_scc1 L_tv{t}_{k}")
        a(f"s_cmp_eq_u32 s{S_W}, 2\ns_cbranch_scc1 L_tv0_0\ns_branch L_tv0_1")
        a.raw("@@SLOW@@")
        a.raw(".p2align 12")
        a("L_base:\ns_mov_b64 exec, -1")

        A0, A4 = 32, 48
        ACC = [A0, 64, 80, 96, A4]
        XF, LA = 112, 7
        def wdf(i):
            if i < 6: return ('a', 160 + 16 * i)
            if i < 11: return ('v', 144 + 16 * (i - 6))
            return ('v', 64 + 16 * (i - 11))
        HB_ = [('v', 224 + 4 * k) for k in range(6)] + [('a', 4 * k) for k in range(9)]
        def hbuf(q): return HB_[q % 15]
        def acc2(rb, nb): return ('a', 40 + (rb * 4 + nb) * 4)
        CHB = opt.get('chb', 1)
        def minfo(n):
            if n < 160:
                s = n >> 4
                if not mf16: sub = (n >> 2) & 3; b = n & 3
                else: sub = ((n >> 3) & 1) * 2 + (n & 1); b = (n >> 1) & 3
                kk = s; blk = b; acc = ACC[b]; unit = b
            else:
                m = n - 160
                if mf16 and CHB:
                    s4 = m >> 4; r = m & 15
                    us = [4 * s4 + k for k in range(4)]
                    lst = []
                    for b in sorted(set(u // 10 for u in us)):
                        run = [u for u in us if u // 10 == b]
                        hs = (0, 1) if (s4 % 2 == 0) else (1, 0)
                        lst += [(u, ks2 * 2 + h) for h in hs for u in run for ks2 in (0, 1)]
                    u, sub = lst[r]
                    isl = (r == max(k for k in range(16) if lst[k][0] // 10 == u // 10)) and any(x % 10 == 9 and x // 10 == u // 10 for x in us)
                else:
                    u = m >> 2; sub = m & 3; isl = (u % 10 == 9 and sub == 3)
                blk = 4 + u // 10; kk = u % 10; s = 10 + (u >> 2); unit = u & 3
                acc = ACC[4] if blk % 2 == 0 else ACC[0]
                return dict(stage=s, unit=unit, sub=sub, kk=kk, blk=blk, acc=acc, last=isl)
            return dict(stage=s, unit=unit, sub=sub, kk=kk, blk=blk, acc=acc, last=(kk == 9 and sub == 3))
        def mf1(n, m):
            mi = minfo(n); acc = mi["acc"]; xf = R("v", XF + (n & 7) * 4)
            ks2, h = mi["sub"] >> 1, mi["sub"] & 1
            ac = acc + m * 8 + h * 4
            c = "0" if (mi["kk"] == 0 and ks2 == 0) else R("v", ac)
            return (f"v_mfma_f32_16x16x32_bf16 {R('v',ac)}, {R('a',(mi['kk']*2+ks2)*8+m*4)}, {xf}, {c}", acc)
        def mfmas(n):
            mi = minfo(n); acc = mi["acc"]; xf = R("v", XF + (n & 7) * 4)
            if not mf16:
                c = "0" if (mi["kk"] == 0 and mi["sub"] == 0) else R("v", acc, 16)
                return [(f"v_mfma_f32_32x32x16_bf16 {R('v',acc,16)}, {R('a',(mi['kk']*4+mi['sub'])*4)}, {xf}, {c}", acc)]
            if n >= 160 and CHB:
                n0 = n & ~1; m = ((n & 1) ^ ((n >> 1) & 1))
                return [mf1(n0, m), mf1(n0 + 1, m)]
            return [mf1(n, m) for m in ((1, 0) if (opt.get("snake", 1) and n % 2) else (0, 1))]
        def xread(nn):
            mi = minfo(nn); o = (mi["stage"] % 4) * 16384 + mi["unit"] * 4096
            if not mf16: v = V_XR + mi["sub"]
            else: v = V_XR + (mi["sub"] >> 1); o += (mi["sub"] & 1) * 2048
            return f"ds_read_b128 {R('v', XF + (nn & 7)*4)}, v{v} offset:{o}"
        def wreads(s):
            o = (s % 4) * 16384; L = []
            for e in range(8):
                if not mf16:
                    ks, rd = e >> 1, e & 1
                    L.append((f"ds_read_b64_tr_b16 {R('a', (s*4+ks)*4+2*rd, 2)}, v{V_WR} offset:{o + ks*2048 + rd*512}", ("w", 16*s + 4*ks)))
                else:
                    ks2, m, rd = e >> 2, (e >> 1) & 1, e & 1
                    L.append((f"ds_read_b64_tr_b16 {R('a', (s*2+ks2)*8+m*4+2*rd, 2)}, v{V_WR} offset:{o + m*8192 + ks2*4096 + rd*512}", ("w", 16*s + 8*ks2)))
            return L
        HZ = 9 if mf16 else 13
        epi = []; sts = []; pubs = []
        LV = self.LV
        lastof = {lv: max(b for b in range(8) if LV[b] == lv) for lv in set(LV)}
        EV = opt.get("ev", LV)
        lastev = {e: max(b for b in range(8) if EV[b] == e) for e in set(EV)}
        HOLD = {0: 248, 4: 64, 5: 68}
        def epi_ops(blk, acc):
            dst = HOLD[blk] if (blk in HOLD and lastev[EV[blk]] > blk) else acc + 8
            ops = [("r", (S_HS8 + blk, V_TH, blk), acc)]
            if exact:
                for j in range(16): ops.append(("v", f"v_cvt_pk_bf16_f32 v{acc+j}, 0, v{acc+j}", acc))
            for j in range(8): ops.append(("v", f"v_mul_f32 v{acc+j}, v{acc+j}, v{acc+8+j}", acc))
            for d in ((0, 2, 1, 3) if mf16 else range(4)): ops.append(("v", f"v_cvt_pk_bf16_f32 v{dst+d}, v{acc+2*d}, v{acc+2*d+1}", acc))
            if mf16:
                ops.append(("p", f"v_permlane16_swap_b32 v{dst}, v{dst+2}", acc))
                ops.append(("p", f"v_permlane16_swap_b32 v{dst+1}, v{dst+3}", acc))
            ops.append(("s", f"buffer_store_dwordx4 {R('v',dst)}, v{V_HS}, {sH}, s{S_HS8+blk} offen sc1", blk))
            return ops
        lastv = [0]
        def emit_epi(b, o):
            kind, ins, x = o
            if kind == "v": b.after_mfma(x, HZ); b(ins); lastv[0] = b.n
            elif kind == "r": b.readlane(*ins)
            elif kind == "p":
                d = b.n - lastv[0]
                if d < 2: b(f"s_nop {1-d}")
                b(ins)
        def run_epi(n, cap):
            used = 0
            while epi and epi[0][0] <= n and (used < cap or epi[0][1][0] == "s"):
                o = epi.pop(0)[1]
                if o[0] == "s": sts.append(o)
                else: emit_epi(a, o); used += 1
            return used
        def run_sts(n):
            while sts and sts[-1][2] >= lastev[EV[sts[0][2]]] and n >= opt.get('evn', {}).get(str(EV[sts[0][2]]), 0):
                _, ins, x = sts.pop(0)
                if opt.get("nohst"): continue
                a.vmi(ins, ("hst", x))
                if x == lastof[LV[x]]: pubs.append((LV[x], ("hst", x), n))
        def pub_ready(): return bool(pubs) and a.vm_covered(pubs[0][1])
        def pub_emit(b, ks, uid):
            b(f"s_cmp_lg_u32 s{S_W}, 0")
            b(f"s_cbranch_scc1 L_pub_{uid}{ks[0]}")
            for k in ks: b(f"s_atomic_swap s{S_NON}, s[{S_FB}:{S_FB+1}], {128*k}")
            b(f"L_pub_{uid}{ks[0]}:")
        def run_pub():
            ks = []
            while pub_ready(): ks.append(pubs.pop(0)[0])
            if ks: pub_emit(a, ks, U if forked[0] else "n")
        trq = []; misc = []
        NB = 4 if ti == 5 else 5
        plan = self.plan(15 if ti == 5 else 5 * ti + (7 if ti >= 3 else 0), NB, {WS[21]: 9} if 21 in WS else {}, opt.get("fb", 12), 12, gather=(ti == 5)); LAH = opt.get("lah", 10)
        E0 = opt.get("e0", 0)
        early = [four("d", 2, 10 + i, 65536 + (i % 2) * 16384, ("wdd", i)) for i in range(NE)]
        edone = set()
        trq2 = []
        p0 = self.poll_ops(a, plan["checks"][0][1], plan["gm"]); PP = opt.get("pp", [270, 280, 290]); nh = (len(p0) + len(PP) - 1) // len(PP)
        forked = [False]
        hq = 0
        dma_group(2)[0]["rl"]()
        CAP = opt.get("cap", 2 if mf16 else 5)
        EPR = opt.get("epr", 2.2) * (2 if exact else 1) / (2 if mf16 else 1); credit = [0.0]
        for n in range(-LA, 320):
            nn = n + LA; s = nn >> 4; gp = nn & 15
            grp = dma_group(s + 2); h = grp[gp >> 3]
            g1 = []; g2 = []
            if nn == PP[0]:
                for t in range(1, 6): a(f"s_cmp_eq_u32 s{S_TI}, {t}\ns_cbranch_scc1 L_var{t}")
                a("s_branch L_var0")
                a.raw("@@FORK@@"); forked[0] = True
            def add(g, cost, fn): g.append((cost, fn))
            if gp == 0:
                def bar(s=s):
                    nonlocal trq
                    assert not trq
                    if s < 20:
                        tags = [("dma", s)] + ([("wdd", WS[s])] if s in WS else [])
                        tags += [p[1] for p in pubs if n - p[2] >= opt.get("pubd", 22)]
                        a.need(vm=tags); a("s_barrier"); run_pub(); self.tr(a, f"B{s}")
                        trq = wreads(s) if s < 10 else (self.wd_trs(wdf, WS[s], (s % 4) * 16384) if s in WS else [])
                        if s in WS and WS[s] >= 11:
                            lo = 64 + 16 * (WS[s] - 11)
                            for o in sts + [o for _, o in epi if o[0] == "s"]:
                                r0 = int(o[1].split("v[")[1].split(":")[0]); assert not (lo <= r0 < lo + 16), (s, o)
                        for i in range(NE):
                            if i not in edone and sum(1 for t in a.vm if t == ("wdd", i)) == 4 and a.vm_covered(("wdd", i)):
                                edone.add(i); trq2.extend(self.wd_trs(wdf, i, (i % 2) * 16384, V_DR2))
                    elif 20 in WS:
                        a.need(vm=("wdd", WS[20])); trq = self.wd_trs(wdf, WS[20], 0)
                add(g1, 2, bar)
                if s == 2: misc.append(("nonce_ld",))
                if s == 6: misc.append(("nonce_get",))
            if nn < 320: add(g1, 1, lambda nn=nn: a.lgi(xread(nn), ("x", nn)))
            def trpop():
                if trq:
                    ins, tag = trq.pop(0); a.lgi(ins, tag)
            if s < 10 and mf16:
                if EX == 1:
                    if gp in (0, 2, 4, 6, 10): add(g2, 1, trpop)
                    if gp in (1, 3, 7): add(g1, 1, trpop)
                else:
                    if gp in (0, 3, 6): add(g2, 1, trpop)
                    if gp in (1, 2, 5, 8, 9): add(g1, 1, trpop)
            elif gp % 2 == 0 or nn >= 320: add(g2, 1, trpop)
            es = [e for e in range((s - E0) * EX, (s - E0 + 1) * EX) if 0 <= e < 4 * NE] if s >= E0 else []
            if es:
                seq = [("h", 0, k) for k in range(4)] + [("e", e >> 2, e & 3) for e in es] + [("h", 1, k) for k in range(4)]
                pos = {1: [1, 3, 5, 7, 8, 9, 11, 13, 15], 2: [1, 2, 4, 5, 7, 8, 10, 11, 13, 15], 3: [1, 2, 4, 5, 7, 8, 9, 11, 12, 14, 15]}[len(es)]
            else:
                seq = [("h", hh, k) for hh in range(2) for k in range(4) if grp[hh]]
                pos = [1 + 2 * k + 8 * hh for hh in range(2) for k in range(4) if grp[hh]]
            getf = lambda it: grp[it[1]] if it[0] == "h" else early[it[1]]
            for j, (it, p) in enumerate(zip(seq, pos)):
                f = getf(it)
                newf = j == 0 or seq[j - 1][:2] != it[:2]
                if newf:
                    pm = p - 1 if (j == 0 or pos[j - 1] < p - 1) else p
                    if gp == pm: add(g2 if gp == 0 else g1, 1, lambda f=f: a(f["m0"]))
                    if it[0] == "e" and it[2] == 0 and gp == pm: add(g1, 1, f["rl"])
                if gp == p:
                    def dma(f=f, it=it):
                        a.pad_sgpr(f["so"]); ins, tag = f["ins"][it[2]]
                        if it[0] == "e" and it[2] == 0 and it[1] >= 2:
                            a.need(lg=("wd", it[1] - 2, 3))
                        a.vmi(ins, tag)
                    g2.insert(0, (2, dma))
            if trq2 and gp in ((12, 13, 14, 15) if EX == 1 else (3, 6, 9, 11, 12, 13, 14, 15)):
                def tr2():
                    ins, tag = trq2.pop(0); a.lgi(ins, tag)
                add(g1 if gp in pos else g2, 1, tr2)
            if gp == 4 and grp[1]: add(g1, 1, grp[1]["rl"])
            if gp == 12 and dma_group(s + 3)[0]: add(g1, 1, dma_group(s + 3)[0]["rl"])
            if nn == 303:
                def chk0():
                    for o in self.check_ops(a, plan["checks"][0][1], U + "c0", 1): o()
                g1.insert(0, (3, chk0))
            if nn in PP:
                k = PP.index(nn); misc += [("fn", o) for o in p0[k * nh:(k + 1) * nh]]
            if s >= 19 and hq < LAH and gp % 2 == 1:
                add(g2, 2, lambda q=hq: self.h_load(a, q, plan, hbuf)); hq += 1
            waitnext = (n + 1) % 2 == 0 and 0 <= n + 1 < 320
            def run_gap(g, extra_cost, allow):
                c = extra_cost
                for cost, fn in g: fn(); c += cost
                while misc and c < allow + 1:
                    x = misc.pop(0); c += 1
                    if x == ("nonce_ld",): a.vmi(f"buffer_load_dword v{V_NON}, off, {sG}, 0 sc1", "nonce")
                    elif x == ("nonce_get",): self.nonce_get(a, "n")
                    elif x[0] == "fn": x[1]()
                    else: a(x)
                credit[0] += EPR
                u = run_epi(n, max(int(credit[0]) if c <= allow else 0, allow - c))
                credit[0] = max(0.0, credit[0] - u) if epi and epi[0][0] <= n else 0.0
            ms = mfmas(n) if n >= 0 else []
            if n in (200, 240, 280):
                ac = minfo(n)["acc"]; pb = minfo(n)["blk"] - 2
                assert not any(o[0] != "s" and o[2] == ac for _, o in epi), n
                assert n == 200 or lastev[EV[pb]] > pb or not any(o[2] == pb for o in sts + [o for _, o in epi if o[0] == "s"]), n
            if n >= 0 and n % 2 == 0:
                needs = [("x", n + 1)]
                if any(t == ("w", n) for t in a.lg): needs.append(("w", n))
                a.need(lg=needs)
            if not mf16:
                for ins, k in ms: a.mfma(ins, k)
                if n >= 0 and minfo(n)["last"]:
                    for o in epi_ops(minfo(n)["blk"], minfo(n)["acc"]): epi.append((n + 3, o))
                run_gap(g1 + g2, 1 if waitnext else 0, CAP)
            else:
                if ms: a.mfma(*ms[0])
                run_gap(g1, 0, CAP)
                if ms: a.mfma(*ms[1])
                if n >= 0 and minfo(n)["last"]:
                    for o in epi_ops(minfo(n)["blk"], minfo(n)["acc"]): epi.append((n + 2, o))
                run_gap(g2, 1 if waitnext else 0, CAP)
            run_sts(n)
            if "dbgslow" in opt:
                lo, hi, ev, k = opt["dbgslow"]
                if lo <= n < hi and n % ev == 0: a(f"s_nop {k}")
        while trq:
            ins, tag = trq.pop(0); a.lgi(ins, tag)
        assert hq == LAH, hq
        assert not misc
        if ti == 0:
            a(f"s_cmp_eq_u32 s{S_TI}, 6\ns_cbranch_scc1 L_idle")
            b = SBX(); b.label("L_idle"); b("s_nop 7\ns_nop 7"); b.mfma_w[A0] = -100
            for o in sts: b(o[1])
            for _, o in epi:
                if o[0] == "s": b(o[1])
                else: emit_epi(b, o)
            b("s_waitcnt vmcnt(0)\ns_barrier")
            pub_emit(b, sorted(set([p[0] for p in pubs] + [LV[7]])), "i")
            b("s_branch L_fin")
            self.slow.append("\n".join(b.lines))
        st = dict(tr=[])
        def extra(q, nb):
            n = 320 + (q * 4 + nb) // 2
            if nb in (0, 2, 3): run_epi(n, 2)
            run_sts(n)
            if nb == 0 and pub_ready():
                if pubs[0][0] == LV[7]: a.need(lg=("wd", 13, 3))
                a("s_barrier"); run_pub()
            if opt.get("nohst") and q == 14 and nb == 0:
                a.need(lg=("wd", 13, 3)); a("s_barrier")
            if q == 3 and nb == 3 and 21 in WS:
                a.need(vm=("wdd", 13)); st["tr"] = self.wd_trs(wdf, 13, 16384)
            if st["tr"] and nb in (0, 3):
                ins, tag = st["tr"].pop(0); a.lgi(ins, tag)
        self.p2_main(a, NB, U, plan, acc2, hbuf, wdf, extra, 20480, S_REG)
        assert not epi and not pubs and not sts

    def free(self, a):
        a(f"""
        s_sub_u32 s{S_J}, s{S_J}, 27
        s_and_b32 s{T0}, s{S_XCD}, 1
        s_mul_i32 s{T0}, s{T0}, 5
        s_add_u32 s{S_N}, s{T0}, s{S_J}
        s_lshr_b32 s{T0}, s{S_XCD}, 1
        s_lshl_b32 s{S_RB0}, s{T0}, 5
        s_add_u32 s{S_RB0}, s{S_RB0}, 16
        s_lshl_b32 s{S_MW}, s{S_W}, 15
        s_and_b32 s{S_HS8}, s{S_XCD}, 1
        s_lshl_b32 s{S_HS8}, s{S_HS8}, 2
        s_add_u32 s{S_HS8}, s{S_HS8}, s{S_W}
        s_mul_i32 s{S_HS8}, s{S_HS8}, {8*40960}
        s_lshl_b32 s{S_HS8+1}, s{S_J}, 13
        s_add_u32 s{S_HS8}, s{S_HS8}, s{S_HS8+1}
        s_and_b32 s{S_HS8+1}, s{S_XCD}, 6
        """)
        self.srds(a); self.srds2(a)
        a(f"s_mov_b32 s{S_TI}, s{S_J}\ns_mov_b32 s{S_HS8+2}, s6\ns_mov_b32 s{S_HS8+3}, s7")
        if self.opt.get("pfd", 0):
            a(f"""
            s_lshl_b32 s4, s{T0}, 2
            s_add_u32 s4, s4, s{S_W}
            s_mul_i32 s4, s4, {108*1280}
            s_lshl_b32 s5, s{S_N}, 7
            s_add_u32 s4, s4, s5
            v_mul_u32_u24 v1, 1280, v0
            v_cmp_le_u32 vcc, 54, v0
            v_mov_b32 v3, {OOBV}
            s_add_u32 s5, s4, {54*1280}
            v_cndmask_b32 v1, v1, v3, vcc
            buffer_load_dword v{V_DUM}, v1, {sD}, s4 offen
            buffer_load_dword v{V_DUM}, v1, {sD}, s5 offen
            """)
        self.p2_setup(a, False)
        trL, wdM = self.wd_addr_ops(S_MW)
        for x in wdM: a(x)
        def wdf(i): return ('a', 16 * i)
        def hbuf(q): return ('v', 144 + 4 * (q % 18))
        def acc2(rb, nb): return ('v', 32 + (rb * 4 + nb) * 4)
        def wdg(i):
            a(f"s_add_u32 m0, s{S_MW}, {(i%8)*4096}")
            a(f"s_min_u32 s{S_SO[0]}, s{S_WDO}, {WB}")
            a(f"s_add_u32 s{S_WDO}, s{S_WDO}, s{S_WDS}")
            for k in range(4):
                a.vmi(f"buffer_load_dwordx4 v{V_WD+k}, {sD}, s{S_SO[0]} offen offset:{1024*k} lds", ("wdd", i))
        def pf89():
            if self.opt.get("pf89", 0):
                a(f"""
                s_lshl_b32 s4, s{S_TI}, 2
                s_add_u32 s4, s4, s{S_W}
                s_mul_i32 s5, s{S_HS8+1}, 27
                s_lshr_b32 s5, s5, 3
                s_lshl_b32 s5, s5, 7
                s_mul_i32 s4, s4, {8*3456}
                s_add_u32 s4, s4, s5
                s_add_u32 s4, s4, {512*3456}
                s_min_u32 s4, s4, {WB}
                v_lshrrev_b32 v1, 3, v0
                v_and_b32 v2, 7, v0
                v_mul_u32_u24 v1, 3456, v1
                v_lshl_add_u32 v1, v2, 7, v1
                s_mov_b32 s12, s{S_HS8+2}
                s_mov_b32 s13, s{S_HS8+3}
                buffer_load_dword v{V_DUM}, v1, {sW}, s4 offen
                s_mov_b32 s12, s64
                s_mov_b32 s13, s65
                buffer_load_dword v{V_DUM}, v1, {sW}, s4 offen
                s_add_u32 s5, s{S_HS8+1}, s{S_TI}
                s_and_b32 s5, s5, 7
                s_mul_i32 s5, s5, 40960
                s_lshl_b32 s4, s{S_TI}, 13
                s_sub_u32 s4, s{S_HS8}, s4
                s_add_u32 s4, s4, s5
                v_lshrrev_b32 v1, 1, v0
                v_and_b32 v2, 1, v0
                v_mul_u32_u24 v1, 1280, v1
                v_lshl_add_u32 v1, v2, 7, v1
                buffer_load_dword v{V_DUM}, v1, {sX}, s4 offen offset:1024
                """)
            if self.opt.get("pf89", 0): a.vm += ["pf"] * 3
        PFP = self.opt.get("pfp", 2)
        wdg(0); wdg(1)
        if PFP == 2: pf89()
        for x in trL: a(x)
        wdg(2); wdg(3)
        if PFP == 4: pf89()
        for i in range(14):
            a.need(vm=("wdd", i))
            for ins, tag in self.wd_trs(wdf, i, (i % 8) * 4096): a.lgi(ins, tag)
            if i >= 3: a.need(lg=("wd", i - 3, 3))
            if i + 4 < 14: wdg(i + 4)
            if PFP == i + 5: pf89()
            px = self.opt.get("pfx", [2, 5, 8])
            if px and i in px:
                e = px.index(i)
                a(f"v_lshlrev_b32 v1, 7, v0\ns_add_u32 s6, s{S_HS8+1}, {8-len(px)+e}\ns_and_b32 s6, s6, 7\ns_mul_i32 s6, s6, 40960\ns_add_u32 s6, s6, s{S_HS8}")
                a.vmi(f"buffer_load_dword v{V_DUM}, v1, {sX}, s6 offen", "pfx")
        if self.st: a("s_memrealtime s[90:91]")
        a.vmi(f"buffer_load_dword v{V_NON}, off, {sG}, 0 sc1", "nonce")
        self.nonce_get(a, "f")
        if self.st: a("s_memrealtime s[92:93]")
        import copy
        NV = self.opt.get("fv", 1); LAH = self.opt.get("lah", 10)
        for v in range(1, NV):
            for j in range(5):
                if j % NV == v: a(f"s_cmp_eq_u32 s{S_TI}, {j}\ns_cbranch_scc1 L_fv{v}")
        base = a; outl = []
        for v in range(NV):
            a = copy.deepcopy(base); a.lines = []
            if v: a.label(f"L_fv{v}")
            plan = self.plan(16, 6, {}, 12, 12, (v, NV) if NV > 1 else None)
            for o in self.poll_ops(a, plan["checks"][0][1]): o()
            for o in self.check_ops(a, plan["checks"][0][1], f"f{v}c0", self.opt.get("sleepf", 4)): o()
            if self.st: a("s_memrealtime s[94:95]")
            for q in range(LAH): self.h_load(a, q, plan, hbuf)
            self.p2_main(a, 6, f"f{v}", plan, acc2, hbuf, wdf, lambda q, nb: None, 32768, S_MW)
            a("s_branch L_fin" if self.st else "s_endpgm")
            for x in [x for x in self.slow if f"L_slow_f{v}" in x]: a(x)
            self.slow = [x for x in self.slow if f"L_slow_f{v}" not in x]
            outl += a.lines
        base.lines += outl

    def gen(self):
        a = SBX()
        if self.st: a("s_memrealtime s[96:97]")
        if self.opt.get("dbgsync"):
            a(f"""
            s_memrealtime s[4:5]
            s_waitcnt lgkmcnt(0)
            s_add_u32 s4, s4, 200
            s_or_b32 s4, s4, 1023
            L_syn:
            s_memrealtime s[96:97]
            s_waitcnt lgkmcnt(0)
            s_sub_u32 s6, s96, s4
            s_cmp_lt_i32 s6, 0
            s_cbranch_scc1 L_syn
            """)
        a(f"""
        s_load_dwordx4 s[4:7], s[0:1], 0
        s_load_dwordx4 s[64:67], s[0:1], 16
        s_load_dwordx4 s[24:27], s[0:1], 32
        s_load_dwordx2 s[68:69], s[0:1], 48
        s_cmp_ge_u32 s2, 256
        s_cbranch_scc1 L_end
        v_lshrrev_b32 v1, 6, v0
        v_and_b32 v0, 63, v0
        s_and_b32 s{S_XCD}, s2, 7
        v_readfirstlane_b32 s{S_W}, v1
        s_lshr_b32 s{S_J}, s2, 3
        s_cmp_ge_u32 s{S_J}, 27
        """)
        if self.opt.get("cw", 1):
            a(f"""
            s_cbranch_scc0 L_normal
            s_getpc_b64 s[8:9]
            s_mov_b32 s10, L_code_end-L_normal
            s_mov_b32 s11, 0x00020000
            s_sub_u32 s3, s{S_J}, 27
            s_lshl_b32 s3, s3, 15
            v_lshl_add_u32 v2, v1, 13, s3
            v_lshl_add_u32 v2, v0, 7, v2
            buffer_load_dword v{V_DUM}, v2, s[8:11], 0 offen
            s_branch L_free
            L_normal:
            """)
        else:
            a("s_cbranch_scc1 L_free")
        common = None; variants = []; slow_common = None
        for ti in range(6):
            self.trn = []; ns = len(self.slow)
            n = SBX(); self.tr(n, "start"); self.normal(n, ti); self.tr(n, "ost")
            if self.opt.get("trace"): n.wait_all(); self.tr(n, "end"); self.tr_out(n)
            n("s_branch L_fin" if self.st else "s_endpgm")
            k = n.lines.index("@@FORK@@")
            if common is None: common = n.lines[:k]
            else:
                assert common == n.lines[:k]
                self.slow[ns:] = [x for x in self.slow[ns:] if "L_nslow_n:" not in x]
            own = [x for x in self.slow[ns:] if f"L_slow_n{ti}" in x]
            self.slow[ns:] = [x for x in self.slow[ns:] if x not in own]
            for x in own: n(x)
            variants.append(n.lines[k + 1:])
        f = SBX(); self.free(f)
        e = SBX(); e.label("L_fin"); self.stamps_out(e); e("L_end:\ns_endpgm")
        for x in self.slow: e(x)
        k = common.index("@@SLOW@@"); common[k:k+1] = e.lines
        k = common.index("L_base:")
        a.lines += common[:k] + self.touch(common[k:], ["L_tc1", "L_tc2"], 1)
        for ti, v in enumerate(variants):
            a.lines += [".p2align 12", f"L_var{ti}:"] + self.touch(v, [f"L_tv{ti}_0", f"L_tv{ti}_1"], 0)
        a.label("L_free"); a.lines += f.lines
        a.label("L_code_end")
        return a.text()
    def touch(self, L, names, k0):
        import subprocess, re
        ext = set(re.findall(r"\b(L_\w+)", "\n".join(L))) - set(x.strip()[:-1] for x in L if x.strip().endswith(":"))
        src = '.amdgcn_target "amdgcn-amd-amdhsa--gfx950"\n.text\n' + "\n".join(L) + "\n" + "".join(x + ":\n" for x in ext) + "s_endpgm\n"
        open("_t.s", "w").write(src)
        subprocess.run("clang -x assembler -target amdgcn-amd-amdhsa -mcpu=gfx950 -c _t.s -o _t.o", shell=True, check=True)
        d = subprocess.run("llvm-objdump -d --mcpu=gfx950 _t.o", shell=True, capture_output=True, text=True).stdout.split("\n")
        addrs = [int(re.search(r"// ([0-9A-F]+):", l).group(1), 16) for l in d if "// " in l]
        assert addrs[-1] + 4 * len(names) <= 4096 * (k0 + len(names)), ("section too long", addrs[-1])
        out = []; n = 0; k = 0
        for l in L:
            t = l.strip()
            if t and not t.endswith(":") and not t.startswith(";"):
                if k < len(names) and addrs[n] + 4 * k >= 4096 * (k + k0) and (t.startswith("v_mfma") or n == 0):
                    out += [names[k] + ":", "    s_cbranch_execz L_base"]; k += 1
                n += 1
            out.append(l)
        assert k == len(names), k
        return out

def gen(opt):
    g = G(opt)
    body = g.gen()
    LDS = opt.get("lds", 163840)
    body = "; TRACE " + " ".join(g.trn) + "\n" + body
    if opt.get("tailk"):
        LL = [f"kernel=main_kernel grid=(256,1,1) block=(256,1,1) lds={LDS}", "kernel=tk_kernel grid=(1,1,1) block=(64,1,1) lds=0"]
        t = header(LL) + kernel_begin("main_kernel") + body
        t += kernel_begin("tk_kernel") + f"""
        s_memrealtime s[10:11]
        s_load_dwordx2 s[4:5], s[0:1], 48
        s_mov_b32 s6, 0x10000000
        s_mov_b32 s7, 0x00020000
        s_mov_b32 s8, {STAMP_OFF - 64}
        s_waitcnt lgkmcnt(0)
        v_mov_b32 v1, s10
        buffer_store_dword v1, off, s[4:7], s8
        s_endpgm
        """ + kernel_desc("tk_kernel", vgpr=8, accum=8)
        t += kernel_desc("main_kernel", vgpr=512, accum=256)
        return t
    if "probe2" in opt:
        nm, stat, mult = opt["probe2"]
        LL = [f"kernel=main_kernel grid=(256,1,1) block=(256,1,1) lds={LDS}", "kernel=pr_kernel grid=(1,1,1) block=(64,1,1) lds=0"]
        t = header(LL) + kernel_begin("main_kernel") + body
        t += kernel_begin("pr_kernel") + gen3.gen_probe2(g.trn.index(nm), stat, mult) + kernel_desc("pr_kernel", vgpr=8, accum=8)
        t += kernel_desc("main_kernel", vgpr=512, accum=256)
        return t
    return header([f"grid=(256,1,1) block=(256,1,1) lds={LDS}"]) + kernel_begin(KNAME) + body + kernel_desc(KNAME, vgpr=512, accum=256)

if __name__ == "__main__":
    import json
    opt = dict(mf=16, fv=2, rot=8, pf89=1, pfx=[], uni=1, ev=[0,0,1,1,2,2,3,4])
    opt.update(json.loads(sys.argv[2]) if len(sys.argv) > 2 else {})
    open(sys.argv[1], "w").write(gen(opt))
```

```python
import sys
from sb import SB
from asmlib import header, kernel_begin, kernel_desc, KNAME
import gen3

XB, WB, HB, OB = 2621440, 2211840, 54*128*1024, 2621440
FLAG_OFF, FLAG_B = 0x800000, 8*27*640
STAMP_OFF = 0x4000000
OOBV = 0x7ff00000

def R(p, a, n=4): return f"{p}[{a}:{a+n-1}]"
def RR(r, n=4): return R(r[0], r[1], n)
def off(r, k): return (r[0], r[1] + k)
def lines(s): return [x.strip() for x in s.split("\n") if x.strip()]

sX, sW, sH, sD, sO, sF, sG = "s[8:11]", "s[12:15]", "s[16:19]", "s[20:23]", "s[24:27]", "s[28:31]", "s[32:35]"
S_W, S_C, S_RG, S_SC, S_K0 = 36, 37, 38, 39, 40
S_RB0, S_N, S_REG = 41, 42, 43
S_MX, S_MW = 44, 45
S_SO = [46, 47]
S_TI = 48
S_NON, S_TO, S_OSO, S_J, S_XCD, S_OLAST = 50, 52, 53, 54, 55, 56
T0, T1, T2, T3 = 60, 61, 62, 63
S_FB = 64
S_F2, S_F13 = 70, 72
S_PV = 74
S_HS8 = 82
S_HSL = [37, 38, 39, 40, 41, 42, 49, 57, 58, 59, 66, 67, 68, 69]
S_WDO, S_WDS = 54, 55
V_DR, V_XD, V_WD, V_XR, V_WR, V_HS = 4, 8, 12, 16, 20, 21
V_TX, V_TW, V_TH, V_FO, V_F, V_NON, V_HL0, V_HL1 = 22, 23, 24, 25, 26, 29, 30, 31
V_DUM, V_TR = 254, 255
V_WDD, V_DR2 = 232, 236
V_G = [30, 31, 27, 28]
S_SOE = 3

class SBX(SB):
    def __init__(self):
        super().__init__()
        self.rl = {}
        self.vw = {}
    def readlane(self, s, v, lane):
        self(f"v_readlane_b32 s{s}, v{v}, {lane}"); self.rl[s] = self.n
    def vmi(self, s, tag=None):
        if s.rstrip().endswith(" lds") and " m0," in self.lines[-1]: self("s_nop 0")
        super().vmi(s, tag)
    def pad_sgpr(self, s, states=5):
        d = self.n - self.rl.get(s, -100)
        if d < states: self(f"s_nop {states-d-1}")

class G:
    def __init__(self, opt):
        self.opt = opt
        self.st = opt.get("stamps", 0)
        self.slow = []
        self.trn = []
        self.mf16 = opt.get("mf", 32) == 16
        self.LV = opt.get("lv", [0, 0, 0, 0, 1, 1, 2, 3])
        self.uni = opt.get("uni", 0)
    def sc(self, c): return 2 * ((c * 37) >> 8) if self.uni else (c * 19) >> 6
    def tr(self, a, name):
        if not self.opt.get("trace"): return
        i = len(self.trn); p = 90 + 2 * (i % 3)
        if i >= 2: a(f"v_writelane_b32 v{V_TR}, s{90 + 2 * ((i - 2) % 3)}, {i-2}")
        a(f"{'s_memrealtime' if self.opt.get('trace') == 2 else 's_memtime'} s[{p}:{p+1}]")
        self.trn.append(name)
    def tr_out(self, a):
        if not self.opt.get("trace"): return
        n = len(self.trn)
        a("s_waitcnt lgkmcnt(0)")
        for i in (n - 2, n - 1): a(f"v_writelane_b32 v{V_TR}, s{90 + 2 * (i % 3)}, {i}")
        a(f"""
        s_mov_b32 s16, s100
        s_mov_b32 s17, s101
        s_mov_b32 s18, 0x10000000
        s_mov_b32 s19, 0x00020000
        s_lshl_b32 s3, s2, 2
        s_add_u32 s3, s3, s{S_W}
        s_lshl_b32 s3, s3, 8
        s_add_u32 s3, s3, {STAMP_OFF + 0x100000}
        v_lshlrev_b32 v1, 2, v0
        buffer_store_dword v{V_TR}, v1, s[16:19], s3 offen
        """)
    def stamps_out(self, a):
        if not self.st: return
        a(f"""
        {"s_nop 0" if self.st == 4 else "s_waitcnt vmcnt(0)"}
        s_memrealtime s[98:99]
        s_mov_b32 s8, s100
        s_mov_b32 s9, s101
        s_mov_b32 s10, 0x10000000
        s_mov_b32 s11, 0x00020000
        s_lshl_b32 s3, s2, 2
        s_add_u32 s3, s3, s{S_W}
        s_lshl_b32 s3, s3, 6
        s_add_u32 s3, s3, {STAMP_OFF}
        v_mov_b32 v1, s3
        s_waitcnt lgkmcnt(0)
        v_mov_b32 v2, s{S_OLAST}
        buffer_store_dword v2, v1, s[8:11], 0 offen offset:36
        v_mov_b32 v2, s90
        buffer_store_dword v2, v1, s[8:11], 0 offen offset:40
        v_mov_b32 v2, s92
        buffer_store_dword v2, v1, s[8:11], 0 offen offset:44
        v_mov_b32 v2, s94
        buffer_store_dword v2, v1, s[8:11], 0 offen offset:48
        v_mov_b32 v2, s{S_TO}
        buffer_store_dword v2, v1, s[8:11], 0 offen offset:52
        v_mov_b32 v2, s96
        buffer_store_dword v2, v1, s[8:11], 0 offen offset:56
        v_mov_b32 v2, s98
        buffer_store_dword v2, v1, s[8:11], 0 offen offset:60
        """)
    def p2_setup(self, a, idle):
        a(f"""
        s_and_b32 s4, s{S_XCD}, 6
        s_mul_i32 s4, s4, {27*640}
        s_mov_b32 s7, 27
        s_mov_b32 s{T0}, 4096
        """)
        if idle:
            a(f"""
            s_cmp_eq_u32 s{S_TI}, 5
            s_cselect_b32 s4, 0, s4
            s_cselect_b32 s7, 54, s7
            s_cselect_b32 s{T0}, 32768, s{T0}
            """)
        a(f"""
        s_add_u32 s{S_F13}, s28, s4
        s_addc_u32 s{S_F13+1}, s29, 0
        s_lshr_b32 s5, s{S_W}, 1
        s_mul_i32 s6, s5, 640
        s_add_u32 s{S_F2}, s{S_F13}, s6
        s_addc_u32 s{S_F2+1}, s{S_F13+1}, 0
        v_and_b32 v1, 15, v0
        v_lshl_add_u32 v1, v1, 1, s5
        v_min_u32 v1, 26, v1
        v_lshrrev_b32 v2, 4, v0
        v_mul_u32_u24 v2, s7, v2
        v_add_u32 v1, v1, v2
        v_mul_u32_u24 v1, 640, v1
        v_add_u32 v{V_FO}, s4, v1
        v_lshlrev_b32 v{V_HL0}, 4, v0
        v_add_u32 v{V_HL1}, s{T0}, v{V_HL0}
        v_add_u32 v{V_G[2]}, s{T0}, v{V_HL1}
        v_add_u32 v{V_G[3]}, s{T0}, v{V_G[2]}
        s_lshl_b32 s6, s{S_N}, 7
        s_mul_i32 s{S_OSO}, s{S_RB0}, 20480
        s_add_u32 s{S_OSO}, s{S_OSO}, s6
        s_mul_i32 s4, s{S_W}, 40960
        s_add_u32 s{S_WDO}, s4, s6
        s_mov_b32 s{S_WDS}, 163840
        s_lshl_b32 s4, s{S_W}, 7
        s_add_u32 s4, s4, s{S_RB0}
        s_lshl_b32 s4, s4, 10
        s_mov_b32 s5, 524288
        """)
        if idle:
            a(f"""
            s_cmp_eq_u32 s{S_TI}, 6
            s_cselect_b32 s{S_WDO}, {WB}, s{S_WDO}
            s_cselect_b32 s{S_WDS}, 0, s{S_WDS}
            s_cselect_b32 s4, {HB}, s4
            s_cselect_b32 s5, 0, s5
            """)
        a(f"s_mov_b32 s{S_HSL[0]}, s4")
        for i in range(1, 14): a(f"s_add_u32 s{S_HSL[i]}, s{S_HSL[i-1]}, s5")
        a(f"s_min_u32 s{S_HSL[13]}, s{S_HSL[13]}, {HB}")
    def wd_addr_ops(self, base, V_WD=V_WD):
        D = 8*1280 - 1024
        if not self.mf16:
            L = f"""
            v_lshrrev_b32 v1, 5, v0
            v_lshlrev_b32 v1, 4, v1
            v_bfe_u32 v2, v0, 2, 3
            v_add_u32 v1, v1, v2
            v_lshlrev_b32 v1, 7, v1
            v_lshrrev_b32 v2, 1, v2
            """
            M = f"""
            v_lshrrev_b32 v1, 4, v0
            v_lshlrev_b32 v1, 1, v1
            v_and_b32 v2, 7, v0
            v_xor_b32 v1, v1, v2
            v_lshrrev_b32 v2, 3, v0
            v_mul_u32_u24 v2, 1280, v2
            v_lshl_add_u32 v{V_WD}, v1, 4, v2
            v_add_u32 v{V_WD+1}, {D}, v{V_WD}
            v_add_u32 v{V_WD+2}, {2*D}, v{V_WD}
            v_add_u32 v{V_WD+3}, {3*D}, v{V_WD}
            """
        else:
            L = f"""
            v_lshrrev_b32 v1, 4, v0
            v_bfe_u32 v2, v0, 2, 2
            v_lshl_add_u32 v1, v1, 3, v2
            v_lshlrev_b32 v1, 7, v1
            v_bfe_u32 v2, v0, 3, 2
            """
            M = f"""
            v_bfe_u32 v1, v0, 4, 1
            v_lshlrev_b32 v1, 1, v1
            v_and_b32 v2, 7, v0
            v_xor_b32 v1, v1, v2
            v_lshrrev_b32 v2, 3, v0
            v_mul_u32_u24 v2, 1280, v2
            v_lshl_add_u32 v{V_WD}, v1, 4, v2
            v_xor_b32 v1, 4, v1
            v_lshl_add_u32 v1, v1, 4, v2
            v_add_u32 v{V_WD+1}, {D}, v1
            v_add_u32 v{V_WD+2}, {2*D}, v{V_WD}
            v_add_u32 v{V_WD+3}, {3*D}, v1
            """
        L += f"""
        v_lshlrev_b32 v2, 5, v2
        v_and_b32 v3, 3, v0
        v_lshlrev_b32 v3, 3, v3
        v_add3_u32 v1, v1, v2, v3
        v_add_u32 v{V_DR}, s{base}, v1
        v_xor_b32 v{V_DR+1}, 32, v{V_DR}
        v_xor_b32 v{V_DR+2}, 64, v{V_DR}
        v_xor_b32 v{V_DR+3}, 96, v{V_DR}
        """
        return lines(L), lines(M)
    def wd_trs(self, wdf, i, ldsoff, V_DR=V_DR):
        rs = 512 if self.mf16 else 1024
        return [(f"ds_read_b64_tr_b16 {RR(off(wdf(i), nb*4+2*rd), 2)}, v{V_DR+nb} offset:{ldsoff + rd*rs}", ("wd", i, nb)) for nb in range(4) for rd in range(2)]
    def poll_ops(self, a, fl, gm=27, alt=False):
        if self.opt.get("nopoll"): return []
        if gm != 27:
            m = 0
            for g, i, lv in fl: m |= 1 << (16 * g + i)
            def vp():
                a(f"s_mov_b32 exec_lo, {m & 0xffffffff:#x}\ns_mov_b32 exec_hi, {m >> 32:#x}")
                a.vmi(f"buffer_load_dword v{V_F}, v{V_FO}, {sF}, 0 offen offset:{fl[0][2]*128} sc1", ("vp", m, fl[0][2]))
                a("s_mov_b64 exec, -1")
            return [vp]
        if len(fl) % 2: fl = fl + [fl[-1]]
        L = []
        for k, (g, i, lv) in enumerate(fl):
            b = S_F13 if i == 13 else S_F2
            L.append(f"s_load_dword s{S_PV+k}, s[{b}:{b+1}], {(g*gm + 2*i)*640 + lv*128 + (64 if (alt or gm != 27) and self.opt.get('dual', 1) else 0)}")
        return [(lambda x=x: a(x)) for x in L]
    def cmp_ops(self, fl):
        n = (len(fl) + 1) // 2
        L = [f"s_xor_b64 s[{S_PV+2*p}:{S_PV+2*p+1}], s[{S_PV+2*p}:{S_PV+2*p+1}], s[{S_NON}:{S_NON+1}]" for p in range(n)]
        L += [f"s_or_b64 s[{S_PV}:{S_PV+1}], s[{S_PV}:{S_PV+1}], s[{S_PV+2*p}:{S_PV+2*p+1}]" for p in range(1, n)]
        return L
    def check_ops(self, a, fl, uid, sl, vec=False):
        if self.opt.get("nopoll"): return []
        L = self.cmp_ops(fl)
        ops = [lambda: a.wait_all(vm=False)]
        ops += [(lambda x=x: a(x)) for x in L[:-1]]
        def fin():
            a(L[-1]); a(f"s_cbranch_scc1 L_slow_{uid}"); a(f"L_ok_{uid}:")
        ops.append(fin)
        m = 0
        for g, i, lv in fl: m |= 1 << (16 * g + i)
        assert len(set(lv for g, i, lv in fl)) == 1
        if vec:
            def c1():
                a.need(vm=("vp", m, fl[0][2])); a(f"v_cmp_eq_u32 vcc, s{S_NON}, v{V_F}")
            def c2(): a(f"s_mov_b32 s{T2}, {m & 0xffffffff:#x}\ns_mov_b32 s{T3}, {m >> 32:#x}")
            def c3(): a(f"s_andn2_b64 s[{T2}:{T3}], s[{T2}:{T3}], vcc\ns_cbranch_scc1 L_slow_{uid}\nL_ok_{uid}:")
            ops = [c1, c2, c3]
        self.slow.append(f"""
        L_slow_{uid}:
        {f"s_add_u32 s{S_OLAST}, s{S_OLAST}, {1 << (5 * int(uid[-1]))}" if self.st else ""}
        s_mov_b32 s{T2}, {m & 0xffffffff:#x}
        s_mov_b32 s{T3}, {m >> 32:#x}
        s_mov_b64 exec, s[{T2}:{T3}]
        buffer_load_dword v{V_F}, v{V_FO}, {sF}, 0 offen offset:{fl[0][2]*128} sc1
        s_mov_b64 exec, -1
        s_waitcnt vmcnt(0)
        v_cmp_eq_u32 vcc, s{S_NON}, v{V_F}
        s_andn2_b64 s[{T2}:{T3}], s[{T2}:{T3}], vcc
        s_cbranch_scc0 L_ok_{uid}
        s_cmp_eq_u32 s{S_TO}, 0
        s_cbranch_scc1 L_ok_{uid}
        s_sub_u32 s{S_TO}, s{S_TO}, 1
        s_sleep {sl}
        s_branch L_slow_{uid}
        """)
        return ops
    def nonce_get(self, a, uid):
        a.need(vm="nonce")
        a(f"L_nchk_{uid}:")
        a(f"v_readfirstlane_b32 s{S_NON}, v{V_NON}")
        a(f"s_cmp_eq_u32 s{S_NON}, 0")
        a(f"s_cbranch_scc1 L_nslow_{uid}")
        a(f"L_nok_{uid}:")
        a(f"s_mov_b32 s{S_NON+1}, s{S_NON}")
        self.slow.append(f"""
        L_nslow_{uid}:
        s_cmp_eq_u32 s{S_TO}, 0
        s_cbranch_scc1 L_nok_{uid}
        s_sub_u32 s{S_TO}, s{S_TO}, 1
        buffer_load_dword v{V_NON}, off, {sG}, 0 sc1
        s_waitcnt vmcnt(0)
        s_branch L_nchk_{uid}
        """)
    def plan(self, rho0, nblk, avail, first_batch, batch=8, vrot=None, gather=False):
        sc = self.sc
        NL = max(self.LV) + 1
        def cls(i, rb):
            b = ((rho0 + (0 if gather else rb)) >> 1) & 7
            return max(self.LV[(b - sc(2 * i + u)) % 8] for u in (0, 1) if 2 * i + u < 27)
        grp = lambda rb: rb if gather else (rho0 + rb) >> 4
        fr = [(i, rb) for i in range(14) for rb in range(nblk)]
        tail = [f for f in fr if cls(*f) == NL - 1]
        rest = sorted([f for f in fr if f not in tail], key=lambda f: (cls(*f), f[0], f[1]))
        for rb in range(nblk):
            while sum(1 for f in tail if f[1] == rb) < 3:
                c = max([f for f in rest if f[1] == rb], key=lambda f: (cls(*f), f[0]))
                rest.remove(c); tail.append(c)
        CH = self.opt.get("p2ch", 2)
        cnt = {}
        for f in rest: cnt[(grp(f[1]), f[0], cls(*f))] = cnt.get((grp(f[1]), f[0], cls(*f)), 0) + 1
        rest.sort(key=lambda f: (cls(*f), -cnt[(grp(f[1]), f[0], cls(*f))], f[0], f[1]))
        groups = []; npos = 0
        while rest:
            c = next((f for f in rest if avail.get(f[0], 0) <= npos), None)
            assert c is not None
            g = [c]
            for f in rest:
                if len(g) < CH and f not in g and f[1] == c[1] and cls(*f) <= cls(*c) and avail.get(f[0], 0) <= npos: g.append(f)
            for f in g: rest.remove(f)
            groups.append(g); npos += len(g)
        if vrot:
            v, nv = vrot; out = []
            for lv in range(NL):
                L = [g for g in groups if cls(*g[0]) == lv]
                k = (len(L) * v) // nv
                out += L[k:] + L[:k]
            groups = out
        for rb in sorted(range(nblk), key=lambda r: max(cls(*f) for f in tail if f[1] == r)):
            t = sorted([f for f in tail if f[1] == rb], key=lambda f: (cls(*f), f[0]))
            if CH == 1: groups += [[f] for f in t]
            else:
                while t:
                    k = 3 if len(t) == 3 else 2
                    groups.append(t[:k]); t = t[k:]
        order = [f for g in groups for f in g]
        gstart = {}; q = 0
        for g in groups:
            for f in g: assert avail.get(f[0], 0) <= q, (q, f)
            gstart[q] = len(g); q += len(g)
        checks = []; have = {}
        q = 0
        while q < len(order):
            i, rb = order[q]; lv = cls(i, rb)
            if have.get((grp(rb), i), -1) >= lv: q += 1; continue
            mx = first_batch if not checks else batch
            fl = []
            for (i2, r2) in order[q:]:
                k = (grp(r2), i2)
                if cls(i2, r2) == lv and have.get(k, -1) < lv and (k[0], k[1], lv) not in fl:
                    if len(fl) == mx: break
                    fl.append((k[0], k[1], lv))
            for g, i2, l2 in fl: have[(g, i2)] = l2
            checks.append((q, fl))
        return dict(order=order, checks=checks, gstart=gstart, gather=gather, gm=54 if gather else 27)
    def h_load(self, a, q, plan, hbuf):
        i, rb = plan["order"][q]
        v = V_HL0 if rb < 4 else V_HL1
        o = 1024 * (rb % 4)
        if plan["gather"]: v, o = V_G[rb], 0
        a.vmi(f"buffer_load_dwordx4 {RR(hbuf(q))}, v{v}, {sH}, s{S_HSL[i]} offen offset:{o} sc1", ("h", q))
    def p2_main(self, a, nblk, uid, plan, acc, hbuf, wdf, extra, REG, sreg):
        order = plan["order"]
        LAH = self.opt.get("lah", 10); PD = self.opt.get("pd", 9)
        NF = len(order)
        lastq = {}
        for q, (i, rb) in enumerate(order): lastq[rb] = q
        sched = {}
        MING = self.opt.get("ming", 7)
        cks = [(ci, ql, fl) for ci, (ql, fl) in enumerate(plan["checks"]) if ci > 0]
        if plan["gather"]:
            prev = -1
            for ci, ql, fl in cks:
                qc = max(ql - LAH - 1, 0)
                assert ql - LAH - 1 >= 0
                pops = self.poll_ops(a, fl, plan["gm"]); cops = self.check_ops(a, fl, f"{uid}c{ci}", 1, True)
                qp = min(max(prev + 1, qc - LAH), qc)
                for k, o in enumerate(pops): sched.setdefault(min(qp + k // 6, qc), []).append(o)
                sched.setdefault(qc, []).extend(cops)
                prev = qc
            cks = []
        nxt = 10**9; place = {}
        for ci, ql, fl in reversed(cks):
            nc = (len(self.cmp_ops(fl)) + 1 + 2) // 3
            qc = min(ql - LAH - 1, nxt - 1)
            if uid[0] == "n" and ci == 1: qc = min(qc, self.opt.get("c1", 11) + nc - 1)
            place[ci] = (qc, nc)
            nxt = qc - nc + 1 - MING - (len(fl) + 3) // 4
        prev = -1
        for ci, ql, fl in cks:
            qc, nc = place[ci]
            cops = self.check_ops(a, fl, f"{uid}c{ci}", self.opt.get("sleepn", 1))
            pops = self.poll_ops(a, fl, alt=(uid[0] == 'f'))
            qp = max(prev + 1, qc - nc + 1 - PD)
            assert qp + (len(pops) + 3) // 4 <= qc - nc + 1, (uid, ci, qp, qc)
            for k, o in enumerate(cops): sched.setdefault(qc - nc + 1 + k // 3, []).append(o)
            for k, o in enumerate(pops): sched.setdefault(qp + k // 4, []).append(o)
            prev = qc
            if self.opt.get("verbose"): print(uid, "check", ci, "need@", ql, "poll@", qp, "chk@", qc, fl)
        VW, VR = 16, 8
        addr_ops = lines(f"""
            v_and_b32 v1, 15, v0
            v_lshrrev_b32 v2, 4, v0
            v_and_b32 v3, 7, v0
            v_xor_b32 v2, v2, v3
            v_lshlrev_b32 v2, 4, v2
            v_lshl_add_u32 v1, v1, 8, v2
            v_add_u32 v{VW}, s{sreg}, v1
            v_xor_b32 v{VW+1}, 64, v{VW}
            v_lshrrev_b32 v1, 3, v0
            v_lshlrev_b32 v2, 1, v3
            v_xor_b32 v2, v2, v1
            v_lshlrev_b32 v2, 4, v2
            s_lshl_b32 s{T1}, s{S_W}, 3
            v_add_u32 v1, s{T1}, v1
            v_lshl_add_u32 v{VR}, v1, 8, v2
            v_xor_b32 v{VR+1}, 16, v{VR}
            v_add_u32 v{VR+2}, {2*REG}, v{VR}
            v_add_u32 v{VR+3}, {2*REG}, v{VR+1}
            """)
        if plan["gather"]:
            addr_ops += lines(f"""
            s_lshr_b32 s{T1}, s{S_W}, 1
            s_mul_i32 s{T1}, s{T1}, 496
            v_add_u32 v1, s{T1}, v1
            """)
        addr_ops += lines(f"""
            v_mul_u32_u24 v1, 1280, v1
            v_lshl_add_u32 v18, v3, 4, v1
            """)
        if nblk % 2:
            addr_ops += lines(f"""
            s_lshl_b32 s{T1}, s{S_W}, 2
            v_lshrrev_b32 v1, 4, v0
            v_add_u32 v1, s{T1}, v1
            v_and_b32 v2, 15, v0
            v_and_b32 v3, 7, v1
            v_xor_b32 v3, v3, v2
            v_lshlrev_b32 v3, 4, v3
            v_lshl_add_u32 v12, v1, 8, v3
            v_add_u32 v13, {2*REG}, v12
            v_mul_u32_u24 v1, 1280, v1
            v_lshl_add_u32 v19, v2, 3, v1
            """)
        wq = []; started = set()
        def dsw(r2, n2):
            a.after_mfma(acc(r2, n2), 9)
            a.lgi(f"ds_write_b128 v{VW + (n2 & 1)}, {RR(acc(r2, n2))} offset:{r2*4096 + (n2 >> 1)*128}", "red")
        for q, (i, rb) in enumerate(order):
            if uid[0] != "f" and q % nblk == 0: self.tr(a, f"S{q//nblk}")
            ql = q + LAH
            for nb in range(4):
                if nb == 0 and q in plan["gstart"]:
                    gl = plan["gstart"][q]; gq = q
                    a.need(vm=("h", q + gl - 1), lg=[("wd", order[q + k][0], 3) for k in range(gl)])
                m = (q - gq) * 4 + nb
                q2, nb2 = gq + m % gl, m // gl
                ac = acc(rb, nb2)
                c = RR(ac) if (rb, nb2) in started else "0"
                started.add((rb, nb2))
                a.mfma(f"v_mfma_f32_16x16x32_bf16 {RR(ac)}, {RR(off(wdf(order[q2][0]), nb2*4))}, {RR(hbuf(q2))}, {c}", ac)
                if gq + gl - 1 == lastq[rb] and m % gl == gl - 1:
                    assert not addr_ops
                    wq.append((q * 4 + nb + 5, rb, nb2))
                if nb == 0:
                    cur = list(sched.get(q, []))
                if nb == 1 and ql < NF: self.h_load(a, ql, plan, hbuf)
                if nb != 1:
                    k = {0: (len(cur) + 2) // 3, 2: (len(cur) + 1) // 2, 3: len(cur)}[nb]
                    for o in cur[:k]: o()
                    cur = cur[k:]
                if wq and wq[0][0] <= q * 4 + nb and nb != 1 or (wq and ql >= NF and wq[0][0] <= q * 4 + nb):
                    _, r2, n2 = wq.pop(0); dsw(r2, n2)
                extra(q, nb)
                if addr_ops and q >= min(lastq.values()) - 40 and nb in (0, 2, 3) and q not in sched: a(addr_ops.pop(0))
        if uid[0] != "f": self.tr(a, "p2end")
        while wq:
            _, r2, n2 = wq.pop(0); dsw(r2, n2)
        a.wait_all(vm=False)
        if uid[0] != "f": self.tr(a, "redw")
        a("s_barrier")
        if uid[0] != "f": self.tr(a, "redb")
        TMP = 32
        NQ = (nblk + 1) // 2
        opol = self.opt.get("opol", "nt")
        def rd(qi):
            for pw in range(4):
                if qi == NQ - 1 and nblk % 2:
                    a.lgi(f"ds_read_b128 {R('v', TMP + qi * 32 + pw * 4)}, v{12 + (pw >> 1)} offset:{(pw & 1)*REG + qi*8192}", ("rr", qi, pw)); continue
                for hf in range(2):
                    t = TMP + qi * 32 + pw * 8 + hf * 4
                    a.lgi(f"ds_read_b128 {R('v', t)}, v{VR + hf + 2*(pw >> 1)} offset:{(pw & 1)*REG + qi*8192}", ("rr", qi, pw))
        rd(0); rd(1)
        for qi in range(NQ):
            t = TMP + qi * 32
            W = 4 if (qi == NQ - 1 and nblk % 2) else 8
            a.need(lg=("rr", qi, 1))
            for r in range(0, W, 2): a(f"v_pk_add_f32 {R('v',t+r,2)}, {R('v',t+r,2)}, {R('v',t+W+r,2)}")
            a.need(lg=("rr", qi, 3))
            if qi + 2 < NQ: rd(qi + 2)
            for r in range(0, W, 2): a(f"v_pk_add_f32 {R('v',t+2*W+r,2)}, {R('v',t+2*W+r,2)}, {R('v',t+3*W+r,2)}")
            for r in range(0, W, 2): a(f"v_pk_add_f32 {R('v',t+r,2)}, {R('v',t+r,2)}, {R('v',t+2*W+r,2)}")
            for d in range(W // 2): a(f"v_cvt_pk_bf16_f32 v{t+W+d}, v{t+2*d}, v{t+2*d+1}")
            if W == 8: a.vmi(f"buffer_store_dwordx4 {R('v',t+8)}, v18, {sO}, s{S_OSO} offen {opol}", "ost")
            else: a.vmi(f"buffer_store_dwordx2 {R('v',t+4,2)}, v19, {sO}, s{S_OSO} offen {opol}", "ost")
            if qi < NQ - 1: a(f"s_add_u32 s{S_OSO}, s{S_OSO}, {(1024 if plan['gather'] else 32)*1280}")

    def srds(self, a):
        a(f"""
        s_mov_b32 s10, {XB}
        s_mov_b32 s11, 0x00020000
        s_mov_b32 s14, {WB}
        s_mov_b32 s15, 0x00020000
        s_cmp_ge_u32 s{S_W}, 2
        s_waitcnt lgkmcnt(0)
        s_mov_b32 s8, s4
        s_mov_b32 s9, s5
        s_cselect_b32 s12, s64, s6
        s_cselect_b32 s13, s65, s7
        """)
    def srds2(self, a):
        a(f"""
        s_mov_b32 s16, s68
        s_mov_b32 s17, s69
        s_mov_b32 s18, {HB}
        s_mov_b32 s19, 0x00020000
        s_mov_b32 s20, s66
        s_mov_b32 s21, s67
        s_mov_b32 s22, {WB}
        s_mov_b32 s23, 0x00020000
        s_mov_b32 s32, s26
        s_mov_b32 s33, s27
        s_mov_b32 s34, 256
        s_mov_b32 s35, 0x00020000
        s_mov_b32 s26, {OB}
        s_mov_b32 s27, 0x00020000
        s_add_u32 s28, s68, {FLAG_OFF}
        s_addc_u32 s29, s69, 0
        s_mov_b32 s30, {FLAG_B}
        s_mov_b32 s31, 0x00020000
        s_mov_b32 s{S_TO}, 100000
        """)
        if self.st: a(f"s_mov_b32 s{S_OLAST}, 0")
        if self.st or self.opt.get("trace"): a("s_mov_b32 s100, s68\ns_mov_b32 s101, s69")

    def normal(self, a, ti):
        opt = self.opt; mf16 = self.mf16; U = f'n{ti}'
        rot = opt.get("rot", 20)
        exact = opt.get("exact", 0)
        a(f"""
        s_lshr_b32 s{T0}, s{S_XCD}, 1
        s_mul_i32 s{T0}, s{T0}, 28
        s_add_u32 s{T0}, s{T0}, s{S_J}
        s_mul_i32 s{T1}, s{S_J}, 28
        s_sub_u32 s{T1}, s{T1}, {28*24-27}
        s_cmp_ge_u32 s{T0}, 108
        s_cselect_b32 s{T0}, s{T1}, s{T0}
        s_lshr_b32 s{S_C}, s{T0}, 2
        s_and_b32 s{T0}, s{T0}, 3
        s_and_b32 s{S_RG}, s{S_XCD}, 1
        s_lshl_b32 s{S_RG}, s{S_RG}, 2
        s_add_u32 s{S_RG}, s{S_RG}, s{T0}
        s_mul_i32 s{S_SC}, s{S_C}, {37 if self.uni else 19}
        s_lshr_b32 s{S_SC}, s{S_SC}, {8 if self.uni else 6}
        """)
        if self.uni: a(f"s_lshl_b32 s{S_SC}, s{S_SC}, 1")
        GR = 10
        if rot == 20:
            dl = opt.get("delta", 2)
            a(f"""
            s_add_u32 s{S_K0}, s{S_C}, s{T0}
            s_and_b32 s{T0}, s{S_XCD}, 1
            s_mul_i32 s{T0}, s{T0}, {dl}
            s_add_u32 s{S_K0}, s{S_K0}, s{T0}
            s_mul_i32 s{T0}, s{S_K0}, 52
            s_lshr_b32 s{T0}, s{T0}, 8
            s_mul_i32 s{T0}, s{T0}, 5
            s_sub_u32 s{S_K0}, s{S_K0}, s{T0}
            s_lshl_b32 s{S_K0}, s{S_K0}, 1
            """)
        elif rot == 9:
            GR = 8
            xa, xb, xc = opt.get("xm", [4, 0, 2])
            a(f"""
            s_add_u32 s{T0}, s{S_C}, s{T0}
            s_bitcmp1_b32 s{T0}, 0
            s_cselect_b32 s{S_K0}, {xa}, 0
            """)
            if xb: a(f"s_bitcmp1_b32 s{T0}, 1\ns_cselect_b32 s{T0}, {xb}, 0\ns_or_b32 s{S_K0}, s{S_K0}, s{T0}")
            if xc: a(f"s_lshr_b32 s{T0}, s{S_XCD}, 1\ns_xor_b32 s{T0}, s{T0}, s{S_XCD}\ns_bitcmp1_b32 s{T0}, 0\ns_cselect_b32 s{T0}, {xc}, 0\ns_or_b32 s{S_K0}, s{S_K0}, s{T0}")
        elif rot == 8:
            GR = 8
            a(f"""
            s_add_u32 s{S_K0}, s{S_C}, s{T0}
            s_and_b32 s{S_K0}, s{S_K0}, 3
            s_lshl_b32 s{S_K0}, s{S_K0}, 1
            """)
        elif rot == 1:
            a(f"""
            s_mul_i32 s{T0}, s{T0}, 5
            s_lshr_b32 s{T0}, s{T0}, 1
            s_add_u32 s{S_K0}, s{S_C}, s{T0}
            s_mul_i32 s{T0}, s{S_K0}, 26
            s_lshr_b32 s{T0}, s{T0}, 8
            s_mul_i32 s{T0}, s{T0}, 10
            s_sub_u32 s{S_K0}, s{S_K0}, s{T0}
            """)
        else:
            a(f"s_mov_b32 s{S_K0}, 0")
        DX, DW = 8*1280-1024, 8*3456-1024
        a(f"""
        v_lshrrev_b32 v2, 3, v0
        v_and_b32 v3, 7, v0
        v_lshrrev_b32 v4, 4, v0
        v_xor_b32 v5, v4, v3
        v_mul_u32_u24 v6, 1280, v2
        v_lshl_add_u32 v{V_XD}, v5, 4, v6
        v_xor_b32 v5, 4, v5
        v_lshl_add_u32 v5, v5, 4, v6
        v_add_u32 v{V_XD+1}, {DX}, v5
        v_add_u32 v{V_XD+2}, {2*DX}, v{V_XD}
        v_add_u32 v{V_XD+3}, {3*DX}, v5
        v_and_b32 v5, 1, v4
        v_mul_u32_u24 v6, 3456, v2
        """)
        if not mf16:
            a(f"""
            s_and_b32 s{T0}, s{S_W}, 2
            v_add_u32 v5, s{T0}, v5
            v_lshlrev_b32 v5, 1, v5
            v_xor_b32 v5, v5, v3
            v_lshl_add_u32 v{V_WD}, v5, 4, v6
            v_add_u32 v{V_WD+1}, {DW}, v{V_WD}
            v_add_u32 v{V_WD+2}, {2*DW}, v{V_WD}
            v_add_u32 v{V_WD+3}, {3*DW}, v{V_WD}
            """)
        else:
            a(f"""
            v_lshlrev_b32 v5, 1, v5
            v_xor_b32 v5, v5, v3
            v_lshl_add_u32 v{V_WD}, v5, 4, v6
            v_xor_b32 v5, 4, v5
            v_lshl_add_u32 v5, v5, 4, v6
            v_add_u32 v{V_WD+1}, {DW}, v5
            v_add_u32 v{V_WD+2}, {2*DW}, v{V_WD}
            v_add_u32 v{V_WD+3}, {3*DW}, v5
            """)
        a(f"""
        s_lshl_b32 s{T1}, s{S_RG}, 3
        s_add_u32 s{T0}, s{S_SC}, s{S_W}
        s_and_b32 s{T0}, s{T0}, 7
        s_add_u32 s{T0}, s{T0}, s{T1}
        s_mul_i32 s{T0}, s{T0}, 40960
        s_lshl_b32 s{T2}, s{S_K0}, 7
        s_add_u32 s{S_SO[1]}, s{T0}, s{T2}
        s_and_b32 s{T0}, s{S_W}, 1
        s_mul_i32 s{T0}, s{T0}, 110592
        s_lshl_b32 s{T2}, s{S_C}, 7
        s_add_u32 s{T3}, s{T0}, s{T2}
        s_mul_i32 s{T2}, s{S_K0}, 221184
        s_add_u32 s{S_SO[0]}, s{T3}, s{T2}
        s_lshl_b32 s{S_MX}, s{S_W}, 12
        s_add_u32 s{S_MW}, s{S_MX}, 65536
        """)
        self.srds(a)
        EX = opt.get("ex", 1); NE = opt.get("ne", 2); SKIP = opt.get("skip", [])
        WS = {}; k = NE
        for g in range(10, 22):
            if g not in SKIP: WS[g] = k; k += 1
        assert k == 14, k
        def four(kind, half, lane, ldsoff, tag):
            srd, vb, m0, tabv = {"x": (sX, V_XD, S_MX, V_TX), "w": (sW, V_WD, S_MW, V_TW), "d": (sD, V_WDD, S_MW, None)}[kind]
            so = S_SO[half] if half < 2 else S_SOE
            if kind == "d":
                def rl():
                    a(f"s_min_u32 s{so}, s{S_WDO}, {WB}" if lane == 23 else f"s_mov_b32 s{so}, s{S_WDO}")
                    if lane < 23: a(f"s_add_u32 s{S_WDO}, s{S_WDO}, s{S_WDS}")
            else:
                def rl(): a.readlane(so, tabv, lane)
            return dict(rl=rl, m0=f"s_add_u32 m0, s{m0}, {ldsoff}", so=so,
                        ins=[(f"buffer_load_dwordx4 v{vb+k}, {srd}, s{so} offen offset:{1024*k} lds", tag) for k in range(4)])
        def dma_group(g):
            o = (g % 4) * 16384
            if g < 10: return [four("w", 0, g, o, ("dma", g)), four("x", 1, g, o, ("dma", g))]
            if g < 20: return [four("x", 0, g, o, ("dma", g)), four("d", 1, 10 + WS[g], o, ("wdd", WS[g])) if g in WS else None]
            if g == 20: return [four("d", 0, 10 + WS[20], 0, ("wdd", WS[20])) if 20 in WS else None, four("d", 1, 10 + WS[21], 16384, ("wdd", WS[21])) if 21 in WS else None]
            return [None, None]
        def issue_now(h, rl=True):
            if rl: h["rl"]()
            a(h["m0"]); a("s_nop 0"); a.pad_sgpr(h["so"])
            for ins, tag in h["ins"]: a.vmi(ins, tag)
        self.tr(a, "srd")
        for h in dma_group(0): issue_now(h, False)
        self.tr(a, "dma0")
        self.srds2(a)
        a(f"""
        s_memrealtime s[4:5]
        s_or_b32 s6, s2, s{S_W}
        v_or_b32 v1, s6, v0
        v_cmp_eq_u32 vcc, 0, v1
        v_mov_b32 v2, {OOBV}
        s_waitcnt lgkmcnt(0)
        s_or_b32 s4, s4, 1
        v_cndmask_b32 v1, v2, v1, vcc
        v_mov_b32 v3, s4
        """)
        a.vmi(f"buffer_store_dword v3, v1, {sG}, 0 offen sc1", "nst")
        a(f"""
        s_mul_i32 s4, s{S_RG}, 27
        s_add_u32 s4, s4, s{S_C}
        s_mul_i32 s4, s4, 640
        s_lshl_b32 s5, s{S_W}, 6
        s_add_u32 s5, s5, s4
        s_add_u32 s{S_FB}, s28, s5
        s_addc_u32 s{S_FB+1}, s29, 0
        """)
        if opt.get("pretouch", 1):
            a(f"s_lshl_b32 s5, s{S_W}, 7\ns_add_u32 s4, s4, s5")
            a.vmi(f"buffer_load_dword v{V_DUM}, off, {sF}, s4 sc1", "pt")
        a(f"""
        v_subrev_u32 v1, 10, v0
        v_lshlrev_b32 v1, 2, v1
        v_add_u32 v1, s{S_W}, v1
        v_and_b32 v1, 0xff, v1
        v_mul_u32_u24 v2, 26, v1
        v_lshrrev_b32 v2, 8, v2
        v_mul_u32_u24 v3, 10, v2
        v_sub_u32 v1, v1, v3
        v_add_u32 v2, 4, v2
        v_cmp_gt_u32 vcc, 10, v0
        v_mov_b32 v3, s{S_W}
        s_mov_b32 s4, 40960
        v_cndmask_b32 v1, v1, v0, vcc
        v_cndmask_b32 v2, v2, v3, vcc
        v_cmp_gt_u32 vcc, {GR}, v1
        v_add_u32 v4, s{S_K0}, v1
        v_subrev_u32 v3, {GR}, v4
        {f"v_xor_b32 v4, s{S_K0}, v1" if rot == 9 else "v_min_u32 v4, v4, v3"}
        v_cndmask_b32 v1, v1, v4, vcc
        v_add_u32 v2, s{S_SC}, v2
        v_and_b32 v2, 7, v2
        v_add_u32 v2, s{T1}, v2
        v_mul_lo_u32 v2, v2, s4
        v_lshl_add_u32 v{V_TX}, v1, 7, v2
        s_mov_b32 s4, 221184
        v_mul_lo_u32 v2, v1, s4
        v_add_u32 v{V_TW}, s{T3}, v2
        s_lshr_b32 s4, s{S_W}, 1
        s_lshl_b32 s5, s{S_C}, 1
        s_add_u32 s4, s4, s5
        s_lshl_b32 s4, s4, 7
        s_lshl_b32 s5, s{S_RG}, 4
        s_add_u32 s4, s4, s5
        v_add_u32 v1, s{S_SC}, v0
        v_and_b32 v1, 7, v1
        v_lshl_add_u32 v1, v1, 1, s4
        v_lshlrev_b32 v{V_TH}, 10, v1
        v_lshrrev_b32 v3, 5, v0
        v_bfe_u32 v4, v0, 1, 3
        """)
        if not mf16:
            a(f"""
            v_and_b32 v2, 31, v0
            v_xor_b32 v4, v4, v3
            v_lshlrev_b32 v4, 4, v4
            v_lshl_add_u32 v{V_XR}, v2, 7, v4
            v_xor_b32 v{V_XR+1}, 32, v{V_XR}
            v_xor_b32 v{V_XR+2}, 64, v{V_XR}
            v_xor_b32 v{V_XR+3}, 96, v{V_XR}
            v_bfe_u32 v4, v0, 4, 1
            v_bfe_u32 v5, v0, 2, 2
            v_lshl_add_u32 v6, v3, 3, v5
            v_lshlrev_b32 v6, 7, v6
            v_lshl_add_u32 v6, v4, 13, v6
            """)
        else:
            a(f"""
            v_and_b32 v2, 15, v0
            v_lshrrev_b32 v6, 4, v0
            v_xor_b32 v4, v4, v6
            v_lshlrev_b32 v4, 4, v4
            v_lshl_add_u32 v{V_XR}, v2, 7, v4
            v_xor_b32 v{V_XR+1}, 64, v{V_XR}
            v_bfe_u32 v4, v0, 4, 1
            v_bfe_u32 v5, v0, 2, 2
            v_lshl_add_u32 v6, v6, 3, v5
            v_lshlrev_b32 v6, 7, v6
            """)
        a(f"""
        v_bfe_u32 v7, v0, 3, 2
        v_xor_b32 v7, s{S_W}, v7
        v_lshl_add_u32 v6, v7, 5, v6
        v_and_b32 v7, 3, v0
        v_lshl_add_u32 v6, v7, 3, v6
        v_add_u32 v{V_WR}, 65536, v6
        s_and_b32 s4, s{S_W}, 1
        s_lshl_b32 s4, s4, 1
        v_add_u32 v6, s4, v3
        v_lshlrev_b32 v6, 8, v6
        v_lshl_add_u32 v6, v4, 10, v6
        v_and_b32 v7, 15, v0
        v_lshl_add_u32 v{V_HS}, v7, 4, v6
        """)
        a(f"""
        s_and_b32 s5, s{S_XCD}, 6
        s_lshl_b32 s7, s5, 5
        s_add_u32 s7, s7, s{S_J}
        s_or_b32 s6, s{S_XCD}, 6
        s_cmp_eq_u32 s7, 25
        s_cselect_b32 s{S_J}, 0, s{S_J}
        s_cmp_eq_u32 s7, 0
        s_cselect_b32 s{S_XCD}, s6, s{S_XCD}
        s_cselect_b32 s{S_J}, 24, s{S_J}
        s_mov_b32 s{T0}, s7
        s_mul_i32 s4, s{S_J}, 52
        s_lshr_b32 s4, s4, 8
        s_mul_i32 s5, s4, 5
        s_sub_u32 s6, s{S_J}, s5
        s_and_b32 s7, s{S_XCD}, 1
        s_mul_i32 s7, s7, 5
        s_add_u32 s{S_N}, s6, s7
        s_lshr_b32 s7, s{S_XCD}, 1
        s_lshl_b32 s7, s7, 5
        s_cmp_ge_u32 s4, 3
        s_cselect_b32 s6, 7, 1
        s_add_u32 s7, s7, s6
        s_add_u32 s{S_RB0}, s5, s7
        s_mul_i32 s{S_REG}, s{S_W}, 20480
        s_and_b32 s5, s{S_XCD}, 6
        s_add_u32 s6, s{S_N}, s5
        s_sub_u32 s6, s6, 1
        s_cmp_eq_u32 s4, 5
        s_cselect_b32 s{S_N}, s6, s{S_N}
        s_cselect_b32 s{S_RB0}, 0, s{S_RB0}
        s_cmp_ge_u32 s{T0}, {6*32+24}
        s_cselect_b32 s{S_TI}, 6, s4
        """)
        self.p2_setup(a, True)
        trL, wdM = self.wd_addr_ops(S_MW, V_WDD)
        for x in trL + wdM: a(x)
        for k in range(4): a(f"v_add_u32 v{V_DR2+k}, 65536, v{V_DR+k}")
        if opt.get("tlbw"):
            g = opt["tlbw"]
            a(f"v_lshlrev_b32 v1, {g}, v0")
            a.vmi(f"buffer_load_dword v{V_DUM}, v1, {sH}, 0 offen sc1", "tw")
            a.vmi(f"buffer_load_dword v{V_DUM}, off, {sO}, s{S_OSO} sc1", "tw")
        self.tr(a, "setup")
        for h in dma_group(1): issue_now(h)
        self.tr(a, "dma1")
        a("s_mov_b64 exec, 0")
        a(f"s_cmp_eq_u32 s{S_W}, 0\ns_cbranch_scc1 L_tc1\ns_cmp_eq_u32 s{S_W}, 1\ns_cbranch_scc1 L_tc2")
        a(f"s_lshl_b32 s4, s{S_TI}, 1\ns_add_u32 s4, s4, s{S_W}")
        for t in range(1, 6):
            for k in range(2): a(f"s_cmp_eq_u32 s4, {2*t+2+k}\ns_cbranch_scc1 L_tv{t}_{k}")
        a(f"s_cmp_eq_u32 s{S_W}, 2\ns_cbranch_scc1 L_tv0_0\ns_branch L_tv0_1")
        a.raw("@@SLOW@@")
        a.raw(".p2align 12")
        a("L_base:\ns_mov_b64 exec, -1")

        A0, A4 = 32, 48
        ACC = [A0, 64, 80, 96, A4]
        XF, LA = 112, 7
        def wdf(i):
            if i < 6: return ('a', 160 + 16 * i)
            if i < 11: return ('v', 144 + 16 * (i - 6))
            return ('v', 64 + 16 * (i - 11))
        HB_ = [('v', 224 + 4 * k) for k in range(6)] + [('a', 4 * k) for k in range(9)]
        def hbuf(q): return HB_[q % 15]
        def acc2(rb, nb): return ('a', 40 + (rb * 4 + nb) * 4)
        CHB = opt.get('chb', 1)
        def minfo(n):
            if n < 160:
                s = n >> 4
                if not mf16: sub = (n >> 2) & 3; b = n & 3
                else: sub = ((n >> 3) & 1) * 2 + (n & 1); b = (n >> 1) & 3
                kk = s; blk = b; acc = ACC[b]; unit = b
            else:
                m = n - 160
                if mf16 and CHB:
                    s4 = m >> 4; r = m & 15
                    us = [4 * s4 + k for k in range(4)]
                    lst = []
                    for b in sorted(set(u // 10 for u in us)):
                        run = [u for u in us if u // 10 == b]
                        hs = (0, 1) if (s4 % 2 == 0) else (1, 0)
                        lst += [(u, ks2 * 2 + h) for h in hs for u in run for ks2 in (0, 1)]
                    u, sub = lst[r]
                    isl = (r == max(k for k in range(16) if lst[k][0] // 10 == u // 10)) and any(x % 10 == 9 and x // 10 == u // 10 for x in us)
                else:
                    u = m >> 2; sub = m & 3; isl = (u % 10 == 9 and sub == 3)
                blk = 4 + u // 10; kk = u % 10; s = 10 + (u >> 2); unit = u & 3
                acc = ACC[4] if blk % 2 == 0 else ACC[0]
                return dict(stage=s, unit=unit, sub=sub, kk=kk, blk=blk, acc=acc, last=isl)
            return dict(stage=s, unit=unit, sub=sub, kk=kk, blk=blk, acc=acc, last=(kk == 9 and sub == 3))
        def mf1(n, m):
            mi = minfo(n); acc = mi["acc"]; xf = R("v", XF + (n & 7) * 4)
            ks2, h = mi["sub"] >> 1, mi["sub"] & 1
            ac = acc + m * 8 + h * 4
            c = "0" if (mi["kk"] == 0 and ks2 == 0) else R("v", ac)
            return (f"v_mfma_f32_16x16x32_bf16 {R('v',ac)}, {R('a',(mi['kk']*2+ks2)*8+m*4)}, {xf}, {c}", acc)
        def mfmas(n):
            mi = minfo(n); acc = mi["acc"]; xf = R("v", XF + (n & 7) * 4)
            if not mf16:
                c = "0" if (mi["kk"] == 0 and mi["sub"] == 0) else R("v", acc, 16)
                return [(f"v_mfma_f32_32x32x16_bf16 {R('v',acc,16)}, {R('a',(mi['kk']*4+mi['sub'])*4)}, {xf}, {c}", acc)]
            if n >= 160 and CHB:
                n0 = n & ~1; m = ((n & 1) ^ ((n >> 1) & 1))
                return [mf1(n0, m), mf1(n0 + 1, m)]
            return [mf1(n, m) for m in ((1, 0) if (opt.get("snake", 1) and n % 2) else (0, 1))]
        def xread(nn):
            mi = minfo(nn); o = (mi["stage"] % 4) * 16384 + mi["unit"] * 4096
            if not mf16: v = V_XR + mi["sub"]
            else: v = V_XR + (mi["sub"] >> 1); o += (mi["sub"] & 1) * 2048
            return f"ds_read_b128 {R('v', XF + (nn & 7)*4)}, v{v} offset:{o}"
        def wreads(s):
            o = (s % 4) * 16384; L = []
            for e in range(8):
                if not mf16:
                    ks, rd = e >> 1, e & 1
                    L.append((f"ds_read_b64_tr_b16 {R('a', (s*4+ks)*4+2*rd, 2)}, v{V_WR} offset:{o + ks*2048 + rd*512}", ("w", 16*s + 4*ks)))
                else:
                    ks2, m, rd = e >> 2, (e >> 1) & 1, e & 1
                    L.append((f"ds_read_b64_tr_b16 {R('a', (s*2+ks2)*8+m*4+2*rd, 2)}, v{V_WR} offset:{o + m*8192 + ks2*4096 + rd*512}", ("w", 16*s + 8*ks2)))
            return L
        HZ = 9 if mf16 else 13
        epi = []; sts = []; pubs = []
        LV = self.LV
        lastof = {lv: max(b for b in range(8) if LV[b] == lv) for lv in set(LV)}
        EV = opt.get("ev", LV)
        lastev = {e: max(b for b in range(8) if EV[b] == e) for e in set(EV)}
        HOLD = {0: 248, 4: 64, 5: 68}
        def epi_ops(blk, acc):
            dst = HOLD[blk] if (blk in HOLD and lastev[EV[blk]] > blk) else acc + 8
            ops = [("r", (S_HS8 + blk, V_TH, blk), acc)]
            if exact:
                for j in range(16): ops.append(("v", f"v_cvt_pk_bf16_f32 v{acc+j}, 0, v{acc+j}", acc))
            for j in range(8): ops.append(("v", f"v_mul_f32 v{acc+j}, v{acc+j}, v{acc+8+j}", acc))
            for d in ((0, 2, 1, 3) if mf16 else range(4)): ops.append(("v", f"v_cvt_pk_bf16_f32 v{dst+d}, v{acc+2*d}, v{acc+2*d+1}", acc))
            if mf16:
                ops.append(("p", f"v_permlane16_swap_b32 v{dst}, v{dst+2}", acc))
                ops.append(("p", f"v_permlane16_swap_b32 v{dst+1}, v{dst+3}", acc))
            ops.append(("s", f"buffer_store_dwordx4 {R('v',dst)}, v{V_HS}, {sH}, s{S_HS8+blk} offen sc1", blk))
            return ops
        lastv = [0]
        def emit_epi(b, o):
            kind, ins, x = o
            if kind == "v": b.after_mfma(x, HZ); b(ins); lastv[0] = b.n
            elif kind == "r": b.readlane(*ins)
            elif kind == "p":
                d = b.n - lastv[0]
                if d < 2: b(f"s_nop {1-d}")
                b(ins)
        def run_epi(n, cap):
            used = 0
            while epi and epi[0][0] <= n and (used < cap or epi[0][1][0] == "s"):
                o = epi.pop(0)[1]
                if o[0] == "s": sts.append(o)
                else: emit_epi(a, o); used += 1
            return used
        def run_sts(n):
            while sts and sts[-1][2] >= lastev[EV[sts[0][2]]] and n >= opt.get('evn', {}).get(str(EV[sts[0][2]]), 0):
                _, ins, x = sts.pop(0)
                if opt.get("nohst"): continue
                a.vmi(ins, ("hst", x))
                if x == lastof[LV[x]]: pubs.append((LV[x], ("hst", x), n))
        def pub_ready(): return bool(pubs) and a.vm_covered(pubs[0][1])
        def pub_emit(b, ks, uid):
            b(f"s_cmp_ge_u32 s{S_W}, {2 if opt.get('dual', 1) else 1}")
            b(f"s_cbranch_scc1 L_pub_{uid}{ks[0]}")
            for k in ks:
                b(f"s_atomic_swap s{S_NON}, s[{S_FB}:{S_FB+1}], {128*k}")

            b(f"L_pub_{uid}{ks[0]}:")
        def run_pub():
            ks = []
            while pub_ready(): ks.append(pubs.pop(0)[0])
            if ks: pub_emit(a, ks, U if forked[0] else "n")
        trq = []; misc = []
        NB = 4 if ti == 5 else 5
        plan = self.plan(0 if ti == 5 else 5 * ti + (7 if ti >= 3 else 1), NB, {WS[21]: 9} if 21 in WS else {}, 64 if ti == 5 else 12, 64 if ti == 5 else 12, gather=(ti == 5)); LAH = opt.get("lah", 10)
        E0 = opt.get("e0", 0)
        early = [four("d", 2, 10 + i, 65536 + (i % 2) * 16384, ("wdd", i)) for i in range(NE)]
        edone = set()
        trq2 = []
        p0 = self.poll_ops(a, plan["checks"][0][1], plan["gm"]); PP = opt.get("pp", [270, 280, 290]); nh = (len(p0) + len(PP) - 1) // len(PP)
        forked = [False]
        hq = 0
        dma_group(2)[0]["rl"]()
        CAP = opt.get("cap", 2 if mf16 else 5)
        EPR = opt.get("epr", 2.2) * (2 if exact else 1) / (2 if mf16 else 1); credit = [0.0]
        for n in range(-LA, 320):
            nn = n + LA; s = nn >> 4; gp = nn & 15
            grp = dma_group(s + 2); h = grp[gp >> 3]
            g1 = []; g2 = []
            if nn == PP[0]:
                for t in range(1, 6): a(f"s_cmp_eq_u32 s{S_TI}, {t}\ns_cbranch_scc1 L_var{t}")
                a("s_branch L_var0")
                a.raw("@@FORK@@"); forked[0] = True
            def add(g, cost, fn): g.append((cost, fn))
            if gp == 0:
                def bar(s=s):
                    nonlocal trq
                    assert not trq
                    if s < 20:
                        tags = [("dma", s)] + ([("wdd", WS[s])] if s in WS else [])
                        tags += [p[1] for p in pubs if n - p[2] >= opt.get("pubd", 22)]
                        a.need(vm=tags); a("s_barrier"); run_pub(); self.tr(a, f"B{s}")
                        trq = wreads(s) if s < 10 else (self.wd_trs(wdf, WS[s], (s % 4) * 16384) if s in WS else [])
                        if s in WS and WS[s] >= 11:
                            lo = 64 + 16 * (WS[s] - 11)
                            for o in sts + [o for _, o in epi if o[0] == "s"]:
                                r0 = int(o[1].split("v[")[1].split(":")[0]); assert not (lo <= r0 < lo + 16), (s, o)
                        for i in range(NE):
                            if i not in edone and sum(1 for t in a.vm if t == ("wdd", i)) == 4 and a.vm_covered(("wdd", i)):
                                edone.add(i); trq2.extend(self.wd_trs(wdf, i, (i % 2) * 16384, V_DR2))
                    elif 20 in WS:
                        a.need(vm=("wdd", WS[20])); trq = self.wd_trs(wdf, WS[20], 0)
                add(g1, 2, bar)
                if s == 2: misc.append(("nonce_ld",))
                if s == 6: misc.append(("nonce_get",))
            if nn < 320: add(g1, 1, lambda nn=nn: a.lgi(xread(nn), ("x", nn)))
            def trpop():
                if trq:
                    ins, tag = trq.pop(0); a.lgi(ins, tag)
            if s < 10 and mf16:
                if EX == 1:
                    if gp in (0, 2, 4, 6, 10): add(g2, 1, trpop)
                    if gp in (1, 3, 7): add(g1, 1, trpop)
                else:
                    if gp in (0, 3, 6): add(g2, 1, trpop)
                    if gp in (1, 2, 5, 8, 9): add(g1, 1, trpop)
            elif gp % 2 == 0 or nn >= 320: add(g2, 1, trpop)
            es = [e for e in range((s - E0) * EX, (s - E0 + 1) * EX) if 0 <= e < 4 * NE] if s >= E0 else []
            if es:
                seq = [("h", 0, k) for k in range(4)] + [("e", e >> 2, e & 3) for e in es] + [("h", 1, k) for k in range(4)]
                pos = {1: [1, 3, 5, 7, 8, 9, 11, 13, 15], 2: [1, 2, 4, 5, 7, 8, 10, 11, 13, 15], 3: [1, 2, 4, 5, 7, 8, 9, 11, 12, 14, 15]}[len(es)]
            else:
                seq = [("h", hh, k) for hh in range(2) for k in range(4) if grp[hh]]
                pos = [1 + 2 * k + 8 * hh for hh in range(2) for k in range(4) if grp[hh]]
            getf = lambda it: grp[it[1]] if it[0] == "h" else early[it[1]]
            for j, (it, p) in enumerate(zip(seq, pos)):
                f = getf(it)
                newf = j == 0 or seq[j - 1][:2] != it[:2]
                if newf:
                    pm = p - 1 if (j == 0 or pos[j - 1] < p - 1) else p
                    if gp == pm: add(g2 if gp == 0 else g1, 1, lambda f=f: a(f["m0"]))
                    if it[0] == "e" and it[2] == 0 and gp == pm: add(g1, 1, f["rl"])
                if gp == p:
                    def dma(f=f, it=it):
                        a.pad_sgpr(f["so"]); ins, tag = f["ins"][it[2]]
                        if it[0] == "e" and it[2] == 0 and it[1] >= 2:
                            a.need(lg=("wd", it[1] - 2, 3))
                        a.vmi(ins, tag)
                    g2.insert(0, (2, dma))
            if trq2 and gp in ((12, 13, 14, 15) if EX == 1 else (3, 6, 9, 11, 12, 13, 14, 15)):
                def tr2():
                    ins, tag = trq2.pop(0); a.lgi(ins, tag)
                add(g1 if gp in pos else g2, 1, tr2)
            if gp == 4 and grp[1]: add(g1, 1, grp[1]["rl"])
            if gp == 12 and dma_group(s + 3)[0]: add(g1, 1, dma_group(s + 3)[0]["rl"])
            if nn == 303:
                def chk0():
                    for o in self.check_ops(a, plan["checks"][0][1], U + "c0", 1, ti == 5): o()
                g1.insert(0, (3, chk0))
            if nn in PP:
                k = PP.index(nn)
                if ti == 5: k -= 1
                if k >= 0: misc += [("fn", o) for o in p0[k * nh:(k + 1) * nh]]
            if s >= 19 and hq < LAH and gp % 2 == 1:
                add(g2, 2, lambda q=hq: self.h_load(a, q, plan, hbuf)); hq += 1
            waitnext = (n + 1) % 2 == 0 and 0 <= n + 1 < 320
            def run_gap(g, extra_cost, allow):
                c = extra_cost
                for cost, fn in g: fn(); c += cost
                while misc and c < allow + 1:
                    x = misc.pop(0); c += 1
                    if x == ("nonce_ld",): a.vmi(f"buffer_load_dword v{V_NON}, off, {sG}, 0 sc1", "nonce")
                    elif x == ("nonce_get",): self.nonce_get(a, "n")
                    elif x[0] == "fn": x[1]()
                    else: a(x)
                credit[0] += EPR
                u = run_epi(n, max(int(credit[0]) if c <= allow else 0, allow - c))
                credit[0] = max(0.0, credit[0] - u) if epi and epi[0][0] <= n else 0.0
            ms = mfmas(n) if n >= 0 else []
            if n in (200, 240, 280):
                ac = minfo(n)["acc"]; pb = minfo(n)["blk"] - 2
                assert not any(o[0] != "s" and o[2] == ac for _, o in epi), n
                assert n == 200 or lastev[EV[pb]] > pb or not any(o[2] == pb for o in sts + [o for _, o in epi if o[0] == "s"]), n
            if n >= 0 and n % 2 == 0:
                needs = [("x", n + 1)]
                if any(t == ("w", n) for t in a.lg): needs.append(("w", n))
                a.need(lg=needs)
            if not mf16:
                for ins, k in ms: a.mfma(ins, k)
                if n >= 0 and minfo(n)["last"]:
                    for o in epi_ops(minfo(n)["blk"], minfo(n)["acc"]): epi.append((n + 3, o))
                run_gap(g1 + g2, 1 if waitnext else 0, CAP)
            else:
                if ms: a.mfma(*ms[0])
                run_gap(g1, 0, CAP)
                if ms: a.mfma(*ms[1])
                if n >= 0 and minfo(n)["last"]:
                    for o in epi_ops(minfo(n)["blk"], minfo(n)["acc"]): epi.append((n + 2, o))
                run_gap(g2, 1 if waitnext else 0, CAP)
            run_sts(n)
            if "dbgslow" in opt:
                lo, hi, ev, k = opt["dbgslow"]
                if lo <= n < hi and n % ev == 0: a(f"s_nop {k}")
        while trq:
            ins, tag = trq.pop(0); a.lgi(ins, tag)
        assert hq == LAH, hq
        assert not misc
        if ti == 0:
            a(f"s_cmp_eq_u32 s{S_TI}, 6\ns_cbranch_scc1 L_idle")
            b = SBX(); b.label("L_idle"); b("s_nop 7\ns_nop 7"); b.mfma_w[A0] = -100
            for o in sts: b(o[1])
            for _, o in epi:
                if o[0] == "s": b(o[1])
                else: emit_epi(b, o)
            b("s_waitcnt vmcnt(0)\ns_barrier")
            pub_emit(b, sorted(set([p[0] for p in pubs] + [LV[7]])), "i")
            b("s_branch L_fin")
            self.slow.append("\n".join(b.lines))
        st = dict(tr=[])
        def extra(q, nb):
            n = 320 + (q * 4 + nb) // 2
            if nb in (0, 2, 3): run_epi(n, 2)
            run_sts(n)
            if nb == 0 and pub_ready():
                if pubs[0][0] == LV[7]: a.need(lg=("wd", 13, 3))
                a("s_barrier"); run_pub()
            if opt.get("nohst") and q == 14 and nb == 0:
                a.need(lg=("wd", 13, 3)); a("s_barrier")
            if q == 3 and nb == 3 and 21 in WS:
                a.need(vm=("wdd", 13)); st["tr"] = self.wd_trs(wdf, 13, 16384)
            if st["tr"] and nb in (0, 3):
                ins, tag = st["tr"].pop(0); a.lgi(ins, tag)
        self.p2_main(a, NB, U, plan, acc2, hbuf, wdf, extra, 20480, S_REG)
        assert not epi and not pubs and not sts

    def free(self, a):
        a(f"""
        s_sub_u32 s{S_J}, s{S_J}, 27
        s_and_b32 s{T0}, s{S_XCD}, 1
        s_mul_i32 s{T0}, s{T0}, 5
        s_add_u32 s{S_N}, s{T0}, s{S_J}
        s_lshr_b32 s{T0}, s{S_XCD}, 1
        s_lshl_b32 s{S_RB0}, s{T0}, 5
        s_add_u32 s{S_RB0}, s{S_RB0}, 16
        s_lshl_b32 s{S_MW}, s{S_W}, 15
        s_and_b32 s{S_HS8}, s{S_XCD}, 1
        s_lshl_b32 s{S_HS8}, s{S_HS8}, 2
        s_add_u32 s{S_HS8}, s{S_HS8}, s{S_W}
        s_mul_i32 s{S_HS8}, s{S_HS8}, {8*40960}
        s_lshl_b32 s{S_HS8+1}, s{S_J}, 13
        s_add_u32 s{S_HS8}, s{S_HS8}, s{S_HS8+1}
        s_and_b32 s{S_HS8+1}, s{S_XCD}, 6
        """)
        self.srds(a); self.srds2(a)
        a(f"s_mov_b32 s{S_TI}, s{S_J}\ns_mov_b32 s{S_HS8+2}, s6\ns_mov_b32 s{S_HS8+3}, s7")
        if self.opt.get("pfd", 0):
            a(f"""
            s_lshl_b32 s4, s{T0}, 2
            s_add_u32 s4, s4, s{S_W}
            s_mul_i32 s4, s4, {108*1280}
            s_lshl_b32 s5, s{S_N}, 7
            s_add_u32 s4, s4, s5
            v_mul_u32_u24 v1, 1280, v0
            v_cmp_le_u32 vcc, 54, v0
            v_mov_b32 v3, {OOBV}
            s_add_u32 s5, s4, {54*1280}
            v_cndmask_b32 v1, v1, v3, vcc
            buffer_load_dword v{V_DUM}, v1, {sD}, s4 offen
            buffer_load_dword v{V_DUM}, v1, {sD}, s5 offen
            """)
        self.p2_setup(a, False)
        trL, wdM = self.wd_addr_ops(S_MW)
        for x in wdM: a(x)
        def wdf(i): return ('a', 16 * i)
        def hbuf(q): return ('v', 144 + 4 * (q % 18))
        def acc2(rb, nb): return ('v', 32 + (rb * 4 + nb) * 4)
        def wdg(i):
            a(f"s_add_u32 m0, s{S_MW}, {(i%8)*4096}")
            a(f"s_min_u32 s{S_SO[0]}, s{S_WDO}, {WB}")
            a(f"s_add_u32 s{S_WDO}, s{S_WDO}, s{S_WDS}")
            for k in range(4):
                a.vmi(f"buffer_load_dwordx4 v{V_WD+k}, {sD}, s{S_SO[0]} offen offset:{1024*k} lds", ("wdd", i))
        def pf89():
            if self.opt.get("pf89", 0):
                a(f"""
                s_lshl_b32 s4, s{S_TI}, 2
                s_add_u32 s4, s4, s{S_W}
                s_mul_i32 s5, s{S_HS8+1}, 448
                s_mul_i32 s4, s4, {8*3456}
                s_add_u32 s4, s4, s5
                s_add_u32 s4, s4, {512*3456}
                s_min_u32 s4, s4, {WB}
                v_lshrrev_b32 v1, 3, v0
                v_and_b32 v2, 7, v0
                v_mul_u32_u24 v1, 3456, v1
                v_min_u32 v2, 6, v2
                v_lshl_add_u32 v1, v2, 7, v1
                s_mov_b32 s12, s{S_HS8+2}
                s_mov_b32 s13, s{S_HS8+3}
                buffer_load_dword v{V_DUM}, v1, {sW}, s4 offen
                s_mov_b32 s12, s64
                s_mov_b32 s13, s65
                buffer_load_dword v{V_DUM}, v1, {sW}, s4 offen
                s_add_u32 s5, s{S_HS8+1}, s{S_TI}
                s_and_b32 s5, s5, 7
                s_mul_i32 s5, s5, 40960
                s_lshl_b32 s4, s{S_TI}, 13
                s_sub_u32 s4, s{S_HS8}, s4
                s_add_u32 s4, s4, s5
                v_lshrrev_b32 v1, 1, v0
                v_and_b32 v2, 1, v0
                v_mul_u32_u24 v1, 1280, v1
                v_lshl_add_u32 v1, v2, 7, v1
                buffer_load_dword v{V_DUM}, v1, {sX}, s4 offen offset:1024
                """)
            if self.opt.get("pf89", 0): a.vm += ["pf"] * 3
        PFP = self.opt.get("pfp", 2)
        wdg(0); wdg(1)
        if PFP == 2: pf89()
        for x in trL: a(x)
        wdg(2); wdg(3)
        if PFP == 4: pf89()
        for i in range(14):
            a.need(vm=("wdd", i))
            for ins, tag in self.wd_trs(wdf, i, (i % 8) * 4096): a.lgi(ins, tag)
            if i >= 3: a.need(lg=("wd", i - 3, 3))
            if i + 4 < 14: wdg(i + 4)
            if PFP == i + 5: pf89()
            px = self.opt.get("pfx", [2, 5, 8])
            if px and i in px:
                e = px.index(i)
                a(f"v_lshlrev_b32 v1, 7, v0\ns_add_u32 s6, s{S_HS8+1}, {8-len(px)+e}\ns_and_b32 s6, s6, 7\ns_mul_i32 s6, s6, 40960\ns_add_u32 s6, s6, s{S_HS8}")
                a.vmi(f"buffer_load_dword v{V_DUM}, v1, {sX}, s6 offen", "pfx")
        if self.st: a("s_memrealtime s[90:91]")
        a.vmi(f"buffer_load_dword v{V_NON}, off, {sG}, 0 sc1", "nonce")
        self.nonce_get(a, "f")
        if self.st: a("s_memrealtime s[92:93]")
        import copy
        NV = self.opt.get("fv", 1); LAH = self.opt.get("lah", 10)
        for v in range(1, NV):
            for j in range(5):
                if j % NV == v: a(f"s_cmp_eq_u32 s{S_TI}, {j}\ns_cbranch_scc1 L_fv{v}")
        base = a; outl = []
        for v in range(NV):
            a = copy.deepcopy(base); a.lines = []
            if v: a.label(f"L_fv{v}")
            plan = self.plan(16, 6, {}, 12, 12, (v, NV) if NV > 1 else None)
            for o in self.poll_ops(a, plan["checks"][0][1], alt=True): o()
            for o in self.check_ops(a, plan["checks"][0][1], f"f{v}c0", self.opt.get("sleepf", 4)): o()
            if self.st: a("s_memrealtime s[94:95]")
            for q in range(LAH): self.h_load(a, q, plan, hbuf)
            self.p2_main(a, 6, f"f{v}", plan, acc2, hbuf, wdf, lambda q, nb: None, 32768, S_MW)
            a("s_branch L_fin" if self.st else "s_endpgm")
            for x in [x for x in self.slow if f"L_slow_f{v}" in x]: a(x)
            self.slow = [x for x in self.slow if f"L_slow_f{v}" not in x]
            outl += a.lines
        base.lines += outl

    def gen(self):
        a = SBX()
        if self.st: a("s_memrealtime s[96:97]")
        if self.opt.get("dbgsync"):
            a(f"""
            s_memrealtime s[4:5]
            s_waitcnt lgkmcnt(0)
            s_add_u32 s4, s4, 200
            s_or_b32 s4, s4, 1023
            L_syn:
            s_memrealtime s[96:97]
            s_waitcnt lgkmcnt(0)
            s_sub_u32 s6, s96, s4
            s_cmp_lt_i32 s6, 0
            s_cbranch_scc1 L_syn
            """)
        a(f"""
        s_load_dwordx4 s[4:7], s[0:1], 0
        s_load_dwordx4 s[64:67], s[0:1], 16
        s_load_dwordx4 s[24:27], s[0:1], 32
        s_load_dwordx2 s[68:69], s[0:1], 48
        s_cmp_ge_u32 s2, 256
        s_cbranch_scc1 L_end
        v_lshrrev_b32 v1, 6, v0
        v_and_b32 v0, 63, v0
        s_and_b32 s{S_XCD}, s2, 7
        v_readfirstlane_b32 s{S_W}, v1
        {f"s_lshr_b32 s{S_J}, s2, 1" if self.opt.get("xperm", 1) else ""}
        {f"s_and_b32 s{S_J}, s{S_J}, 2" if self.opt.get("xperm", 1) else ""}
        {f"s_xor_b32 s{S_XCD}, s{S_XCD}, s{S_J}" if self.opt.get("xperm", 1) else ""}
        s_lshr_b32 s{S_J}, s2, 3
        s_cmp_ge_u32 s{S_J}, 27
        """)
        if self.opt.get("cw", 1):
            a(f"""
            s_cbranch_scc0 L_normal
            s_getpc_b64 s[8:9]
            s_mov_b32 s10, L_code_end-L_normal
            s_mov_b32 s11, 0x00020000
            s_sub_u32 s3, s{S_J}, 27
            s_lshl_b32 s3, s3, 15
            v_lshl_add_u32 v2, v1, 13, s3
            v_lshl_add_u32 v2, v0, 7, v2
            buffer_load_dword v{V_DUM}, v2, s[8:11], 0 offen
            s_branch L_free
            L_normal:
            """)
        else:
            a("s_cbranch_scc1 L_free")
        common = None; variants = []; slow_common = None
        for ti in range(6):
            self.trn = []; ns = len(self.slow)
            n = SBX(); self.tr(n, "start"); self.normal(n, ti); self.tr(n, "ost")
            if self.opt.get("trace"): n.wait_all(); self.tr(n, "end"); self.tr_out(n)
            n("s_branch L_fin" if self.st else "s_endpgm")
            k = n.lines.index("@@FORK@@")
            if common is None: common = n.lines[:k]
            else:
                assert common == n.lines[:k]
                self.slow[ns:] = [x for x in self.slow[ns:] if "L_nslow_n:" not in x]
            own = [x for x in self.slow[ns:] if f"L_slow_n{ti}" in x]
            self.slow[ns:] = [x for x in self.slow[ns:] if x not in own]
            for x in own: n(x)
            variants.append(n.lines[k + 1:])
        f = SBX(); self.free(f)
        e = SBX(); e.label("L_fin"); self.stamps_out(e); e("L_end:\ns_endpgm")
        for x in self.slow: e(x)
        k = common.index("@@SLOW@@"); common[k:k+1] = e.lines
        k = common.index("L_base:")
        a.lines += common[:k] + self.touch(common[k:], ["L_tc1", "L_tc2"], 1)
        for ti, v in enumerate(variants):
            a.lines += [".p2align 12", f"L_var{ti}:"] + self.touch(v, [f"L_tv{ti}_0", f"L_tv{ti}_1"], 0)
        a.label("L_free"); a.lines += f.lines
        a.label("L_code_end")
        return a.text()
    def touch(self, L, names, k0):
        import subprocess, re
        ext = set(re.findall(r"\b(L_\w+)", "\n".join(L))) - set(x.strip()[:-1] for x in L if x.strip().endswith(":"))
        src = '.amdgcn_target "amdgcn-amd-amdhsa--gfx950"\n.text\n' + "\n".join(L) + "\n" + "".join(x + ":\n" for x in ext) + "s_endpgm\n"
        open("_t.s", "w").write(src)
        subprocess.run("clang -x assembler -target amdgcn-amd-amdhsa -mcpu=gfx950 -c _t.s -o _t.o", shell=True, check=True)
        d = subprocess.run("llvm-objdump -d --mcpu=gfx950 _t.o", shell=True, capture_output=True, text=True).stdout.split("\n")
        addrs = [int(re.search(r"// ([0-9A-F]+):", l).group(1), 16) for l in d if "// " in l]
        assert addrs[-1] + 4 * len(names) <= 4096 * (k0 + len(names)), ("section too long", addrs[-1])
        out = []; n = 0; k = 0
        for l in L:
            t = l.strip()
            if t and not t.endswith(":") and not t.startswith(";"):
                if k < len(names) and addrs[n] + 4 * k >= 4096 * (k + k0) and (t.startswith("v_mfma") or n == 0):
                    out += [names[k] + ":", "    s_cbranch_execz L_base"]; k += 1
                n += 1
            out.append(l)
        assert k == len(names), k
        return out

def gen(opt):
    g = G(opt)
    body = g.gen()
    LDS = opt.get("lds", 163840)
    body = "; TRACE " + " ".join(g.trn) + "\n" + body
    if opt.get("tailk"):
        LL = [f"kernel=main_kernel grid=(256,1,1) block=(256,1,1) lds={LDS}", "kernel=tk_kernel grid=(1,1,1) block=(64,1,1) lds=0"]
        t = header(LL) + kernel_begin("main_kernel") + body
        t += kernel_begin("tk_kernel") + f"""
        s_memrealtime s[10:11]
        s_load_dwordx2 s[4:5], s[0:1], 48
        s_mov_b32 s6, 0x10000000
        s_mov_b32 s7, 0x00020000
        s_mov_b32 s8, {STAMP_OFF - 64}
        s_waitcnt lgkmcnt(0)
        v_mov_b32 v1, s10
        buffer_store_dword v1, off, s[4:7], s8
        s_endpgm
        """ + kernel_desc("tk_kernel", vgpr=8, accum=8)
        t += kernel_desc("main_kernel", vgpr=512, accum=256)
        return t
    if "probe2" in opt:
        nm, stat, mult = opt["probe2"]
        LL = [f"kernel=main_kernel grid=(256,1,1) block=(256,1,1) lds={LDS}", "kernel=pr_kernel grid=(1,1,1) block=(64,1,1) lds=0"]
        t = header(LL) + kernel_begin("main_kernel") + body
        t += kernel_begin("pr_kernel") + gen3.gen_probe2(g.trn.index(nm), stat, mult) + kernel_desc("pr_kernel", vgpr=8, accum=8)
        t += kernel_desc("main_kernel", vgpr=512, accum=256)
        return t
    return header([f"grid=(256,1,1) block=(256,1,1) lds={LDS}"]) + kernel_begin(KNAME) + body + kernel_desc(KNAME, vgpr=512, accum=256)

if __name__ == "__main__":
    import json
    opt = dict(mf=16, fv=2, rot=9, pf89=1, pfx=[], uni=1, ev=[0,1,2,3,4,5,6,7], epr=1.1, ex=2, ne=4, skip=[13,15], pfp=4)
    opt.update(json.loads(sys.argv[2]) if len(sys.argv) > 2 else {})
    open(sys.argv[1], "w").write(gen(opt))
```
